```python
import torch

def _softmax(x, axis=-1):
    return torch.softmax(x, dim=axis)

def _gelu(x):
    return torch.nn.functional.gelu(x, approximate='tanh')

def _silu(x):
    return torch.nn.functional.silu(x)

def _sigmoid(x):
    return torch.sigmoid(x)

def _layernorm(x, axis=-1, eps=1e-05):
    m = x.mean(dim=axis, keepdim=True)
    v = x.var(dim=axis, keepdim=True, unbiased=False)
    return (x - m) / torch.sqrt(v + eps)

def _scatter_add(tgt, idx, src, axis=0):
    return tgt.clone().index_add_(axis, idx, src)

def _segment_sum(src, seg, n):
    out = torch.zeros((n,) + src.shape[1:], dtype=src.dtype)
    return out.index_add_(0, seg, src)

def _pad(x, pw):
    flat = tuple((v for pair in reversed(pw) for v in pair))
    return torch.nn.functional.pad(x, flat)
kernel_name = 'concat_heads__memory_aug_recurrent_mem_tr__mha_block__prompt'

def setup_inputs():

    _w = lambda a: (lambda t: t.to(torch.bfloat16) if t.is_floating_point() else t)(torch.as_tensor(a))

    def _A_setup():
        B, S, Dm = (1, 2048, 1024)
        H, Dh = (32, 128)
        M, seg = (8, 32)
        seg = min(seg, S)
        S = S // seg * seg
        return {'x': _w((lambda *s: torch.randn(*s, dtype=torch.bfloat16) * 0.05)(B, S, Dm)), 'mem0': _w((lambda *s: torch.randn(*s, dtype=torch.bfloat16) * 1.6)(B, M, Dm)), 'Wq': _w((lambda *s: torch.randn(*s, dtype=torch.bfloat16) * 0.8)(Dm, H, Dh) * Dm ** (-0.5)), 'Wk': _w((lambda *s: torch.randn(*s, dtype=torch.bfloat16) * 0.8)(Dm, H, Dh) * Dm ** (-0.5)), 'Wv': _w((lambda *s: torch.randn(*s, dtype=torch.bfloat16) * 1.6)(Dm, H, Dh) * Dm ** (-0.5)), 'Wo': _w((lambda *s: torch.randn(*s, dtype=torch.bfloat16) * 1.6)(H, Dh, Dm) * (H * Dh) ** (-0.5)), 'seg_len': seg}
    _A_in = _A_setup()

    def _B_setup():
        B, S, D, H = (1, 2048, 1024, 32)
        return {'x': _w((lambda *s: torch.randn(*s, dtype=torch.bfloat16) * 0.2)(B, S, D)), 'wqkv': _w((lambda *s: torch.randn(*s, dtype=torch.bfloat16) * 0.2)(D, 3 * D)), 'wo': _w((lambda *s: torch.randn(*s, dtype=torch.bfloat16) * 0.05)(D, D))}
    _B_in = _B_setup()
    return {'A_x': _A_in['x'], 'A_mem0': _A_in['mem0'], 'A_Wq': _A_in['Wq'], 'A_Wk': _A_in['Wk'], 'A_Wv': _A_in['Wv'], 'A_Wo': _A_in['Wo'], 'A_seg_len': _A_in['seg_len'], 'B_x': _B_in['x'], 'B_wqkv': _B_in['wqkv'], 'B_wo': _B_in['wo']}

def reference(A_x, A_mem0, A_Wq, A_Wk, A_Wv, A_Wo, A_seg_len, B_x, B_wqkv, B_wo):

    def _A_ref(x, mem0, Wq, Wk, Wv, Wo, seg_len):
        B, S, Dm = x.shape
        H, Dh = (Wq.shape[1], Wq.shape[2])
        M = mem0.shape[1]
        scale = Dh ** (-0.5)
        n_seg = S // seg_len
        L = M + seg_len
        idx = torch.arange(L)
        mask = (idx[:, None] < M) | (idx[:, None] >= idx[None, :])
        mem = mem0
        outs = []
        for s in range(n_seg):
            xs = x[:, s * seg_len:(s + 1) * seg_len, :].clone()
            h = torch.concatenate([mem, xs], axis=1)
            q = torch.einsum('btd,dhe->bhte', h, Wq)
            k = torch.einsum('btd,dhe->bhte', h, Wk)
            v = torch.einsum('btd,dhe->bhte', h, Wv)
            scores = torch.einsum('bhqe,bhke->bhqk', q, k) * scale
            scores = torch.where(mask[None, None], scores, -1000000000.0)
            p = _softmax(scores, axis=-1)
            o = torch.einsum('bhqk,bhke->bhqe', p, v)
            o = torch.einsum('bhte,hed->btd', o, Wo)
            mem = o[:, :M, :].clone()
            outs.append(o[:, M:, :])
        return torch.concatenate(outs, axis=1)

    def _B_ref(x, wqkv, wo):
        B, S, D = x.shape
        H = 32
        Dh = D // H
        qkv = (lambda x, *d: x.permute(*d))((x @ wqkv).reshape(B, S, 3, H, Dh), 2, 0, 3, 1, 4)
        q, k, v = (qkv[0], qkv[1], qkv[2])
        scores = torch.einsum('bhqd,bhkd->bhqk', q, k) * Dh ** (-0.5)
        p = _softmax(scores, axis=-1)
        o = torch.einsum('bhqk,bhkd->bhqd', p, v)
        return (lambda x, *d: x.permute(*d))(o, 0, 2, 1, 3).reshape(B, S, D) @ wo
    a = _A_ref(A_x, A_mem0, A_Wq, A_Wk, A_Wv, A_Wo, A_seg_len)
    b = _B_ref(B_x, B_wqkv, B_wo)
    return torch.concatenate([a, b], axis=-1)
```

```python
import re

class Asm:
    def __init__(self):
        self.lines = []
        self.nlabel = 0
    def __call__(self, s):
        for l in s.strip("\n").split("\n"):
            l = l.strip()
            if l:
                self.lines.append("    " + l)
    def label(self, name):
        self.lines.append(name + ":")
    def newlabel(self, p="L"):
        self.nlabel += 1
        return "%s_%d" % (p, self.nlabel)
    def raw(self, s):
        for l in s.split("\n"):
            self.lines.append(l)
    def comment(self, s):
        self.lines.append("    ; " + s)
    def text(self, pad=True):
        lines = self.lines
        if pad:
            lines = pad_hazards(lines)
        return "\n".join(lines) + "\n"

def vr(lo, n=1):
    return "v%d" % lo if n == 1 else "v[%d:%d]" % (lo, lo + n - 1)
def sr(lo, n=1):
    return "s%d" % lo if n == 1 else "s[%d:%d]" % (lo, lo + n - 1)

def kernel_header(name):
    return """.globl %s
.p2align 8
.type %s,@function
%s:""" % (name, name, name)

def kernel_desc(name, vgpr=256, sgpr=102, accum=256, kernarg=104):
    return """.section .rodata,"a"
.p2align 6
.amdhsa_kernel %s
  .amdhsa_next_free_vgpr %d
  .amdhsa_next_free_sgpr %d
  .amdhsa_accum_offset %d
  .amdhsa_group_segment_fixed_size 0
  .amdhsa_kernarg_size %d
  .amdhsa_user_sgpr_count 2
  .amdhsa_user_sgpr_kernarg_segment_ptr 1
  .amdhsa_system_sgpr_workgroup_id_x 1
  .amdhsa_float_denorm_mode_32 3
  .amdhsa_float_denorm_mode_16_64 3
.end_amdhsa_kernel
.text""" % (name, vgpr, sgpr, accum, kernarg)

_REG = re.compile(r"^(-|abs\()?\|?([vsa])(\d+)\)?\|?$")
_RNG = re.compile(r"^(-|abs\()?\|?([vsa])\[(\d+):(\d+)\]\)?\|?$")
def regs(op):
    op = op.strip()
    if op == "vcc": return [("s", 106), ("s", 107)]
    if op == "vcc_lo": return [("s", 106)]
    if op == "vcc_hi": return [("s", 107)]
    if op == "exec": return [("s", 126), ("s", 127)]
    if op == "m0": return [("s", 124)]
    m = _REG.match(op)
    if m: return [(m.group(2), int(m.group(3)))]
    m = _RNG.match(op)
    if m: return [(m.group(2), i) for i in range(int(m.group(3)), int(m.group(4)) + 1)]
    return []

TRANS = ("v_exp_f32", "v_log_f32", "v_rcp_f32", "v_rsq_f32", "v_sqrt_f32", "v_sin_f32", "v_cos_f32", "v_rcp_iflag_f32")
def mfma_passes(mn):
    if "32x32x16" in mn or "32x32x8" in mn or "32x32x32" in mn: return 8
    if "16x16x32" in mn or "16x16x16" in mn or "16x16x64" in mn: return 4
    raise ValueError(mn)

def parse(line):
    s = line.split(";")[0].strip()
    if not s or s.endswith(":") or s.startswith("."):
        return None
    parts = s.split(None, 1)
    mn = parts[0]
    rest = parts[1] if len(parts) > 1 else ""
    ops = []; depth = 0; cur = ""
    for ch in rest:
        if ch in "[(": depth += 1
        if ch in "])": depth -= 1
        if ch == "," and depth == 0:
            ops.append(cur.strip()); cur = ""
        else:
            cur += ch
    if cur.strip(): ops.append(cur.strip())
    mods = ""
    if ops:
        last = ops[-1].split(None, 1)
        ops[-1] = last[0] if last else ""
        mods = last[1] if len(last) > 1 else ""
    return mn, ops, mods

class Info:
    pass

def analyze(mn, ops, mods):
    I = Info()
    I.mn = mn; I.kind = "other"; I.w = []; I.r = []; I.ws = 1
    I.srcA = I.srcB = I.srcC = []
    I.dpp = "_dpp" in mn or "row_" in mods or "quad_perm" in mods
    I.wide_data = []
    R = [regs(o) for o in ops]
    flat = lambda L: [x for l in L for x in l]
    if mn == "s_nop":
        I.ws = int(ops[0], 0) + 1; I.kind = "salu"
    elif mn.startswith("v_mfma") or mn.startswith("v_smfmac"):
        I.kind = "mfma"; I.passes = mfma_passes(mn)
        I.w = R[0]; I.srcA = R[1]; I.srcB = R[2]
        if mn.startswith("v_smfmac"):
            I.srcC = R[0]; I.srcB = R[2] + R[3]
        else:
            I.srcC = R[3]
        I.r = I.srcA + I.srcB + I.srcC
    elif mn.startswith("v_"):
        I.kind = "valu"
        base = mn.replace("_e32", "").replace("_e64", "").replace("_dpp", "")
        I.base = base
        if base.startswith("v_permlane"):
            I.w = R[0] + R[1]; I.r = R[0] + R[1]
        elif base.startswith("v_cmp"):
            I.w = R[0]; I.r = flat(R[1:])
            if base.startswith("v_cmpx"): I.w = I.w + regs("exec")
        elif base in ("v_add_co_u32", "v_sub_co_u32", "v_subrev_co_u32", "v_addc_co_u32", "v_subb_co_u32", "v_mad_u64_u32"):
            I.w = R[0] + R[1]; I.r = flat(R[2:])
        else:
            I.w = R[0]; I.r = flat(R[1:])
            if base.startswith("v_fmac") or base.startswith("v_dot2c") or I.dpp or base.startswith("v_writelane"):
                I.r = I.r + R[0]
    elif mn.startswith("ds_"):
        I.kind = "ds"
        if mn.startswith("ds_read") or mn.startswith("ds_bpermute") or mn.startswith("ds_permute") or mn.startswith("ds_swizzle") or "_rtn" in mn:
            I.w = R[0]; I.r = flat(R[1:])
        else:
            I.r = flat(R)
    elif mn.startswith("buffer_") or mn.startswith("global_"):
        I.kind = "vmem"
        I.lds = bool(re.search(r"\blds\b", mods)) or "load_lds" in mn
        if mn in ("buffer_wbl2", "buffer_inv"):
            pass
        elif I.lds:
            I.r = flat(R) + regs("m0")
        elif "_load" in mn:
            I.w = R[0]; I.r = flat(R[1:])
        elif "atomic" in mn:
            I.r = flat(R)
            if re.search(r"\bsc0\b", mods): I.w = R[0]
        else:
            I.r = flat(R)
            if "x4" in mn or "x3" in mn:
                I.wide_data = R[0] if mn.startswith("buffer_") else R[1]
    elif mn.startswith("s_"):
        I.kind = "salu"
        if mn.startswith("s_cmp") or mn.startswith("s_bitcmp") or mn.startswith("s_cbranch") or mn in ("s_branch", "s_waitcnt", "s_barrier", "s_endpgm", "s_setprio", "s_sleep"):
            I.r = flat(R)
        else:
            I.w = R[0] if R else []; I.r = flat(R[1:])
            if "saveexec" in mn: I.w = I.w + regs("exec")
    return I

BIG = 1000
def need(I, st):
    n = 0
    def req(key, dist):
        nonlocal n
        a = st.get(key)
        if a is None: return
        age = a[0] if isinstance(a, tuple) else a
        if age < dist: n = max(n, dist - age)
    AB = {2: 5, 4: 8, 8: 12, 16: 20}
    OV = {2: 4, 4: 6, 8: 10, 16: 18}
    WAR = {2: 1, 4: 3, 8: 7, 16: 15}
    if I.kind == "mfma":
        for r in I.r: req(("valu", r), 2)
        for r in I.srcA + I.srcB:
            a = st.get(("mfma", r))
            if a: req(("mfma", r), AB[a[1]])
        for r in I.srcC:
            a = st.get(("mfma", r))
            if a:
                same = (a[2] == I.srcC[0] and a[3] == len(I.srcC) and a[1] == I.passes)
                if not same: req(("mfma", r), OV[a[1]])
        if I.w != I.srcC:
            for r in I.w:
                a = st.get(("mfma", r))
                if a and not (a[2] == I.w[0] and a[3] == len(I.w) and a[1] == I.passes): req(("mfma", r), OV[a[1]])
        req(("vs", ("s", 126)), 4)
    if I.kind in ("valu", "ds", "vmem"):
        for r in I.r + I.w:
            a = st.get(("mfma", r))
            if a: req(("mfma", r), AB[a[1]])
    if I.kind == "valu":
        for r in I.w:
            a = st.get(("srcc", r))
            if a: req(("srcc", r), WAR[a[1]])
            req(("wide", r), 2)
        if I.base not in TRANS:
            for r in I.r: req(("trans", r), 1)
        if I.dpp:
            for r in I.r: req(("valu", r), 2)
            req(("vs", ("s", 126)), 5)
        if I.base.startswith("v_permlane"):
            for r in I.r: req(("valu", r), 2)
        if I.base in ("v_readlane_b32", "v_readfirstlane_b32"):
            for r in I.r:
                if r[0] == "v": req(("valu", r), 1)
        for r in I.r:
            if r[0] == "s":
                req(("vs", r), 4 if I.base in ("v_readlane_b32", "v_writelane_b32") else 2)
        if I.base == "v_cndmask_b32" and len(I.r) and "e32" in I.mn:
            req(("vs", ("s", 106)), 2)
    if I.kind in ("ds", "vmem"):
        for r in I.w:
            req(("wide", r), 1)
            a = st.get(("srcc", r))
            if a: req(("srcc", r), WAR[a[1]])
    if I.kind == "vmem":
        for r in I.r:
            if r[0] == "s": req(("vs", r), 5)
        if getattr(I, "lds", False): req(("m0",), 1)
    return n

def advance(st, k):
    out = {}
    for key, a in st.items():
        if isinstance(a, tuple):
            if a[0] + k < 24: out[key] = (a[0] + k,) + a[1:]
        else:
            if a + k < 24: out[key] = a + k
    return out

def apply(I, st):
    st = advance(st, I.ws)
    if I.kind == "mfma":
        for r in I.w:
            st[("mfma", r)] = (0, I.passes, I.w[0], len(I.w)); st.pop(("valu", r), None); st.pop(("trans", r), None)
        for r in I.srcC: st[("srcc", r)] = (0, I.passes)
    elif I.kind == "valu":
        for r in I.w:
            if r[0] == "s": st[("vs", r)] = 0
            else:
                st[("valu", r)] = 0
                if I.base in TRANS: st[("trans", r)] = 0
                else: st.pop(("trans", r), None)
    elif I.kind == "salu":
        for r in I.w:
            if r == ("s", 124): st[("m0",)] = 0
            st.pop(("vs", r), None)
    elif I.kind == "vmem":
        for r in I.wide_data: st[("wide", r)] = 0
    return st

def merge(a, b):
    out = dict(a)
    for k, v in b.items():
        if k not in out: out[k] = v
        else:
            x = out[k]
            ax = x[0] if isinstance(x, tuple) else x
            av = v[0] if isinstance(v, tuple) else v
            if isinstance(x, tuple) and k[0] == "mfma" and x[1:] != v[1:]:
                p = max(x[1], v[1])
                out[k] = (min(ax, av), p, None, 0)
            elif isinstance(x, tuple) and k[0] == "srcc":
                out[k] = (min(ax, av), max(x[1], v[1]))
            elif av < ax: out[k] = v
    return out

def pad_hazards(lines):
    parsed = []
    for l in lines:
        p = parse(l) if l.startswith("    ") else None
        parsed.append(analyze(*p) if p else None)
    lab_in = {}
    pads = [0] * len(lines)
    for it in range(6):
        changed = False
        st = {}
        new_lab = {}
        live = True
        for i, l in enumerate(lines):
            I = parsed[i]
            if I is None:
                s = l.strip()
                if s.endswith(":") and not s.startswith(";"):
                    name = s[:-1]
                    if not live: st = {}
                    if name in lab_in: st = merge(st, lab_in[name])
                    live = True
                continue
            cur = advance(st, pads[i]) if pads[i] else st
            n = need(I, cur)
            if n > 0:
                pads[i] += n; changed = True
                cur = advance(st, pads[i])
            st = apply(I, cur)
            if I.mn.startswith("s_cbranch") or I.mn == "s_branch":
                tgt = parse(l)[1][0]
                new_lab[tgt] = merge(new_lab[tgt], st) if tgt in new_lab else dict(st)
                if I.mn == "s_branch": live = False
            if I.mn == "s_endpgm" or I.mn == "s_setpc_b64": live = False
        if new_lab != lab_in: changed = True
        lab_in = new_lab
        if not changed: break
    out = []
    for i, l in enumerate(lines):
        n = pads[i]
        while n > 0:
            k = min(n, 16)
            out.append("    s_nop %d" % (k - 1)); n -= k
        out.append(l)
    return out
```

```python
from asmlib import *
from layout import *
from chain import f32bits
import math

def emit_a2(A, tag, s_seg, s_head, ldflag=""):
    T0, T1, SQ, SK, SV, SKM, SVM, SO, SC = 40, 41, 42, 43, 44, 45, 46, 47, 48
    Q, K, KMf, V, VMf, S, O = 16, 48, 80, 96, 128, 144, 168
    P, PM, ONE, OS, TMP = 232, 240, 244, 248, 8
    A("v_and_b32 v1, 15, v0\nv_lshrrev_b32 v2, 4, v0\nv_lshlrev_b32 v3, 4, v2")
    A("v_bfe_u32 v4, v0, 2, 2\nv_lshlrev_b32 v4, 3, v4\nv_and_b32 v5, 3, v0\nv_add_u32 v4, v4, v5")
    A("v_lshl_add_u32 v5, v1, 13, v3")
    A("v_lshl_add_u32 v6, v4, 13, v3")
    A("v_and_b32 v7, 7, v0\nv_lshl_add_u32 v7, v7, 13, v3")
    A("v_lshl_add_u32 v12, v4, 12, v3")
    A("v_and_b32 v13, 1, v2\nv_lshlrev_b32 v13, 3, v13\nv_lshl_add_u32 v13, v4, 4, v13")
    A("s_lshl_b32 s%d, s%d, 18\ns_lshl_b32 s%d, s%d, 8\ns_add_u32 s%d, s%d, s%d" % (T0, s_seg, T1, s_head, T0, T0, T1))
    A("s_add_u32 s%d, s%d, %d\ns_add_u32 s%d, s%d, %d\ns_add_u32 s%d, s%d, %d" % (SQ, T0, QX, SK, T0, KX, SO, T0, OXA))
    A("s_lshl_b32 s%d, s%d, 16\ns_add_u32 s%d, s%d, s%d\ns_add_u32 s%d, s%d, %d" % (T0, s_seg, SKM, T0, T1, SKM, SKM, KM))
    A("s_lshl_b32 s%d, s%d, 11\ns_add_u32 s%d, s%d, s%d\ns_add_u32 s%d, s%d, %d" % (T1, s_head, SVM, T0, T1, SVM, SVM, VMT))
    A("s_lshl_b32 s%d, s%d, 19\ns_lshl_b32 s%d, s%d, 6\ns_add_u32 s%d, s%d, s%d\ns_add_u32 s%d, s%d, %d" % (T0, s_head, T1, s_seg, SV, T0, T1, SV, SV, VTX))
    for qt in range(2):
        if qt: A("s_add_u32 s%d, s%d, 0x20000" % (SQ, SQ))
        for ks in range(4):
            A("buffer_load_dwordx4 %s, v5, s[8:11], s%d offen offset:%d %s" % (vr(Q + 16 * qt + 4 * ks, 4), SQ, 64 * ks, ldflag))
    for a in range(2):
        if a: A("s_add_u32 s%d, s%d, 0x8000" % (SK, SK))
        for ks in range(4):
            A("buffer_load_dwordx4 %s, v6, s[8:11], s%d offen offset:%d %s" % (vr(K + 16 * a + 4 * ks, 4), SK, 64 * ks, ldflag))
    for ks in range(4):
        A("buffer_load_dwordx4 %s, v7, s[8:11], s%d offen offset:%d %s" % (vr(KMf + 4 * ks, 4), SKM, 64 * ks, ldflag))
    for et in range(8):
        A("s_add_u32 s%d, s%d, %d" % (T0, SV, (32 * (et >> 1) + 4 * (et & 1)) * 4096))
        A("buffer_load_dwordx4 %s, v12, s[8:11], s%d offen %s" % (vr(V + 4 * et, 4), T0, ldflag))
    for et in range(8):
        A("buffer_load_dwordx2 %s, v13, s[8:11], s%d offen offset:%d %s" % (vr(VMf + 2 * et, 2), SVM, (32 * (et >> 1) + 4 * (et & 1)) * 16, ldflag))
    A("s_mov_b32 s%d, 0x%x" % (SC, f32bits(128 ** -0.5 * math.log2(math.e))))
    for i in range(4): A("v_mov_b32 v%d, 0x3f803f80" % (ONE + i))
    A("v_lshlrev_b32 v14, 3, v2\nv_sub_u32 v14, v1, v14")
    A("v_mov_b32 v15, 0xff800000")
    A("s_waitcnt vmcnt(16)")
    for ks in range(4):
        for qt in range(2):
            for kt in range(3):
                a = vr(K + 16 * kt + 4 * ks, 4) if kt < 2 else vr(KMf + 4 * ks, 4)
                d = vr(S + 12 * qt + 4 * kt, 4)
                A("v_mfma_f32_16x16x32_bf16 %s, %s, %s, %s" % (d, a, vr(Q + 16 * qt + 4 * ks, 4), "0" if ks == 0 else d))
    A("s_mov_b32 s50, -1\ns_mov_b32 s51, 0")
    for qt in range(2):
        s = S + 12 * qt
        for j in range(8):
            A("v_cmp_le_i32 vcc, %d, v14" % (j - 16 * qt))
            A("v_cndmask_b32 v%d, v15, v%d, vcc" % (s + j, s + j))
        for j in range(4):
            A("v_cndmask_b32 v%d, v15, v%d, s[50:51]" % (s + 8 + j, s + 8 + j))
        m = TMP
        A("v_max3_f32 v%d, v%d, v%d, v%d" % (m, s, s + 1, s + 2))
        for j in range(3, 11, 2): A("v_max3_f32 v%d, v%d, v%d, v%d" % (m, m, s + j, s + j + 1))
        A("v_max_f32 v%d, v%d, v%d" % (m, m, s + 11))
        A("v_mov_b32 v%d, v%d\nv_permlane16_swap_b32 v%d, v%d\nv_max_f32 v%d, v%d, v%d" % (m + 1, m, m, m + 1, m, m, m + 1))
        A("v_mov_b32 v%d, v%d\nv_permlane32_swap_b32 v%d, v%d\nv_max_f32 v%d, v%d, v%d" % (m + 1, m, m, m + 1, m, m, m + 1))
        A("v_mul_f32 v%d, s%d, v%d" % (m, SC, m))
        for j in range(12): A("v_fma_f32 v%d, v%d, s%d, -v%d" % (s + j, s + j, SC, m))
        for j in range(12): A("v_exp_f32 v%d, v%d" % (s + j, s + j))
        for j in range(4): A("v_cvt_pk_bf16_f32 v%d, v%d, v%d" % (P + 4 * qt + j, s + 2 * j, s + 2 * j + 1))
        for j in range(2): A("v_cvt_pk_bf16_f32 v%d, v%d, v%d" % (PM + 2 * qt + j, s + 8 + 2 * j, s + 9 + 2 * j))
    A("s_waitcnt vmcnt(0)")
    for qt in range(2):
        A("v_mfma_f32_16x16x32_bf16 %s, %s, %s, 0" % (vr(OS + 4 * qt, 4), vr(ONE, 4), vr(P + 4 * qt, 4)))
    for qt in range(2):
        A("v_mfma_f32_16x16x16_bf16 %s, %s, %s, %s" % (vr(OS + 4 * qt, 4), vr(ONE, 2), vr(PM + 2 * qt, 2), vr(OS + 4 * qt, 4)))
    for qt in range(2):
        for et in range(8):
            A("v_mfma_f32_16x16x32_bf16 %s, %s, %s, 0" % (vr(O + 32 * qt + 4 * et, 4), vr(V + 4 * et, 4), vr(P + 4 * qt, 4)))
        for et in range(8):
            d = vr(O + 32 * qt + 4 * et, 4)
            A("v_mfma_f32_16x16x16_bf16 %s, %s, %s, %s" % (d, vr(VMf + 2 * et, 2), vr(PM + 2 * qt, 2), d))
    for qt in range(2):
        A("v_rcp_f32 v%d, v%d" % (TMP + 2 * qt, OS + 4 * qt))
    for qt in range(2):
        if qt: A("s_add_u32 s%d, s%d, 0x20000" % (SO, SO))
        o = O + 32 * qt
        for j in range(0, 32, 2): A("v_pk_mul_f32 %s, %s, %s op_sel_hi:[1,0]" % (vr(o + j, 2), vr(o + j, 2), vr(TMP + 2 * qt, 2)))
        for j in range(16): A("v_cvt_pk_bf16_f32 v%d, v%d, v%d" % (Q + 16 * qt + j, o + 2 * j, o + 2 * j + 1))
        for T in range(4):
            A("buffer_store_dwordx4 %s, v5, s[8:11], s%d offen offset:%d" % (vr(Q + 16 * qt + 4 * T, 4), SO, 64 * T))

B2_KSLOT = 32768
B2_VROW = 1040
B2_SLOT = B2_KSLOT + 32 * B2_VROW
B2_LDS = 2 * B2_SLOT

def emit_b2(A, tag, s_head, s_qb, s_wave, ldflag="", stflag=""):
    T0, T1, SKO, SVO, SC, SIT, SCH, SWS, SRS, SMK, SMV = 40, 41, 42, 43, 44, 45, 46, 47, 48, 49, 50
    Q, O, KF, VF, P = 16, 24, 40, 56, 72
    SB = [96, 128]
    M, L, MN, AL, T = 88, 90, 92, 93, 94
    VKD, VVD, KA, VA_, CK, CV = 2, 3, 4, 6, 8, 10
    A("v_lshrrev_b32 v%d, 2, v0\nv_lshlrev_b32 v%d, 12, v%d" % (VKD, VKD, VKD))
    A("v_lshrrev_b32 v%d, 4, v0\nv_and_b32 v%d, 3, v0\nv_xor_b32 v%d, v%d, v%d\nv_lshl_add_u32 v%d, v%d, 4, v%d" % (T, T + 1, T, T, T + 1, VKD, T, VKD))
    A("v_lshlrev_b32 v%d, 4, v0" % VVD)
    A("s_lshl_b32 s%d, s%d, 18\ns_lshl_b32 s%d, s%d, 6\ns_add_u32 s%d, s%d, s%d\ns_add_u32 s%d, s%d, %d" % (SKO, s_wave, T0, s_head, SKO, SKO, T0, SKO, SKO, BQK + 2048))
    A("s_lshl_b32 s%d, s%d, 17\ns_lshl_b32 s%d, s%d, 14\ns_add_u32 s%d, s%d, s%d\ns_add_u32 s%d, s%d, %d" % (SVO, s_head, T0, s_wave, SVO, SVO, T0, SVO, SVO, BVT))
    A("s_lshl_b32 s%d, s%d, 12" % (SMK, s_wave))
    A("s_mul_i32 s%d, s%d, %d\ns_add_u32 s%d, s%d, %d" % (SMV, s_wave, 4 * B2_VROW, SMV, SMV, B2_KSLOT))
    A("s_mov_b32 s%d, 0" % SWS)
    def dma():
        for j in range(4):
            A("s_add_u32 m0, s%d, s%d" % (SMK, SWS))
            if j: A("s_add_u32 m0, m0, %d" % (1024 * j))
            A("s_add_u32 s%d, s%d, %d" % (T0, SKO, j * 16 * 4096))
            A("buffer_load_dwordx4 v%d, s[8:11], s%d offen %s lds" % (VKD, T0, ldflag))
        for j in range(4):
            A("s_add_u32 m0, s%d, s%d" % (SMV, SWS))
            if j: A("s_add_u32 m0, m0, %d" % (B2_VROW * j))
            A("s_add_u32 s%d, s%d, %d" % (T0, SVO, j * 4096))
            A("buffer_load_dwordx4 v%d, s[8:11], s%d offen %s lds" % (VVD, T0, ldflag))
        A("s_add_u32 s%d, s%d, %d\ns_add_u32 s%d, s%d, 1024" % (SKO, SKO, 512 * 4096, SVO, SVO))
        A("s_sub_u32 s%d, %d, s%d" % (SWS, B2_SLOT, SWS))
    dma()
    A("v_and_b32 v%d, 31, v0\nv_lshrrev_b32 v%d, 5, v0" % (T, T + 1))
    A("v_lshlrev_b32 v12, 12, v%d\nv_lshl_add_u32 v12, v%d, 4, v12" % (T, T + 1))
    A("s_lshl_b32 s%d, s%d, 20\ns_lshl_b32 s%d, s%d, 17\ns_add_u32 s%d, s%d, s%d\ns_lshl_b32 s%d, s%d, 6\ns_add_u32 s%d, s%d, s%d\ns_add_u32 s%d, s%d, %d" % (T0, s_qb, T1, s_wave, T0, T0, T1, T1, s_head, T0, T0, T1, T0, T0, BQK))
    A("buffer_load_dwordx4 %s, v12, s[8:11], s%d offen %s" % (vr(Q, 4), T0, ldflag))
    A("buffer_load_dwordx4 %s, v12, s[8:11], s%d offen offset:32 %s" % (vr(Q + 4, 4), T0, ldflag))
    A("v_lshlrev_b32 v13, 11, v%d\nv_lshl_add_u32 v13, v%d, 4, v13" % (T, T + 1))
    A("v_and_b32 v14, 0x13, v%d\nv_bfe_u32 v15, v%d, 2, 1\nv_lshl_or_b32 v14, v15, 3, v14\nv_bfe_u32 v15, v%d, 3, 1\nv_lshl_or_b32 v14, v15, 2, v14" % (T, T, T))
    A("v_bfe_u32 v15, v14, 2, 2\nv_xor_b32 v15, v15, v%d" % (T + 1))
    A("v_lshlrev_b32 v14, 6, v14\nv_lshl_add_u32 v%d, v15, 4, v14\nv_xor_b32 v%d, 32, v%d" % (KA, KA + 1, KA))
    A("s_movk_i32 s%d, %d\nv_mul_lo_u32 v%d, v%d, s%d\nv_lshl_add_u32 v%d, v%d, 4, v%d\nv_add_u32 v%d, %d, v%d" % (T0, B2_VROW, VA_, T, T0, VA_, T + 1, VA_, VA_, B2_KSLOT, VA_))
    A("s_mov_b32 s%d, 0x%x" % (SC, f32bits(32 ** -0.5 * math.log2(math.e))))
    for i in range(16): A("v_mov_b32 v%d, 0" % (O + i))
    A("v_mov_b32 v%d, 0xff800000\nv_mov_b32 v%d, 0\nv_mov_b32 v%d, 0" % (M, L, L + 1))
    A("s_mov_b32 s%d, 0\ns_mov_b32 s%d, 0" % (SRS, SCH))
    def kreads(off):
        return ["ds_read_b128 %s, v%d offset:%d" % (vr(KF + 8 * t + 4 * ks, 4), CK + ks, off + 2048 * t) for t in range(2) for ks in range(2)]
    def vreads(off):
        return ["ds_read_b128 %s, v%d offset:%d" % (vr(VF + 4 * j, 4), CV, off + 32 * j) for j in range(4)]
    def qk(sb):
        Lm = []
        for ks in range(2):
            for t in range(2):
                d = vr(SB[sb] + 16 * t, 16)
                Lm.append("v_mfma_f32_32x32x16_bf16 %s, %s, %s, %s" % (d, vr(KF + 8 * t + 4 * ks, 4), vr(Q + 4 * ks, 4), "0" if ks == 0 else d))
        return Lm
    def softmax_pv(sb, it, nxt):
        s = SB[sb]
        V = []
        V.append("v_max3_f32 v%d, v%d, v%d, v%d" % (MN, M, s, s + 1))
        for j in range(2, 32, 2): V.append("v_max3_f32 v%d, v%d, v%d, v%d" % (MN, MN, s + j, s + j + 1))
        V.append("v_mov_b32 v%d, v%d" % (T, MN))
        V.append("v_permlane32_swap_b32 v%d, v%d" % (MN, T))
        V.append("v_max_f32 v%d, v%d, v%d" % (MN, MN, T))
        lab = "B2%s_NR%d" % (tag, it)
        V.append("v_cmp_gt_f32 vcc, v%d, v%d" % (MN, M))
        V.append("v_mul_f32 v%d, s%d, v%d" % (T, SC, MN))
        R = ["s_cbranch_vccz %s" % lab,
             "v_fma_f32 v%d, v%d, s%d, -v%d" % (AL - 1 + 0, M, SC, T) if False else "v_fma_f32 v%d, v%d, s%d, -v%d" % (T + 1, M, SC, T),
             "v_exp_f32 v%d, v%d" % (M, T + 1)]
        for j in range(0, 16, 2): R.append("v_pk_mul_f32 %s, %s, %s op_sel_hi:[1,0]" % (vr(O + j, 2), vr(O + j, 2), vr(M, 2)))
        R.append("v_pk_mul_f32 %s, %s, %s op_sel_hi:[1,0]" % (vr(L, 2), vr(L, 2), vr(M, 2)))
        R.append("v_mov_b32 v%d, v%d" % (M, MN))
        R.append(lab + ":")
        W = []
        for u in range(4):
            b = s + 8 * u
            for j in range(8): W.append("v_fma_f32 v%d, v%d, s%d, -v%d" % (b + j, b + j, SC, T))
            for j in range(8): W.append("v_exp_f32 v%d, v%d" % (b + j, b + j))
            for j in range(4): W.append("v_cvt_pk_bf16_f32 v%d, v%d, v%d" % (P + 4 * u + j, b + 2 * j, b + 2 * j + 1))
            for j in range(0, 8, 2): W.append("v_pk_add_f32 %s, %s, %s" % (vr(L, 2), vr(L, 2), vr(b + j, 2)))
            W.append("PV%d" % u)
        nx = list(nxt)
        for i, x in enumerate(V):
            A(x)
        for x in R:
            if x.endswith(":"): A.label(x[:-1])
            else: A(x)
        for i, x in enumerate(W):
            if x.startswith("PV"):
                u = int(x[2:])
                if u == 0: A("s_waitcnt lgkmcnt(%d)" % nx_wait[0])
                A("v_mfma_f32_32x32x16_bf16 %s, %s, %s, %s" % (vr(O, 16), vr(VF + 4 * u, 4), vr(P + 4 * u, 4), vr(O, 16)))
            else:
                A(x)
            if i % 12 == 5 and nx:
                A(nx.pop(0))
        for x in nx: A(x)
    nx_wait = [0]
    A.label("B2%s_CH" % tag)
    A("s_waitcnt vmcnt(0)\ns_barrier")
    A("s_cmp_eq_u32 s%d, 3\ns_cbranch_scc1 B2%s_ND" % (SCH, tag))
    dma()
    A.label("B2%s_ND" % tag)
    A("v_add_u32 v%d, s%d, v%d\nv_add_u32 v%d, s%d, v%d\nv_add_u32 v%d, s%d, v%d" % (CK, SRS, KA, CK + 1, SRS, KA + 1, CV, SRS, VA_))
    A("s_sub_u32 s%d, %d, s%d" % (SRS, B2_SLOT, SRS))
    for r in kreads(0): A(r)
    A("s_waitcnt lgkmcnt(0)")
    for m in qk(0): A(m)
    for it in range(8):
        sb = it & 1
        for r in vreads(128 * it): A(r)
        if it < 7:
            for r in kreads(4096 * (it + 1)): A(r)
            nxt = ["s_waitcnt lgkmcnt(0)\n" + qk(1 - sb)[0]] + qk(1 - sb)[1:]
        else:
            nxt = []
        nx_wait[0] = 0
        softmax_pv(sb, it, nxt)
    A("s_add_u32 s%d, s%d, 1\ns_cmp_lt_u32 s%d, 4\ns_cbranch_scc1 B2%s_CH" % (SCH, SCH, SCH, tag))
    A("v_add_f32 v%d, v%d, v%d\nv_mov_b32 v%d, v%d\nv_permlane32_swap_b32 v%d, v%d\nv_add_f32 v%d, v%d, v%d\nv_rcp_f32 v%d, v%d" % (L, L, L + 1, T, L, L, T, L, L, T, M, L))
    for j in range(0, 16, 2): A("v_pk_mul_f32 %s, %s, %s op_sel_hi:[1,0]" % (vr(O + j, 2), vr(O + j, 2), vr(M, 2)))
    for j in range(8): A("v_cvt_pk_bf16_f32 v%d, v%d, v%d" % (P + j, O + 2 * j, O + 2 * j + 1))
    A("s_lshl_b32 s%d, s%d, 19\ns_lshl_b32 s%d, s%d, 16\ns_add_u32 s%d, s%d, s%d\ns_lshl_b32 s%d, s%d, 6\ns_add_u32 s%d, s%d, s%d\ns_add_u32 s%d, s%d, %d" % (T0, s_qb, T1, s_wave, T0, T0, T1, T1, s_head, T0, T0, T1, T0, T0, BO))
    for k in range(2):
        A("v_permlane32_swap_b32 v%d, v%d\nv_permlane32_swap_b32 v%d, v%d" % (P + 4 * k, P + 4 * k + 2, P + 4 * k + 1, P + 4 * k + 3))
        A("buffer_store_dwordx4 %s, v13, s[8:11], s%d offen offset:%d %s" % (vr(P + 4 * k, 4), T0, 32 * k, stflag))
```

```python
from asmlib import *
from layout import *
import math, struct, os
OPT = os.environ.get("OPT", "").split(",")

def f32bits(x):
    return struct.unpack("<I", struct.pack("<f", x))[0]

S_WS = 8
S_W = 12
S_PB = 22
S_X, S_C, S_WAVE, S_STEP, S_CUR, S_NXT, S_RST, S_DONE = 32, 33, 34, 35, 36, 37, 38, 39
S_MLO = 40
S_MM = 42
S_TO = 44
S_T0, S_T1, S_T2, S_T3 = 45, 46, 47, 48
S_SC = 49
S_KOFF, S_VOFF, S_KMOFF, S_VMOFF = 50, 51, 52, 53
S_DUM = 24
S_G2 = 54
S_PTR = 60
TIMEOUT = 200000

RED_QK, RED_V, RED_O = 0, 8192, 16384

def ptr(i):
    return S_PTR + 2 * i

def mk_srd(A, d, p, nbytes):
    A("s_mov_b32 s%d, s%d\ns_and_b32 s%d, s%d, 0xffff\ns_mov_b32 s%d, 0x%x\ns_mov_b32 s%d, 0x20000" % (d, p, d + 1, p + 1, d + 2, nbytes, d + 3))

def check(A, regs_list, tmp, retry):
    r = list(regs_list)
    if len(r) >= 3:
        A("v_max3_u32 v%d, v%d, v%d, v%d" % (tmp, r[0], r[1], r[2])); r = r[3:]
    else:
        A("v_max_u32 v%d, v%d, v%d" % (tmp, r[0], r[1])); r = r[2:]
    while r:
        if len(r) >= 2:
            A("v_max3_u32 v%d, v%d, v%d, v%d" % (tmp, tmp, r[0], r[1])); r = r[2:]
        else:
            A("v_max_u32 v%d, v%d, v%d" % (tmp, tmp, r[0])); r = r[1:]
    A("v_cmp_eq_u32 vcc, -1, v%d" % tmp)
    A("s_cbranch_vccnz %s" % retry)

def poll_head(A, name, abort):
    A("s_mov_b32 s%d, 0" % S_TO)
    A.label(name)
    A("s_add_u32 s%d, s%d, 1\ns_cmp_gt_u32 s%d, %d\ns_cbranch_scc1 %s" % (S_TO, S_TO, S_TO, TIMEOUT, abort))

def rot_poll(A, name, abort, n, k, issue, regs_of, on_ok, vtmp, vdum, between=None):
    def dummy():
        for i in range(k): A("buffer_load_dword v%d, off, s[8:11], s%d %s" % (vdum, S_DUM, "sc1" if "dumsc1" in OPT else ""))
    for u in range(n): issue(u)
    if between: between()
    A("s_mov_b32 s%d, 0\ns_mov_b32 s%d, 0" % (S_DONE, S_TO))
    for u in range(n):
        A("s_waitcnt vmcnt(%d)" % ((n - 1) * k))
        check(A, regs_of(u), vtmp, "%s_F%d" % (name, u))
        if u < n - 1: dummy()
        on_ok(u)
        A("s_bitset1_b32 s%d, %d" % (S_DONE, u))
        if u == n - 1:
            A("s_cmp_eq_u32 s%d, %d\ns_cbranch_scc1 %s_OK" % (S_DONE, (1 << n) - 1, name))
            dummy()
            A("s_branch %s_L" % name)
        else:
            A("s_branch %s_N%d" % (name, u))
        A.label("%s_F%d" % (name, u))
        issue(u)
        A.label("%s_N%d" % (name, u))
    A.label(name + "_L")
    A("s_add_u32 s%d, s%d, 1\ns_cmp_gt_u32 s%d, %d\ns_cbranch_scc1 %s" % (S_TO, S_TO, S_TO, TIMEOUT, abort))
    for u in range(n):
        A("s_waitcnt vmcnt(%d)" % ((n - 1) * k))
        A("s_bitcmp1_b32 s%d, %d\ns_cbranch_scc1 %s_D%d" % (S_DONE, u, name, u))
        check(A, regs_of(u), vtmp, "%s_G%d" % (name, u))
        on_ok(u)
        A("s_bitset1_b32 s%d, %d" % (S_DONE, u))
        A("s_cmp_eq_u32 s%d, %d\ns_cbranch_scc1 %s_OK" % (S_DONE, (1 << n) - 1, name))
        A.label("%s_D%d" % (name, u))
        dummy()
        A("s_branch %s_M%d" % (name, u))
        A.label("%s_G%d" % (name, u))
        issue(u)
        A.label("%s_M%d" % (name, u))
    A("s_branch %s_L" % name)
    A.label(name + "_OK")

def load_weights(A, vbase, nmat, mats, vtmp):
    va, vw, vt = vtmp, vtmp + 1, vtmp + 2
    for b, (pi, nb, rs, soff) in enumerate(mats):
        mk_srd(A, S_W, ptr(pi), nb)
        A("v_lshrrev_b32 v%d, 2, v0" % va)
        A("s_mov_b32 s%d, %d" % (S_T0, rs))
        A("v_mul_lo_u32 v%d, v%d, s%d" % (va, va, S_T0))
        A("v_and_b32 v%d, 3, v0\nv_lshl_add_u32 v%d, v%d, 4, v%d" % (vt, va, vt, va))
        A("s_mov_b32 s%d, s%d" % (S_T1, soff))
        for i in range(16):
            A("buffer_load_dwordx4 %s, v%d, s[%d:%d], s%d offen" % (vr(vbase + b * 64 + i * 4, 4), va, S_W, S_W + 3, S_T1))
            if i < 15: A("s_add_u32 s%d, s%d, %d" % (S_T1, S_T1, 16 * rs))
    A("s_lshl_b32 s%d, s%d, 14" % (S_T0, S_WAVE))
    A("v_lshlrev_b32 v%d, 4, v0\nv_add_u32 v%d, s%d, v%d" % (vw, vw, S_T0, vw))
    A("v_lshrrev_b32 v%d, 4, v0\nv_lshlrev_b32 v%d, 9, v%d" % (va, va, va))
    A("v_bfe_u32 v%d, v0, 2, 2\nv_lshl_add_u32 v%d, v%d, 6, v%d" % (vt, va, vt, va))
    A("v_and_b32 v%d, 3, v0\nv_lshl_add_u32 v%d, v%d, 4, v%d" % (vt, va, vt, va))
    A("v_add_u32 v%d, s%d, v%d" % (va, S_T0, va))
    for b in range(nmat):
        A("s_waitcnt vmcnt(%d)" % ((nmat - 1 - b) * 16))
        for i in range(16):
            A("ds_write_b128 v%d, %s offset:%d" % (vw, vr(vbase + b * 64 + i * 4, 4), i * 1024))
        A("s_waitcnt lgkmcnt(0)")
        for kk in range(8):
            for a in range(2):
                for hf in range(2):
                    A("ds_read_b64_tr_b16 %s, v%d offset:%d" % (vr(vbase + b * 64 + kk * 8 + a * 4 + hf * 2, 2), va, kk * 2048 + hf * 256 + a * 8))
            if kk % 2 == 1: A("s_waitcnt lgkmcnt(0)")

def next_slots(A):
    A("s_mov_b32 s%d, s%d\ns_mov_b32 s%d, s%d" % (S_CUR, S_NXT, S_NXT, S_RST))
    A("s_add_u32 s%d, s%d, %d\ns_cmp_eq_u32 s%d, %d\ns_cselect_b32 s%d, %d, s%d" % (S_RST, S_RST, SLOT, S_RST, EXCH + 4 * SLOT, S_RST, EXCH, S_RST))
    A("s_add_u32 s%d, s%d, 1" % (S_STEP, S_STEP))

def pk_add(A, d, a, b, n):
    for i in range(0, n, 2):
        A("v_pk_add_f32 %s, %s, %s" % (vr(d + i, 2), vr(a + i, 2), vr(b + i, 2)))

def emit_chain(A0, done, intra="", nstep=64, ready_wait=None, stamps=False, pfx="CH_"):
    A = Asm()
    _emit_chain(A, done, intra, nstep, ready_wait, stamps)
    for l in A.lines: A0.lines.append(l.replace("CH_", pfx))

def _emit_chain(A, done, intra="", nstep=64, ready_wait=None, stamps=False):
    ab = done
    def st(i):
        if stamps: A("s_memrealtime s[%d:%d]" % (86 + 2 * i, 87 + 2 * i))
    def cnt():
        if stamps: A("s_mov_b32 s100, s%d" % S_TO)
    def dump(tag):
        if not stamps: return
        A("s_cmp_lg_u32 s%d, %d\ns_cbranch_scc1 CH_ND%s" % (S_STEP, stamps, tag))
        A("s_waitcnt lgkmcnt(0)")
        A("s_lshl_b32 s%d, s2, 3\ns_add_u32 s%d, s%d, s%d\ns_lshl_b32 s%d, s%d, 6\ns_add_u32 s%d, s%d, 0x6000000" % (S_T0, S_T0, S_T0, S_WAVE, S_T0, S_T0, S_T0, S_T0))
        A("s_mov_b64 exec, 1")
        for i in range(8):
            A("v_mov_b32 v5, s%d\nbuffer_store_dword v5, v2, s[8:11], s%d offen offset:%d" % (86 + 2 * i, S_T0, 4 * i))
        A("s_mov_b64 exec, -1")
        A.label("CH_ND" + tag)
    def backoff(k, dflt):
        n = dflt
        for o in OPT:
            if o.startswith("d" + k): n = int(o[2:])
        if n: A("s_sleep %d" % n)
    last = lambda: A("s_cmp_eq_u32 s%d, %d\ns_cbranch_scc1 %s" % (S_STEP, nstep - 1, done))
    A("v_lshrrev_b32 v1, 6, v0\nv_and_b32 v0, 63, v0\nv_readfirstlane_b32 s%d, v1" % S_WAVE)
    A("s_mov_b32 s%d, 0x00ff00ff\ns_mov_b32 s%d, 0x00ff00ff" % (S_MLO, S_MLO + 1))
    A("s_mov_b32 s%d, 0\ns_mov_b32 s%d, 0x00ff00ff" % (S_MM, S_MM + 1))
    A("s_mov_b32 s%d, 0\ns_mov_b32 s%d, -1" % (S_G2, S_G2 + 1))
    A("s_mov_b32 s%d, %d" % (S_DUM, EXCH + 4 * SLOT))
    A("s_mov_b32 s%d, 0\ns_mov_b32 s%d, %d\ns_mov_b32 s%d, %d\ns_mov_b32 s%d, %d" % (S_STEP, S_CUR, EXCH, S_NXT, EXCH + SLOT, S_RST, EXCH + 2 * SLOT))
    A("v_bfe_u32 v1, v0, 3, 1\nv_lshlrev_b32 v1, 9, v1\nv_lshrrev_b32 v2, 4, v0\nv_lshl_add_u32 v1, v2, 7, v1\nv_and_b32 v2, 7, v0\nv_lshl_add_u32 v1, v2, 4, v1")
    A("v_lshlrev_b32 v2, 4, v0")
    A("s_lshl_b32 s%d, s%d, 5\ns_add_u32 s%d, s%d, s%d" % (S_T2, S_X, S_T2, S_T2, S_C))
    A("s_cmp_ge_u32 s%d, 4\ns_cbranch_scc1 CH_WO" % S_WAVE)

    W = 64
    A("s_lshl_b32 s%d, s%d, 6" % (S_T3, S_T2))
    A("s_lshl_b32 s%d, s%d, 21\ns_add_u32 s%d, s%d, s%d" % (S_T0, S_WAVE, S_T3, S_T3, S_T0))
    load_weights(A, W, 3, [(2, 0x800000, 8192, S_T3), (3, 0x800000, 8192, S_T3), (4, 0x800000, 8192, S_T3)], 4)
    A("s_lshl_b32 s%d, s%d, 14\ns_lshl_b32 s%d, s%d, 12\ns_add_u32 s%d, s%d, s%d" % (S_T0, S_X, S_T1, S_WAVE, S_T0, S_T0, S_T1))
    A("v_add_u32 v3, s%d, v1" % S_T0)
    A("s_lshl_b32 s%d, s%d, 11\nv_add_u32 v4, s%d, v2" % (S_T0, S_WAVE, S_T0))
    R, RR, AQ, AK, AV = 8, 24, 40, 48, 56
    for i in range(16): A("v_mov_b32 v%d, 0" % (AQ + i))
    A("s_barrier")
    wq = lambda kk, a: vr(W + kk * 8 + a * 4, 4)
    wk = lambda kk, a: vr(W + 64 + kk * 8 + a * 4, 4)
    wv = lambda kk, a: vr(W + 128 + kk * 8 + a * 4, 4)
    A.label("CH_Q_LOOP")
    st(0)
    backoff("m", 0)
    def q_ok(u):
        for a in range(2):
            A("v_mfma_f32_16x16x32_bf16 %s, %s, %s, %s" % (vr(AQ + 4 * a, 4), wq(2 * u, a), vr(R + 4 * u, 4), vr(AQ + 4 * a, 4)))
            for i in range(2): A("v_mov_b32_dpp v%d, v%d row_ror:8 row_mask:0xf bank_mask:0xf" % (RR + 4 * u + 2 * a + i, R + 4 * u + 2 * a + i))
        for a in range(2):
            A("v_mfma_f32_16x16x32_bf16 %s, %s, %s, %s" % (vr(AK + 4 * a, 4), wk(2 * u + 1, a), vr(R + 4 * u, 4), vr(AK + 4 * a, 4)))
        for a in range(2):
            A("v_mfma_f32_16x16x32_bf16 %s, %s, %s, %s" % (vr(AQ + 4 * a, 4), wq(2 * u + 1, a), vr(RR + 4 * u, 4), vr(AQ + 4 * a, 4)))
        for a in range(2):
            A("v_mfma_f32_16x16x32_bf16 %s, %s, %s, %s" % (vr(AK + 4 * a, 4), wk(2 * u, a), vr(RR + 4 * u, 4), vr(AK + 4 * a, 4)))
    rot_poll(A, "CH_QP", ab, 4, 1,
             lambda u: A("buffer_load_dwordx4 %s, v3, s[8:11], s%d offen offset:%d sc1" % (vr(R + 4 * u, 4), S_CUR, u * 1024)),
             lambda u: range(R + 4 * u, R + 4 * u + 4), q_ok, 5, 6)
    st(1); cnt()
    for a in range(2):
        A("v_mfma_f32_16x16x32_bf16 %s, %s, %s, 0" % (vr(AV + 4 * a, 4), vr(R, 4), wv(1, a)))
    for i in range(8):
        A("v_cndmask_b32 v%d, v%d, v%d, s[%d:%d]" % (AQ + i, AK + i, AQ + i, S_MLO, S_MLO + 1))
        if i == 3: A("ds_write_b128 v4, %s offset:%d" % (vr(AQ, 4), RED_QK))
    A("ds_write_b128 v4, %s offset:%d" % (vr(AQ + 4, 4), RED_QK + 1024))
    st(2)
    A("s_waitcnt lgkmcnt(0)\ns_barrier")
    st(3)
    for u in range(4):
        for a in range(2):
            if u > 0:
                A("v_mfma_f32_16x16x32_bf16 %s, %s, %s, %s" % (vr(AV + 4 * a, 4), vr(R + 4 * u, 4), wv(2 * u + 1, a), vr(AV + 4 * a, 4)))
            A("v_mfma_f32_16x16x32_bf16 %s, %s, %s, %s" % (vr(AV + 4 * a, 4), vr(RR + 4 * u, 4), wv(2 * u, a), vr(AV + 4 * a, 4)))
    A("ds_write_b128 v4, %s offset:%d" % (vr(AV, 4), RED_V))
    A("ds_write_b128 v4, %s offset:%d" % (vr(AV + 4, 4), RED_V + 1024))
    st(4)
    A("s_waitcnt lgkmcnt(0)\ns_barrier")
    st(5)
    dump("Q")
    last()
    next_slots(A)
    for i in range(16): A("v_mov_b32 v%d, 0" % (AQ + i))
    A("s_barrier\ns_barrier\ns_barrier")
    A("s_branch CH_Q_LOOP")

    A.label("CH_WO")
    WO = 192
    A("s_lshl_b32 s%d, s%d, 21\ns_sub_u32 s%d, s%d, 4\ns_lshl_b32 s%d, s%d, 19\ns_add_u32 s%d, s%d, s%d" % (S_T3, S_X, S_T0, S_WAVE, S_T0, S_T0, S_T3, S_T3, S_T0))
    A("s_lshl_b32 s%d, s%d, 6\ns_add_u32 s%d, s%d, s%d" % (S_T0, S_C, S_T3, S_T3, S_T0))
    load_weights(A, WO, 1, [(5, 0x800000, 2048, S_T3)], 4)
    wo = lambda kk, a: vr(WO + kk * 8 + a * 4, 4)
    A("s_lshl_b32 s%d, s%d, 14\ns_sub_u32 s%d, s%d, 4\ns_lshl_b32 s%d, s%d, 12\ns_add_u32 s%d, s%d, s%d\ns_add_u32 s%d, s%d, %d" % (S_T0, S_X, S_T1, S_WAVE, S_T1, S_T1, S_T0, S_T0, S_T1, S_T0, S_T0, E_OX))
    A("v_add_u32 v3, s%d, v1" % S_T0)
    A("s_sub_u32 s%d, s%d, 4\ns_lshl_b32 s%d, s%d, 10\nv_add_u32 v4, s%d, v2" % (S_T0, S_WAVE, S_T0, S_T0, S_T0))
    A("v_lshrrev_b32 v6, 4, v0\nv_lshlrev_b32 v6, 7, v6\nv_and_b32 v7, 7, v0\nv_lshl_add_u32 v6, v7, 4, v6")
    A("s_lshl_b32 s%d, s%d, 9\nv_add_u32 v6, s%d, v6" % (S_T0, S_T2, S_T0))
    A("v_bfe_u32 v7, v0, 3, 1\nv_lshl_add_u32 v7, v7, 3, v6")
    A("s_lshl_b32 s%d, s%d, 12\ns_lshl_b32 s%d, s%d, 10\ns_add_u32 s%d, s%d, s%d\ns_add_u32 s%d, s%d, %d" % (S_T0, S_C, S_T1, S_X, S_T0, S_T0, S_T1, S_T0, S_T0, E_PART))
    A("v_add_u32 v8, s%d, v2" % S_T0)
    A("s_mul_i32 s%d, s%d, 1280\ns_add_u32 s%d, s%d, %d\nv_add_u32 v9, s%d, v2" % (S_T0, S_T2, S_T0, S_T0, E_SX, S_T0))
    for i in range(4): A("v_mov_b32 v%d, -1" % (12 + i))
    def resets(soff):
        A("buffer_store_dwordx4 v[12:15], v9, s[8:11], %s offen %s" % (soff, intra))
        A("buffer_store_dwordx4 v[12:15], v8, s[8:11], %s offen sc1" % soff)
        A("buffer_store_dwordx2 v[12:13], v7, s[8:11], %s offen offset:%d %s" % (soff, E_MEM, intra))
        A("s_add_u32 s%d, %s, %d" % (S_T0, soff, E_OX))
        A("buffer_store_dwordx2 v[12:13], v7, s[8:11], s%d offen %s" % (S_T0, intra))
        A("s_mov_b64 exec, 0xffff")
        A("buffer_store_dwordx4 v[12:15], v9, s[8:11], %s offen offset:1024 %s" % (soff, intra))
        A("s_mov_b64 exec, -1")
    R, RR, AO = 16, 32, 48
    def zero_ao():
        for i in range(8): A("v_mov_b32 v%d, 0" % (AO + i))
    def wo_phase(tag):
        if tag != "5": st(0)
        backoff("o", 0)
        def ok(u):
            A("v_mfma_f32_16x16x32_bf16 %s, %s, %s, %s" % (vr(AO, 4), wo(2 * u, 0), vr(R + 4 * u, 4), vr(AO, 4)))
            for i in range(4): A("v_mov_b32_dpp v%d, v%d row_ror:8 row_mask:0xf bank_mask:0xf" % (RR + i, R + 4 * u + i))
            A("v_mfma_f32_16x16x32_bf16 %s, %s, %s, %s" % (vr(AO + 4, 4), wo(2 * u + 1, 1), vr(R + 4 * u, 4), vr(AO + 4, 4)))
            A("v_mfma_f32_16x16x32_bf16 %s, %s, %s, %s" % (vr(AO, 4), wo(2 * u + 1, 0), vr(RR, 4), vr(AO, 4)))
            A("v_mfma_f32_16x16x32_bf16 %s, %s, %s, %s" % (vr(AO + 4, 4), wo(2 * u, 1), vr(RR, 4), vr(AO + 4, 4)))
        rot_poll(A, "CH_OP" + tag, ab, 4, 1,
                 lambda u: A("buffer_load_dwordx4 %s, v3, s[8:11], s%d offen offset:%d sc1" % (vr(R + 4 * u, 4), S_CUR, u * 1024)),
                 lambda u: range(R + 4 * u, R + 4 * u + 4), ok, 5, 10)
        if tag != "5": st(1)
        if tag in "47": cnt()
        for i in range(4):
            A("v_cndmask_b32 v%d, v%d, v%d, s[%d:%d]" % (AO + i, AO + 4 + i, AO + i, S_MLO, S_MLO + 1))
        A("ds_write_b128 v4, %s offset:%d" % (vr(AO, 4), RED_O))
        if tag != "5": st(2)
        A("s_waitcnt lgkmcnt(0)\ns_barrier")
        if tag != "5": st(3)
    def red_o(me):
        o = [w for w in range(4) if w != me]
        for n, w in enumerate(o):
            A("ds_read_b128 %s, v2 offset:%d" % (vr(RR + 4 * n, 4), RED_O + w * 1024))
        A("s_waitcnt lgkmcnt(1)")
        pk_add(A, AO, AO, RR, 4)
        A("s_waitcnt lgkmcnt(0)")
        pk_add(A, RR + 4, RR + 4, RR + 8, 4)
        pk_add(A, AO, AO, RR + 4, 4)
    zero_ao()
    A("s_cmp_eq_u32 s%d, 4\ns_cbranch_scc1 CH_W4" % S_WAVE)
    A("s_cmp_eq_u32 s%d, 5\ns_cbranch_scc1 CH_W5" % S_WAVE)
    A("s_cmp_eq_u32 s%d, 6\ns_cbranch_scc1 CH_W6" % S_WAVE)

    def warm_init(kind):
        if kind == "k":
            A("s_lshl_b32 s%d, s%d, 6\ns_and_b32 s%d, s%d, 1\ns_lshl_b32 s%d, s%d, 17\ns_add_u32 s%d, s%d, s%d\ns_add_u32 s%d, s%d, %d" % (S_T0, S_T2, S_T1, S_C, S_T1, S_T1, S_T0, S_T0, S_T1, S_T0, S_T0, KX + 0x40000))
        else:
            A("s_lshl_b32 s%d, s%d, 17\ns_add_u32 s%d, s%d, %d" % (S_T0, S_T2, S_T0, S_T0, VTX + 64 + (0x10000 if kind == "v1" else 0)))
        A("s_add_u32 s%d, s%d, s%d\ns_addc_u32 s%d, s%d, 0" % (S_PB, ptr(12), S_T0, S_PB + 1, ptr(12) + 1))
    def warm(kind):
        if "nowarm" in OPT: return
        A("s_cmp_eq_u32 s%d, %d\ns_cbranch_scc1 CH_NW%s" % (S_STEP, nstep - 1, kind))
        for r in range(16):
            A("s_load_dword s20, s[%d:%d], 0x%x" % (S_PB, S_PB + 1, r * (8192 if kind == "k" else 4096)))
        A("s_add_u32 s%d, s%d, %d\ns_addc_u32 s%d, s%d, 0" % (S_PB, S_PB, 0x40000 if kind == "k" else 64, S_PB + 1, S_PB + 1))
        A.label("CH_NW" + kind)
    warm_init("k")
    A("s_barrier")
    A.label("CH_W7_LOOP")
    warm("k")
    A("s_barrier")
    resets("s%d" % S_RST)
    A("s_barrier")
    last()
    A("s_barrier")
    wo_phase("7")
    dump("7")
    zero_ao()
    next_slots(A)
    A("s_barrier")
    A("s_branch CH_W7_LOOP")

    A.label("CH_W6")
    for t in range(1, 4):
        A("s_add_u32 s%d, s%d, %d\ns_and_b32 s%d, s%d, 3\ns_lshl_b32 s%d, s%d, 10\ns_lshl_b32 s%d, s%d, 12\ns_add_u32 s%d, s%d, s%d\ns_add_u32 s%d, s%d, %d" % (S_T0, S_X, t, S_T0, S_T0, S_T0, S_T0, S_T1, S_C, S_T0, S_T0, S_T1, S_T0, S_T0, E_PART))
        A("v_add_u32 v%d, s%d, v2" % (59 + t, S_T0))
    warm_init("v1")
    A("s_barrier")
    A.label("CH_W6_LOOP")
    warm("v1")
    A("s_barrier\ns_barrier")
    last()
    A("s_barrier")
    wo_phase("6")
    red_o(2)
    backoff("p", 12)
    st(4)
    rot_poll(A, "CH_PP", ab, 3, 1,
             lambda u: A("buffer_load_dwordx4 %s, v%d, s[8:11], s%d offen sc1" % (vr(R + 4 * u, 4), 60 + u, S_CUR)),
             lambda u: range(R + 4 * u, R + 4 * u + 4), lambda u: pk_add(A, AO, AO, R + 4 * u, 4), 5, 10)
    st(5); cnt()
    A("v_cvt_pk_bf16_f32 v%d, v%d, v%d\nv_cvt_pk_bf16_f32 v%d, v%d, v%d" % (RR, AO, AO + 1, RR + 1, AO + 2, AO + 3))
    A("v_min_u32 v%d, -2, v%d\nv_min_u32 v%d, -2, v%d" % (RR, RR, RR + 1, RR + 1))
    A("buffer_store_dwordx2 %s, v7, s[8:11], s%d offen offset:%d %s" % (vr(RR, 2), S_NXT, E_MEM, intra))
    A("s_barrier")
    st(6)
    dump("6")
    zero_ao()
    next_slots(A)
    A("s_branch CH_W6_LOOP")

    A.label("CH_W4")
    for sl in range(4):
        A("s_mov_b32 s%d, %d" % (S_T1, EXCH + sl * SLOT))
        resets("s%d" % S_T1)
    mk_srd(A, S_W, ptr(1), 16384)
    A("v_and_b32 v10, 7, v0\nv_lshlrev_b32 v10, 11, v10\nv_lshrrev_b32 v11, 4, v0\nv_lshl_add_u32 v10, v11, 4, v10")
    A("s_lshl_b32 s%d, s%d, 6" % (S_T0, S_C))
    A("buffer_load_dwordx4 v[16:19], v10, s[%d:%d], s%d offen" % (S_W, S_W + 3, S_T0))
    A("s_waitcnt vmcnt(0)")
    if ready_wait: ready_wait(A)
    for i in range(4): A("v_min_u32 v%d, -2, v%d" % (16 + i, 16 + i))
    A("s_mov_b64 exec, s[%d:%d]" % (S_MLO, S_MLO + 1))
    A("buffer_store_dwordx4 v[16:19], v6, s[8:11], s%d offen offset:%d %s" % (S_CUR, E_MEM, intra))
    A("s_mov_b64 exec, -1")
    A("s_setprio 2")
    warm_init("v0")
    A("s_barrier")
    A.label("CH_W4_LOOP")
    warm("v0")
    A("s_barrier\ns_barrier")
    last()
    A("s_barrier")
    wo_phase("4")
    red_o(0)
    for i in range(4): A("v_min_u32 v%d, -2, v%d" % (AO + i, AO + i))
    A("buffer_store_dwordx4 %s, v8, s[8:11], s%d offen sc1" % (vr(AO, 4), S_CUR))
    st(4)
    dump("4")
    next_slots(A)
    zero_ao()
    A("s_barrier")
    A("s_branch CH_W4_LOOP")

    A.label("CH_W5")
    KT, VT, X, T01, TM, T1, VM, P, PM, ONE, LA, OA, OS, TMP = 64, 72, 80, 84, 88, 92, 96, 100, 104, 108, 112, 136, 144, 148
    RB = 152
    A("v_bfe_u32 v10, v0, 2, 2\nv_lshlrev_b32 v10, 3, v10\nv_and_b32 v11, 3, v0\nv_add_u32 v10, v10, v11")
    A("v_lshrrev_b32 v11, 4, v0\nv_lshlrev_b32 v11, 4, v11")
    A("v_lshl_add_u32 v56, v10, 13, v11")
    A("v_lshl_add_u32 v57, v10, 12, v11")
    A("v_add_u32 v58, 0x8000, v56\nv_add_u32 v59, 0x4000, v57")
    A("s_lshl_b32 s%d, s%d, 6\ns_add_u32 s%d, s%d, %d" % (S_KOFF, S_T2, S_KOFF, S_KOFF, KX))
    A("s_lshl_b32 s%d, s%d, 17\ns_add_u32 s%d, s%d, %d" % (S_VOFF, S_T2, S_VOFF, S_VOFF, VTX))
    A("s_lshl_b32 s%d, s%d, 6\ns_add_u32 s%d, s%d, %d" % (S_KMOFF, S_T2, S_KMOFF, S_KMOFF, KM))
    A("s_lshl_b32 s%d, s%d, 9\ns_add_u32 s%d, s%d, %d" % (S_VMOFF, S_T2, S_VMOFF, S_VMOFF, VMT))
    A("v_and_b32 v60, 7, v0\nv_lshl_add_u32 v60, v60, 13, v11")
    A("v_lshlrev_b32 v61, 4, v10\nv_bfe_u32 v62, v0, 4, 1\nv_lshl_add_u32 v61, v62, 3, v61")
    A("v_bfe_u32 v62, v0, 4, 1\nv_lshlrev_b32 v62, 7, v62\nv_and_b32 v63, 7, v0\nv_lshl_add_u32 v62, v63, 4, v62\nv_add_u32 v62, 0x400, v62")
    A("s_mul_i32 s%d, s%d, 1280\ns_add_u32 s%d, s%d, %d\nv_add_u32 v63, s%d, v62" % (S_T0, S_T2, S_T0, S_T0, E_SX, S_T0))
    for t in range(1, 4):
        A("s_add_u32 s%d, s%d, %d\ns_and_b32 s%d, s%d, 3\ns_and_b32 s%d, s%d, 0xfc\ns_add_u32 s%d, s%d, s%d\ns_mul_i32 s%d, s%d, 1280\ns_add_u32 s%d, s%d, %d" % (S_T0, S_T2, t, S_T0, S_T0, S_T1, S_T2, S_T0, S_T0, S_T1, S_T0, S_T0, S_T0, S_T0, E_SX))
        A("v_add_u32 v%d, s%d, v2\nv_add_u32 v%d, s%d, v62" % (183 + t, S_T0, 186 + t, S_T0))
    A("s_mov_b32 s%d, 0x%x" % (S_SC, f32bits(128 ** -0.5 * math.log2(math.e))))
    for i in range(4): A("v_mov_b32 v%d, 0x3f803f80" % (ONE + i))
    for i in range(2): A("v_mov_b32 v%d, 0" % (PM + i))
    for i in range(24): A("v_mov_b32 v%d, 0" % (LA + i))
    def prefetch():
        A("buffer_load_dwordx4 %s, v56, s[8:11], s%d offen sc1" % (vr(KT, 4), S_KOFF))
        A("buffer_load_dwordx4 %s, v58, s[8:11], s%d offen sc1" % (vr(KT + 4, 4), S_KOFF))
        A("buffer_load_dwordx4 %s, v57, s[8:11], s%d offen sc1" % (vr(VT, 4), S_VOFF))
        A("buffer_load_dwordx4 %s, v59, s[8:11], s%d offen sc1" % (vr(VT + 4, 4), S_VOFF))
        A("s_add_u32 s%d, s%d, 0x40000\ns_add_u32 s%d, s%d, 64" % (S_KOFF, S_KOFF, S_VOFF, S_VOFF))
    def red8(base, dst):
        for w in range(4):
            for a in range(2):
                A("ds_read_b128 %s, v2 offset:%d" % (vr(RB + w * 8 + a * 4, 4), base + w * 2048 + a * 1024))
    def sum8(dst):
        A("s_waitcnt lgkmcnt(4)")
        pk_add(A, RB, RB, RB + 8, 8)
        A("s_waitcnt lgkmcnt(2)")
        pk_add(A, RB, RB, RB + 16, 8)
        A("s_waitcnt lgkmcnt(0)")
        pk_add(A, RB, RB, RB + 24, 8)
        for i in range(4): A("v_cvt_pk_bf16_f32 v%d, v%d, v%d" % (dst + i, RB + 2 * i, RB + 2 * i + 1))
    prefetch()
    A("s_setprio 2")
    A("s_barrier")
    A.label("CH_W5_LOOP")
    A("s_waitcnt vmcnt(0)")
    A("s_barrier")
    st(0)
    red8(RED_QK, X); sum8(X)
    A("v_mfma_f32_16x16x32_bf16 %s, %s, %s, 0" % (vr(T1, 4), vr(KT + 4, 4), vr(X, 4)))
    A("v_mfma_f32_16x16x32_bf16 %s, %s, %s, 0" % (vr(T01, 4), vr(KT, 4), vr(X, 4)))
    A("v_mfma_f32_16x16x32_bf16 %s, %s, %s, 0" % (vr(TM, 4), vr(X, 4), vr(X, 4)))
    for i in range(4): A("v_mov_b32_dpp v%d, v%d row_ror:8 row_mask:0xf bank_mask:0xc" % (T01 + i, T1 + i))
    for i in range(4): A("v_min_u32 v%d, -2, v%d" % (T01 + i, T01 + i))
    A("buffer_store_dwordx4 %s, v9, s[8:11], s%d offen %s" % (vr(T01, 4), S_CUR, intra))
    for i in range(4): A("v_min_u32 v%d, -2, v%d" % (TM + i, TM + i))
    A("s_mov_b64 exec, s[%d:%d]" % (S_MM, S_MM + 1))
    A("buffer_store_dwordx4 %s, v63, s[8:11], s%d offen %s" % (vr(TM, 4), S_CUR, intra))
    A("s_mov_b64 exec, -1")
    st(1)
    A("s_barrier")
    st(2)
    def vm_store():
        A("s_not_b64 exec, s[%d:%d]" % (S_MLO, S_MLO + 1))
        A("buffer_store_dwordx4 %s, v60, s[8:11], s%d offen" % (vr(X, 4), S_KMOFF))
        A("s_mov_b64 exec, s[%d:%d]" % (S_G2, S_G2 + 1))
        A("buffer_store_dwordx2 %s, v61, s[8:11], s%d offen" % (vr(VM, 2), S_VMOFF))
        A("buffer_store_dwordx2 %s, v61, s[8:11], s%d offen offset:64" % (vr(VM + 2, 2), S_VMOFF))
        A("s_mov_b64 exec, -1")
        A("s_add_u32 s%d, s%d, 0x10000\ns_add_u32 s%d, s%d, 0x10000" % (S_KMOFF, S_KMOFF, S_VMOFF, S_VMOFF))
    red8(RED_V, VM)
    A("s_cmp_lg_u32 s%d, %d\ns_cbranch_scc1 CH_W5_GO" % (S_STEP, nstep - 1))
    sum8(VM)
    vm_store()
    A("s_waitcnt vmcnt(0)\ns_branch %s" % done)
    A.label("CH_W5_GO")
    def sx_issue(t):
        A("buffer_load_dwordx4 %s, v%d, s[8:11], s%d offen sc1" % (vr(LA + 8 * t, 4), 184 + t, S_CUR))
        A("s_mov_b64 exec, s[%d:%d]" % (S_MM, S_MM + 1))
        A("buffer_load_dwordx4 %s, v%d, s[8:11], s%d offen sc1" % (vr(LA + 8 * t + 4, 4), 187 + t, S_CUR))
        A("s_mov_b64 exec, -1")
    def btw():
        sum8(VM); st(3)
    if "sxlate" in OPT: btw()
    rot_poll(A, "CH_SP", ab, 3, 2, sx_issue, lambda t: range(LA + 8 * t, LA + 8 * t + 8),
             lambda t: pk_add(A, T01, T01, LA + 8 * t, 8), 5, 10, between=None if "sxlate" in OPT else btw)
    st(4); cnt()
    A("v_max3_f32 v%d, v%d, v%d, v%d\nv_max_f32 v%d, v%d, v%d" % (TMP, T01, T01 + 1, T01 + 2, TMP, TMP, T01 + 3))
    A("s_mov_b64 exec, s[%d:%d]" % (S_MM, S_MM + 1))
    A("v_max3_f32 v%d, v%d, v%d, v%d\nv_max3_f32 v%d, v%d, v%d, v%d" % (TMP, TMP, TM, TM + 1, TMP, TMP, TM + 2, TM + 3))
    A("s_mov_b64 exec, -1")
    A("v_max_f32_dpp v%d, v%d, v%d row_ror:8 row_mask:0xf bank_mask:0xf" % (TMP, TMP, TMP))
    A("v_mov_b32 v%d, v%d\nv_permlane16_swap_b32 v%d, v%d\nv_max_f32 v%d, v%d, v%d" % (TMP + 1, TMP, TMP, TMP + 1, TMP, TMP, TMP + 1))
    A("v_mov_b32 v%d, v%d\nv_permlane32_swap_b32 v%d, v%d\nv_max_f32 v%d, v%d, v%d" % (TMP + 1, TMP, TMP, TMP + 1, TMP, TMP, TMP + 1))
    A("v_mul_f32 v%d, s%d, v%d" % (TMP, S_SC, TMP))
    for i in range(4): A("v_fma_f32 v%d, v%d, s%d, -v%d" % (TM + i, TM + i, S_SC, TMP))
    for i in range(4): A("v_fma_f32 v%d, v%d, s%d, -v%d" % (T01 + i, T01 + i, S_SC, TMP))
    for i in range(4): A("v_exp_f32 v%d, v%d" % (TM + i, TM + i))
    for i in range(2): A("v_exp_f32 v%d, v%d" % (T01 + i, T01 + i))
    A("s_mov_b64 exec, s[%d:%d]" % (S_MM, S_MM + 1))
    A("v_cvt_pk_bf16_f32 v%d, v%d, v%d\nv_cvt_pk_bf16_f32 v%d, v%d, v%d" % (PM, TM, TM + 1, PM + 1, TM + 2, TM + 3))
    A("s_mov_b64 exec, -1")
    for i in range(2, 4): A("v_exp_f32 v%d, v%d" % (T01 + i, T01 + i))
    A("v_mfma_f32_16x16x16_bf16 %s, %s, %s, 0" % (vr(OS, 4), vr(ONE, 2), vr(PM, 2)))
    A("v_cvt_pk_bf16_f32 v%d, v%d, v%d\nv_cvt_pk_bf16_f32 v%d, v%d, v%d" % (P, T01, T01 + 1, P + 1, T01 + 2, T01 + 3))
    A("v_mfma_f32_16x16x16_bf16 %s, %s, %s, 0" % (vr(OA, 4), vr(VM, 2), vr(PM, 2)))
    A("v_mfma_f32_16x16x16_bf16 %s, %s, %s, 0" % (vr(OA + 4, 4), vr(VM + 2, 2), vr(PM, 2)))
    A("v_mov_b32_dpp v%d, v%d row_ror:8 row_mask:0xf bank_mask:0xf\nv_mov_b32_dpp v%d, v%d row_ror:8 row_mask:0xf bank_mask:0xf" % (P + 2, P, P + 3, P + 1))
    A("v_mfma_f32_16x16x32_bf16 %s, %s, %s, %s" % (vr(OS, 4), vr(ONE, 4), vr(P, 4), vr(OS, 4)))
    A("v_mfma_f32_16x16x32_bf16 %s, %s, %s, %s" % (vr(OA, 4), vr(VT, 4), vr(P, 4), vr(OA, 4)))
    A("v_mfma_f32_16x16x32_bf16 %s, %s, %s, %s" % (vr(OA + 4, 4), vr(VT + 4, 4), vr(P, 4), vr(OA + 4, 4)))
    A("s_add_u32 s%d, s%d, %d" % (S_T0, S_CUR, E_OX))
    A("v_rcp_f32 v%d, v%d" % (TMP, OS))
    for i in range(0, 8, 2): A("v_pk_mul_f32 %s, %s, %s op_sel_hi:[1,0]" % (vr(OA + i, 2), vr(OA + i, 2), vr(TMP, 2)))
    for i in range(4): A("v_cvt_pk_bf16_f32 v%d, v%d, v%d" % (T1 + i, OA + 2 * i, OA + 2 * i + 1))
    for i in range(4): A("v_min_u32 v%d, -2, v%d" % (T1 + i, T1 + i))
    A("s_mov_b64 exec, s[%d:%d]" % (S_MLO, S_MLO + 1))
    A("buffer_store_dwordx4 %s, v6, s[8:11], s%d offen %s" % (vr(T1, 4), S_T0, intra))
    A("s_mov_b64 exec, -1")
    st(5)
    A("s_barrier")
    wo_phase("5")
    st(6)
    if "novm" not in OPT: vm_store()
    if "nopf" not in OPT: prefetch()
    dump("5")
    zero_ao()
    next_slots(A)
    A("s_barrier")
    A("s_branch CH_W5_LOOP")
```

```python
from asmlib import *

G_SA, G_SW, G_SC = 12, 16, 20
G_AOFF, G_WOFF, G_COFF = 24, 25, 26
G_LDA, G_LDW, G_LDC = 27, 28, 29
G_NK = 30
G_WAVE = 34
G_T0, G_T1, G_RA, G_RW, G_WA, G_WW, G_CNT, G_WSTEP, G_MA, G_MW = 45, 46, 47, 48, 49, 50, 51, 52, 53, 54

TM, TN, BK = 256, 128, 64
A_SLOT, W_SLOT = TM * BK * 2, BK * TN * 2
W_BASE = 3 * A_SLOT
GEMM_LDS = 3 * (A_SLOT + W_SLOT)

def emit_gemm(A, tag, mode, store_flags=""):
    ACC = 64; F = [128, 160]
    VA = 2
    VW = 6
    BA = 8
    BW = 10
    CA = 14
    CW = 16
    T = 20
    A("v_lshrrev_b32 v%d, 3, v0" % T)
    A("s_lshl_b32 s%d, s%d, 5" % (G_T0, G_WAVE))
    for j in range(4):
        A("v_add_u32 v%d, %d, v%d" % (T + 1, 8 * j, T))
        A("v_bfe_u32 v%d, v%d, 1, 3" % (T + 2, T + 1))
        A("v_and_b32 v%d, 7, v0\nv_xor_b32 v%d, v%d, v%d" % (T + 3, T + 2, T + 2, T + 3))
        A("v_add_u32 v%d, s%d, v%d" % (T + 1, G_T0, T + 1))
        A("v_mul_lo_u32 v%d, v%d, s%d" % (T + 1, T + 1, G_LDA))
        A("v_lshl_add_u32 v%d, v%d, 4, v%d" % (VA + j, T + 2, T + 1))
        if j: A("v_subrev_u32 v%d, %d, v%d" % (VA + j, 1024 * j, VA + j))
    A("s_and_b32 s%d, s%d, 1\ns_lshl_b32 s%d, s%d, 2" % (G_T0, G_WAVE, G_T0, G_T0))
    A("v_lshrrev_b32 v%d, 4, v0\nv_or_b32 v%d, s%d, v%d" % (T, T + 1, G_T0, T))
    A("v_bfe_u32 v%d, v0, 1, 3\nv_xor_b32 v%d, v%d, v%d" % (T + 2, T + 2, T + 2, T + 1))
    A("v_and_b32 v%d, 1, v0\nv_lshl_or_b32 v%d, v%d, 1, v%d" % (T + 3, T + 2, T + 2, T + 3))
    A("s_lshl_b32 s%d, s%d, 3" % (G_T0, G_WAVE))
    for j in range(2):
        A("v_add_u32 v%d, s%d, v%d" % (T + 1, G_T0, T))
        if j: A("v_add_u32 v%d, 4, v%d" % (T + 1, T + 1))
        A("v_mul_lo_u32 v%d, v%d, s%d" % (T + 1, T + 1, G_LDW))
        A("v_lshl_add_u32 v%d, v%d, 4, v%d" % (VW + j, T + 2, T + 1))
        if j: A("v_subrev_u32 v%d, 1024, v%d" % (VW + j, VW + j))
    A("s_lshl_b32 s%d, s%d, 6" % (G_WSTEP, G_LDW))
    A("s_lshl_b32 s%d, s%d, 12" % (G_MA, G_WAVE))
    A("s_lshl_b32 s%d, s%d, 11\ns_add_u32 s%d, s%d, %d" % (G_MW, G_WAVE, G_MW, G_MW, W_BASE))
    A("s_mov_b32 s%d, 0\ns_mov_b32 s%d, 0" % (G_WA, G_WW))
    def dma():
        A("s_add_u32 m0, s%d, s%d" % (G_MA, G_WA))
        for j in range(4):
            A("buffer_load_dwordx4 v%d, s[%d:%d], s%d offen offset:%d lds" % (VA + j, G_SA, G_SA + 3, G_AOFF, 1024 * j))
        A("s_add_u32 m0, s%d, s%d" % (G_MW, G_WW))
        for j in range(2):
            A("buffer_load_dwordx4 v%d, s[%d:%d], s%d offen offset:%d lds" % (VW + j, G_SW, G_SW + 3, G_WOFF, 1024 * j))
        A("s_add_u32 s%d, s%d, 128\ns_add_u32 s%d, s%d, s%d" % (G_AOFF, G_AOFF, G_WOFF, G_WOFF, G_WSTEP))
        A("s_add_u32 s%d, s%d, %d\ns_add_u32 s%d, s%d, %d" % (G_WA, G_WA, A_SLOT, G_WW, G_WW, W_SLOT))
        A("s_cmp_eq_u32 s%d, %d\ns_cselect_b32 s%d, 0, s%d\ns_cselect_b32 s%d, 0, s%d" % (G_WA, 3 * A_SLOT, G_WA, G_WA, G_WW, G_WW))
    for i in range(3): dma()
    A("v_and_b32 v%d, 15, v0\nv_lshrrev_b32 v%d, 4, v0" % (T, T + 1))
    A("v_bfe_u32 v%d, v0, 1, 3\nv_xor_b32 v%d, v%d, v%d" % (T + 2, T + 2, T + 2, T + 1))
    A("v_lshlrev_b32 v%d, 7, v%d\nv_lshl_add_u32 v%d, v%d, 4, v%d" % (T, T, BA, T + 2, T))
    A("s_lshr_b32 s%d, s%d, 1\ns_lshl_b32 s%d, s%d, 13" % (G_T0, G_WAVE, G_T0, G_T0))
    A("v_add_u32 v%d, s%d, v%d\nv_xor_b32 v%d, 64, v%d" % (BA, G_T0, BA, BA + 1, BA))
    A("v_bfe_u32 v%d, v0, 2, 2" % T)
    A("v_lshl_add_u32 v%d, v%d, 3, v%d\nv_lshlrev_b32 v%d, 8, v%d" % (T + 2, T + 1, T, T + 2, T + 2))
    A("v_and_b32 v%d, 3, v0\nv_lshl_add_u32 v%d, v%d, 3, v%d" % (T + 3, T + 2, T + 3, T + 2))
    A("v_add_u32 v%d, %d, v%d" % (T + 2, W_BASE, T + 2))
    A("v_bfe_u32 v%d, v0, 4, 1\nv_lshl_or_b32 v%d, v%d, 2, v%d" % (T + 3, T, T + 3, T))
    A("s_and_b32 s%d, s%d, 1\ns_lshl_b32 s%d, s%d, 2" % (G_T0, G_WAVE, G_T0, G_T0))
    for t in range(4):
        A("s_or_b32 s%d, s%d, %d" % (G_T1, G_T0, t))
        A("v_xor_b32 v%d, s%d, v%d\nv_lshl_add_u32 v%d, v%d, 5, v%d" % (T + 3, G_T1, T, BW + t, T + 3, T + 2))
    for i in range(64): A("v_mov_b32 v%d, 0" % (ACC + i))
    A("s_mov_b32 s%d, 0\ns_mov_b32 s%d, 0" % (G_RA, G_RW))
    def set_addr():
        for i in range(2): A("v_add_u32 v%d, s%d, v%d" % (CA + i, G_RA, BA + i))
        for t in range(4): A("v_add_u32 v%d, s%d, v%d" % (CW + t, G_RW, BW + t))
        A("s_add_u32 s%d, s%d, %d\ns_add_u32 s%d, s%d, %d" % (G_RA, G_RA, A_SLOT, G_RW, G_RW, W_SLOT))
        A("s_cmp_eq_u32 s%d, %d\ns_cselect_b32 s%d, 0, s%d\ns_cselect_b32 s%d, 0, s%d" % (G_RA, 3 * A_SLOT, G_RA, G_RA, G_RW, G_RW))
    def reads(f, ks):
        L = []
        for m in range(4):
            L.append("ds_read_b128 %s, v%d offset:%d" % (vr(F[f] + 4 * m, 4), CA + ks, 2048 * m))
            for hf in range(2):
                L.append("ds_read_b64_tr_b16 %s, v%d offset:%d" % (vr(F[f] + 16 + 4 * m + 2 * hf, 2), CW + m, (32 * ks + 4 * hf) * 256))
        return L
    def mfmas(f):
        L = []
        for m in range(4):
            for n in range(4):
                a, b = vr(F[f] + 4 * m, 4), vr(F[f] + 16 + 4 * n, 4)
                acc = vr(ACC + 16 * m + 4 * n, 4)
                if mode == "row": a, b = b, a
                L.append("v_mfma_f32_16x16x32_bf16 %s, %s, %s, %s" % (acc, a, b, acc))
        return L
    def inter(ms, others, lead=0):
        o = list(others)
        for i, m in enumerate(ms):
            A(m)
            if i >= lead and o: A(o.pop(0))
        for x in o: A(x)
    A("s_waitcnt vmcnt(12)\ns_barrier")
    set_addr()
    for r in reads(0, 0): A(r)
    def step(do_dma, vm, more):
        A("s_waitcnt lgkmcnt(0)")
        inter(mfmas(0), reads(1, 1))
        if more:
            A("s_waitcnt vmcnt(%d) lgkmcnt(0)\ns_barrier" % vm)
            set_addr()
            ms = mfmas(1)
            rd = reads(0, 0)
            inter(ms[:12], rd)
            if do_dma: dma()
            inter(ms[12:], [])
        else:
            A("s_waitcnt lgkmcnt(0)")
            inter(mfmas(1), [])
    A("s_sub_u32 s%d, s%d, 3" % (G_CNT, G_NK))
    A("s_cmp_eq_u32 s%d, 0\ns_cbranch_scc1 G%s_TAIL" % (G_CNT, tag))
    A.label("G%s_LOOP" % tag)
    step(True, 6, True)
    A("s_sub_u32 s%d, s%d, 1\ns_cmp_lg_u32 s%d, 0\ns_cbranch_scc1 G%s_LOOP" % (G_CNT, G_CNT, G_CNT, tag))
    A.label("G%s_TAIL" % tag)
    step(False, 6, True)
    step(False, 0, True)
    step(False, 0, False)
    A("v_and_b32 v%d, 15, v0\nv_bfe_u32 v%d, v0, 4, 1\nv_lshrrev_b32 v%d, 5, v0" % (T, T + 1, T + 2))
    A("v_lshlrev_b32 v%d, 5, v%d\nv_lshl_add_u32 v%d, v%d, 4, v%d" % (T + 1, T + 1, T + 1, T + 2, T + 1))
    A("s_lshr_b32 s%d, s%d, 1\ns_and_b32 s%d, s%d, 1" % (G_T0, G_WAVE, G_T1, G_WAVE))
    rowsel, colsel = (G_T0, G_T1) if mode == "row" else (G_T1, G_T0)
    A("s_lshl_b32 s%d, s%d, 6\nv_add_u32 v%d, s%d, v%d" % (rowsel, rowsel, T, rowsel, T))
    A("v_mul_lo_u32 v%d, v%d, s%d" % (T, T, G_LDC))
    A("s_lshl_b32 s%d, s%d, 7\nv_add3_u32 v%d, v%d, v%d, s%d" % (colsel, colsel, T, T, T + 1, colsel))
    A("s_lshl_b32 s%d, s%d, 4" % (G_T0, G_LDC))
    P = 128
    n = 0
    for o in range(4):
        for p in range(2):
            if mode == "row": t0, t1 = ACC + 16 * o + 8 * p, ACC + 16 * o + 8 * p + 4
            else: t0, t1 = ACC + 16 * (2 * p) + 4 * o, ACC + 16 * (2 * p + 1) + 4 * o
            d = P + 4 * n; n += 1
            A("v_cvt_pk_bf16_f32 v%d, v%d, v%d\nv_cvt_pk_bf16_f32 v%d, v%d, v%d" % (d, t0, t0 + 1, d + 1, t0 + 2, t0 + 3))
            A("v_cvt_pk_bf16_f32 v%d, v%d, v%d\nv_cvt_pk_bf16_f32 v%d, v%d, v%d" % (d + 2, t1, t1 + 1, d + 3, t1 + 2, t1 + 3))
    n = 0
    for o in range(4):
        for p in range(2):
            d = P + 4 * n; n += 1
            A("v_permlane16_swap_b32 v%d, v%d\nv_permlane16_swap_b32 v%d, v%d" % (d, d + 2, d + 1, d + 3))
            A("buffer_store_dwordx4 %s, v%d, s[%d:%d], s%d offen offset:%d %s" % (vr(d, 4), T, G_SC, G_SC + 3, G_COFF, 64 * p, store_flags))
        if o < 3: A("s_add_u32 s%d, s%d, s%d" % (G_COFF, G_COFF, G_T0))
```

```python
KX   = 0x0000000
VTX  = 0x1000000
QX   = 0x2000000
OXA  = 0x3000000
KM   = 0x4000000
VMT  = 0x4400000
BQK  = 0x4800000
BVT  = 0x5000000
BO   = 0x5400000
EXCH = 0x5800000
SLOT = 0x80000
E_MEM = 0
E_OX  = 0x10000
E_PART = 0x20000
E_SX  = 0x40000
WS_BYTES = 0x10000000
```

```python
import sys
from asmlib import *
from layout import *
from chain import *
from gemm import *
from attn import *

HDR = open("concat_heads__memory_aug_recurrent_mem_tr__mha_block__prompt.s.ref").read().split("; Override launch geometry")[0] if len(sys.argv) > 2 else ""
A = Asm()
if HDR: A.raw(HDR.rstrip("\n"))
NJ1 = 8 * 120
A.raw("; @launch kernel=proj_kernel grid=(%d,1,1) block=(512,1,1) lds=%d" % (NJ1, GEMM_LDS))
A.raw("; @launch kernel=chain_kernel grid=(256,1,1) block=(512,1,1) lds=%d" % B2_LDS)
A.raw("; @launch kernel=xattn_kernel grid=(256,1,1) block=(512,1,1) lds=0")
A.raw("; @launch kernel=outp_kernel grid=(128,1,1) block=(512,1,1) lds=%d" % GEMM_LDS)
A.raw('.amdgcn_target "amdgcn-amd-amdhsa--gfx950"\n.text')
LOADP = "s_load_dwordx16 s[60:75], s[0:1], 0\ns_load_dwordx8 s[76:83], s[0:1], 64\ns_load_dwordx2 s[84:85], s[0:1], 96"

A.raw(kernel_header("proj_kernel"))
A("s_cmp_ge_u32 s2, %d\ns_cbranch_scc1 P_DONE" % NJ1)
A(LOADP)
A("v_lshrrev_b32 v1, 6, v0\nv_and_b32 v0, 63, v0\nv_readfirstlane_b32 s%d, v1" % G_WAVE)
A("s_and_b32 s40, s2, 7\ns_lshr_b32 s41, s2, 3")
A("s_waitcnt lgkmcnt(0)")
mk_srd(A, G_SC, ptr(12), WS_BYTES)
A("s_mov_b32 s%d, 2048\ns_mov_b32 s%d, 16\ns_lshl_b32 s%d, s40, 19" % (G_LDA, G_NK, G_AOFF))
A("s_cmp_ge_u32 s41, 96\ns_cbranch_scc1 J_B")
mk_srd(A, G_SA, ptr(0), 0x400000)
A("s_mov_b32 s%d, 8192\ns_and_b32 s42, s41, 31\ns_lshl_b32 s%d, s42, 8" % (G_LDW, G_WOFF))
A("s_cmp_ge_u32 s41, 64\ns_cbranch_scc1 J_V")
A("s_cmp_ge_u32 s41, 32\ns_cselect_b32 s44, s%d, s%d\ns_cselect_b32 s45, s%d, s%d\ns_cselect_b32 s43, %d, %d" % (ptr(3), ptr(2), ptr(3) + 1, ptr(2) + 1, KX, QX))
mk_srd(A, G_SW, 44, 0x800000)
A("s_mov_b32 s%d, 8192\ns_lshl_b32 s%d, s40, 21\ns_add_u32 s%d, s%d, s43\ns_add_u32 s%d, s%d, s%d" % (G_LDC, G_COFF, G_COFF, G_COFF, G_COFF, G_COFF, G_WOFF))
A("s_branch J_ROW")
A.label("J_V")
mk_srd(A, G_SW, ptr(4), 0x800000)
A("s_mov_b32 s%d, 4096\ns_lshl_b32 s%d, s42, 19\ns_lshl_b32 s43, s40, 9\ns_add_u32 s%d, s%d, s43\ns_add_u32 s%d, s%d, %d" % (G_LDC, G_COFF, G_COFF, G_COFF, G_COFF, G_COFF, VTX))
A("s_branch J_TR")
A.label("J_B")
mk_srd(A, G_SA, ptr(7), 0x400000)
mk_srd(A, G_SW, ptr(8), 0x600000)
A("s_mov_b32 s%d, 6144\ns_sub_u32 s42, s41, 96\ns_lshl_b32 s%d, s42, 8\ns_mov_b32 s%d, 4096" % (G_LDW, G_WOFF, G_LDC))
A("s_cmp_ge_u32 s42, 16\ns_cbranch_scc1 J_BV")
A("s_lshl_b32 s%d, s40, 20\ns_add_u32 s%d, s%d, s%d\ns_add_u32 s%d, s%d, %d" % (G_COFF, G_COFF, G_COFF, G_WOFF, G_COFF, G_COFF, BQK))
A("s_branch J_ROW")
A.label("J_BV")
A("s_sub_u32 s42, s42, 16\ns_lshl_b32 s%d, s42, 19\ns_lshl_b32 s43, s40, 9\ns_add_u32 s%d, s%d, s43\ns_add_u32 s%d, s%d, %d" % (G_COFF, G_COFF, G_COFF, G_COFF, G_COFF, BVT))
A.label("J_TR")
emit_gemm(A, "T", "tr")
A("s_endpgm")
A.label("J_ROW")
emit_gemm(A, "R", "row")
A.label("P_DONE")
A("s_endpgm")

A.raw(kernel_header("chain_kernel"))
A("s_cmp_ge_u32 s2, 256\ns_cbranch_scc1 C_DONE")
A(LOADP)
A("s_waitcnt lgkmcnt(0)")
mk_srd(A, S_WS, ptr(12), WS_BYTES)
mk_srd(A, 16, ptr(11), 256)
A("v_cmp_gt_u32 vcc, 64, v0\ns_cbranch_vccz R_WAIT")
A("s_getreg_b32 s40, hwreg(HW_REG_XCC_ID)\ns_and_b32 s40, s40, 7\ns_lshl_b32 s41, s40, 2")
A("v_mov_b32 v2, s41\nv_mov_b32 v3, 1\nv_lshlrev_b32 v4, 2, v0")
A("s_mov_b64 exec, 1")
A("buffer_atomic_add v3, v2, s[16:19], 0 offen sc0\ns_waitcnt vmcnt(0)")
A("v_readfirstlane_b32 s42, v3")
A("s_mov_b64 exec, 0xff")
poll_head(A, "R_POLL", "C_DONE")
A("buffer_load_dword v5, v4, s[16:19], 0 offen sc1\ns_waitcnt vmcnt(0)")
A("s_mov_b32 s50, 0\ns_mov_b32 s51, 0\ns_mov_b32 s52, 0")
for x in range(8):
    A("v_readlane_b32 s53, v5, %d" % x)
    A("s_add_u32 s50, s50, s53\ns_cmp_lg_u32 s53, 32\ns_cselect_b32 s52, 1, s52")
    A("s_cmp_gt_u32 s40, %d\ns_cselect_b32 s53, s53, 0\ns_add_u32 s51, s51, s53" % x)
A("s_cmp_lg_u32 s50, 256\ns_cbranch_scc1 R_POLL")
A("s_add_u32 s51, s51, s42\ns_lshl_b32 s52, s52, 8\ns_or_b32 s51, s51, s52")
A("v_mov_b32 v2, 0\nv_mov_b32 v3, s51\nds_write_b32 v2, v3\ns_mov_b64 exec, -1\ns_waitcnt lgkmcnt(0)")
A.label("R_WAIT")
A("s_barrier")
A("v_mov_b32 v2, 0\nds_read_b32 v3, v2\ns_waitcnt lgkmcnt(0)\nv_readfirstlane_b32 s51, v3\ns_barrier")
A("s_bfe_u32 s%d, s51, 0x30005\ns_and_b32 s%d, s51, 31" % (S_X, S_C))
A("s_cmp_ge_u32 s%d, 4\ns_cbranch_scc1 C_BULK" % S_X)
def ready(A):
    A("v_mov_b32 v24, 64\nv_mov_b32 v25, 1")
    A("s_mov_b64 exec, 1")
    A("buffer_atomic_add v25, v24, s[16:19], 0 offen")
    poll_head(A, "CH_RDY", "C_DONE")
    A("buffer_load_dword v25, v24, s[16:19], 0 offen sc1\ns_waitcnt vmcnt(0)")
    A("v_cmp_ne_u32 vcc, 128, v25\ns_cbranch_vccnz CH_RDY")
    A("s_mov_b64 exec, -1")
A("s_bitcmp1_b32 s51, 8\ns_cbranch_scc1 C_SLOW")
emit_chain(A, "C_DONE", intra="", ready_wait=ready, pfx="CF_")
A.label("C_SLOW")
emit_chain(A, "C_DONE", intra="sc1", ready_wait=ready, pfx="CS_")
A.label("C_BULK")
A("v_lshrrev_b32 v1, 6, v0\nv_and_b32 v0, 63, v0\nv_readfirstlane_b32 s34, v1")
A("s_sub_u32 s36, s%d, 4\ns_lshl_b32 s36, s36, 3\ns_and_b32 s37, s%d, 7\ns_add_u32 s36, s36, s37\ns_lshr_b32 s37, s%d, 3" % (S_X, S_C, S_C))
A.label("C_B2L")
emit_b2(A, "", 36, 37, 34)
A("s_barrier")
A("s_add_u32 s37, s37, 4\ns_cmp_lt_u32 s37, 8\ns_cbranch_scc1 C_B2L")
A.label("C_DONE")
A("s_endpgm")

A.raw(kernel_header("xattn_kernel"))
A("s_cmp_ge_u32 s2, 256\ns_cbranch_scc1 X_DONE")
A(LOADP)
A("v_lshrrev_b32 v1, 6, v0\nv_and_b32 v0, 63, v0\nv_readfirstlane_b32 s34, v1")
A("s_lshr_b32 s36, s2, 2\ns_and_b32 s37, s2, 3\ns_lshl_b32 s37, s37, 3\ns_add_u32 s37, s37, s34")
A("s_waitcnt lgkmcnt(0)")
mk_srd(A, S_WS, ptr(12), WS_BYTES)
emit_a2(A, "", 36, 37)
A.label("X_DONE")
A("s_endpgm")

A.raw(kernel_header("outp_kernel"))
A("s_cmp_ge_u32 s2, 128\ns_cbranch_scc1 O_DONE")
A(LOADP)
A("v_lshrrev_b32 v1, 6, v0\nv_and_b32 v0, 63, v0\nv_readfirstlane_b32 s%d, v1" % G_WAVE)
A("s_and_b32 s40, s2, 7\ns_bfe_u32 s41, s2, 0x30003")
A("s_waitcnt lgkmcnt(0)")
mk_srd(A, G_SC, ptr(10), 0x800000)
mk_srd(A, G_SA, ptr(12), WS_BYTES)
A("s_mov_b32 s%d, 2048\ns_mov_b32 s%d, 4096\ns_lshl_b32 s%d, s41, 8" % (G_LDW, G_LDC, G_WOFF))
A("s_lshl_b32 s%d, s40, 20\ns_add_u32 s%d, s%d, s%d" % (G_COFF, G_COFF, G_COFF, G_WOFF))
A("s_cmp_ge_u32 s2, 64\ns_cbranch_scc1 O_B")
mk_srd(A, G_SW, ptr(5), 0x800000)
A("s_mov_b32 s%d, 8192\ns_mov_b32 s%d, 64\ns_lshl_b32 s%d, s40, 21\ns_add_u32 s%d, s%d, %d" % (G_LDA, G_NK, G_AOFF, G_AOFF, G_AOFF, OXA))
A("s_branch O_GO")
A.label("O_B")
mk_srd(A, G_SW, ptr(9), 0x200000)
A("s_mov_b32 s%d, 2048\ns_mov_b32 s%d, 16\ns_lshl_b32 s%d, s40, 19\ns_add_u32 s%d, s%d, %d\ns_add_u32 s%d, s%d, 2048" % (G_LDA, G_NK, G_AOFF, G_AOFF, G_AOFF, BO, G_COFF, G_COFF))
A.label("O_GO")
emit_gemm(A, "O", "row")
A.label("O_DONE")
A("s_endpgm")
for k in ("proj_kernel", "chain_kernel", "xattn_kernel", "outp_kernel"):
    A.raw(kernel_desc(k))
open(sys.argv[1], "w").write(A.text())
```

```python
from asmlib import *
from layout import *
from chain import f32bits
import math

def emit_a2(A, tag, s_seg, s_head, ldflag=""):
    T0, T1, SQ, SK, SV, SKM, SVM, SO, SC = 40, 41, 42, 43, 44, 45, 46, 47, 48
    Q, K, KMf, V, VMf, S, O = 16, 48, 80, 96, 128, 144, 168
    P, PM, ONE, OS, TMP = 232, 240, 244, 248, 8
    A("v_and_b32 v1, 15, v0\nv_lshrrev_b32 v2, 4, v0\nv_lshlrev_b32 v3, 4, v2")
    A("v_bfe_u32 v4, v0, 2, 2\nv_lshlrev_b32 v4, 3, v4\nv_and_b32 v5, 3, v0\nv_add_u32 v4, v4, v5")
    A("v_lshl_add_u32 v5, v1, 13, v3")
    A("v_lshl_add_u32 v6, v4, 6, v3")
    A("v_and_b32 v7, 7, v0\nv_lshl_add_u32 v7, v7, 13, v3")
    A("v_and_b32 v13, 1, v2\nv_lshlrev_b32 v13, 3, v13\nv_lshl_add_u32 v13, v4, 4, v13")
    A("s_lshl_b32 s%d, s%d, 18\ns_lshl_b32 s%d, s%d, 8\ns_add_u32 s%d, s%d, s%d" % (T0, s_seg, T1, s_head, T0, T0, T1))
    A("s_add_u32 s%d, s%d, %d\ns_add_u32 s%d, s%d, %d" % (SQ, T0, QX, SO, T0, OXA))
    A("s_lshl_b32 s%d, s%d, 16\ns_add_u32 s%d, s%d, s%d\ns_add_u32 s%d, s%d, %d" % (T0, s_seg, SKM, T0, T1, SKM, SKM, KM))
    A("s_lshl_b32 s%d, s%d, 11\ns_add_u32 s%d, s%d, s%d\ns_add_u32 s%d, s%d, %d" % (T1, s_head, SVM, T0, T1, SVM, SVM, VMT))
    A("s_lshl_b32 s%d, s%d, 20\ns_lshl_b32 s%d, s%d, 12\ns_add_u32 s%d, s%d, s%d\ns_add_u32 s%d, s%d, %d" % (T0, s_head, T1, s_seg, SK, T0, T1, SK, SK, KV))
    for qt in range(2):
        if qt: A("s_add_u32 s%d, s%d, 0x20000" % (SQ, SQ))
        for ks in range(4):
            A("buffer_load_dwordx4 %s, v5, s[8:11], s%d offen offset:%d %s" % (vr(Q + 16 * qt + 4 * ks, 4), SQ, 64 * ks, ldflag))
    for ks in range(4):
        A("s_add_u32 s%d, s%d, %d" % (52 + ks, SK, ks * 262144))
    for a in range(2):
        for ks in range(4):
            A("buffer_load_dwordx4 %s, v6, s[8:11], s%d offen offset:%d %s" % (vr(K + 16 * a + 4 * ks, 4), 52 + ks, 256 * a, ldflag))
    for ks in range(4):
        A("buffer_load_dwordx4 %s, v7, s[8:11], s%d offen offset:%d %s" % (vr(KMf + 4 * ks, 4), SKM, 64 * ks, ldflag))
    for et in range(8):
        A("buffer_load_dwordx4 %s, v6, s[8:11], s%d offen offset:%d %s" % (vr(V + 4 * et, 4), 52 + (et >> 1), 2048 + 256 * (et & 1), ldflag))
    for et in range(8):
        A("buffer_load_dwordx2 %s, v13, s[8:11], s%d offen offset:%d %s" % (vr(VMf + 2 * et, 2), SVM, (32 * (et >> 1) + 4 * (et & 1)) * 16, ldflag))
    A("s_mov_b32 s%d, 0x%x" % (SC, f32bits(128 ** -0.5 * math.log2(math.e))))
    for i in range(4): A("v_mov_b32 v%d, 0x3f803f80" % (ONE + i))
    A("v_lshlrev_b32 v14, 3, v2\nv_sub_u32 v14, v1, v14")
    A("v_mov_b32 v15, 0xff800000")
    A("s_waitcnt vmcnt(16)")
    for ks in range(4):
        for qt in range(2):
            for kt in range(3):
                a = vr(K + 16 * kt + 4 * ks, 4) if kt < 2 else vr(KMf + 4 * ks, 4)
                d = vr(S + 12 * qt + 4 * kt, 4)
                A("v_mfma_f32_16x16x32_bf16 %s, %s, %s, %s" % (d, a, vr(Q + 16 * qt + 4 * ks, 4), "0" if ks == 0 else d))
    A("s_mov_b32 s50, -1\ns_mov_b32 s51, 0")
    for qt in range(2):
        s = S + 12 * qt
        for j in range(8):
            A("v_cmp_le_i32 vcc, %d, v14" % (j - 16 * qt))
            A("v_cndmask_b32 v%d, v15, v%d, vcc" % (s + j, s + j))
        for j in range(4):
            A("v_cndmask_b32 v%d, v15, v%d, s[50:51]" % (s + 8 + j, s + 8 + j))
        m = TMP
        A("v_max3_f32 v%d, v%d, v%d, v%d" % (m, s, s + 1, s + 2))
        for j in range(3, 11, 2): A("v_max3_f32 v%d, v%d, v%d, v%d" % (m, m, s + j, s + j + 1))
        A("v_max_f32 v%d, v%d, v%d" % (m, m, s + 11))
        A("v_mov_b32 v%d, v%d\nv_permlane16_swap_b32 v%d, v%d\nv_max_f32 v%d, v%d, v%d" % (m + 1, m, m, m + 1, m, m, m + 1))
        A("v_mov_b32 v%d, v%d\nv_permlane32_swap_b32 v%d, v%d\nv_max_f32 v%d, v%d, v%d" % (m + 1, m, m, m + 1, m, m, m + 1))
        A("v_mul_f32 v%d, s%d, v%d" % (m, SC, m))
        for j in range(12): A("v_fma_f32 v%d, v%d, s%d, -v%d" % (s + j, s + j, SC, m))
        for j in range(12): A("v_exp_f32 v%d, v%d" % (s + j, s + j))
        for j in range(4): A("v_cvt_pk_bf16_f32 v%d, v%d, v%d" % (P + 4 * qt + j, s + 2 * j, s + 2 * j + 1))
        for j in range(2): A("v_cvt_pk_bf16_f32 v%d, v%d, v%d" % (PM + 2 * qt + j, s + 8 + 2 * j, s + 9 + 2 * j))
    A("s_waitcnt vmcnt(0)")
    for qt in range(2):
        A("v_mfma_f32_16x16x32_bf16 %s, %s, %s, 0" % (vr(OS + 4 * qt, 4), vr(ONE, 4), vr(P + 4 * qt, 4)))
    for qt in range(2):
        A("v_mfma_f32_16x16x16_bf16 %s, %s, %s, %s" % (vr(OS + 4 * qt, 4), vr(ONE, 2), vr(PM + 2 * qt, 2), vr(OS + 4 * qt, 4)))
    for qt in range(2):
        for et in range(8):
            A("v_mfma_f32_16x16x32_bf16 %s, %s, %s, 0" % (vr(O + 32 * qt + 4 * et, 4), vr(V + 4 * et, 4), vr(P + 4 * qt, 4)))
        for et in range(8):
            d = vr(O + 32 * qt + 4 * et, 4)
            A("v_mfma_f32_16x16x16_bf16 %s, %s, %s, %s" % (d, vr(VMf + 2 * et, 2), vr(PM + 2 * qt, 2), d))
    for qt in range(2):
        A("v_rcp_f32 v%d, v%d" % (TMP + 2 * qt, OS + 4 * qt))
    for qt in range(2):
        if qt: A("s_add_u32 s%d, s%d, 0x20000" % (SO, SO))
        o = O + 32 * qt
        for j in range(0, 32, 2): A("v_pk_mul_f32 %s, %s, %s op_sel_hi:[1,0]" % (vr(o + j, 2), vr(o + j, 2), vr(TMP + 2 * qt, 2)))
        for j in range(16): A("v_cvt_pk_bf16_f32 v%d, v%d, v%d" % (Q + 16 * qt + j, o + 2 * j, o + 2 * j + 1))
        for T in range(4):
            A("buffer_store_dwordx4 %s, v5, s[8:11], s%d offen offset:%d" % (vr(Q + 16 * qt + 4 * T, 4), SO, 64 * T))

B2_KSLOT = 32768
B2_VROW = 1040
B2_SLOT = B2_KSLOT + 32 * B2_VROW
B2_LDS = 2 * B2_SLOT

B2_QSCALE = 32 ** -0.5 * math.log2(math.e)

def emit_b2(A, tag, s_head, s_qb, s_wave, ldflag="", stflag=""):
    T0, T1, SKO, SVO, SMODE, SCH, SWS, SRS, SMK, SMV = 40, 41, 42, 43, 44, 46, 47, 48, 49, 50
    Q, O, KF, VF, P = 16, 24, 40, 56, 72
    SB = [96, 128]
    NM, LS, ONE = 160, 176, 192
    M, L, MN, T = 88, 90, 92, 94
    VKD, VVD, KA, VA_, CK, CV = 2, 3, 4, 6, 8, 10
    A("s_mov_b32 s%d, 0" % SMODE)
    A.label("B2%s_START" % tag)
    A("v_lshrrev_b32 v%d, 2, v0\nv_lshlrev_b32 v%d, 12, v%d" % (VKD, VKD, VKD))
    A("v_lshrrev_b32 v%d, 4, v0\nv_and_b32 v%d, 3, v0\nv_xor_b32 v%d, v%d, v%d\nv_lshl_add_u32 v%d, v%d, 4, v%d" % (T, T + 1, T, T, T + 1, VKD, T, VKD))
    A("v_lshlrev_b32 v%d, 4, v0" % VVD)
    A("s_lshl_b32 s%d, s%d, 18\ns_lshl_b32 s%d, s%d, 6\ns_add_u32 s%d, s%d, s%d\ns_add_u32 s%d, s%d, %d" % (SKO, s_wave, T0, s_head, SKO, SKO, T0, SKO, SKO, BQK + 2048))
    A("s_lshl_b32 s%d, s%d, 17\ns_lshl_b32 s%d, s%d, 14\ns_add_u32 s%d, s%d, s%d\ns_add_u32 s%d, s%d, %d" % (SVO, s_head, T0, s_wave, SVO, SVO, T0, SVO, SVO, BVT))
    A("s_lshl_b32 s%d, s%d, 12" % (SMK, s_wave))
    A("s_mul_i32 s%d, s%d, %d\ns_add_u32 s%d, s%d, %d" % (SMV, s_wave, 4 * B2_VROW, SMV, SMV, B2_KSLOT))
    A("s_mov_b32 s%d, 0" % SWS)
    def dma():
        for j in range(4):
            A("s_add_u32 m0, s%d, s%d" % (SMK, SWS))
            if j: A("s_add_u32 m0, m0, %d" % (1024 * j))
            A("s_add_u32 s%d, s%d, %d" % (T0, SKO, j * 16 * 4096))
            A("buffer_load_dwordx4 v%d, s[8:11], s%d offen %s lds" % (VKD, T0, ldflag))
        for j in range(4):
            A("s_add_u32 m0, s%d, s%d" % (SMV, SWS))
            if j: A("s_add_u32 m0, m0, %d" % (B2_VROW * j))
            A("s_add_u32 s%d, s%d, %d" % (T0, SVO, j * 4096))
            A("buffer_load_dwordx4 v%d, s[8:11], s%d offen %s lds" % (VVD, T0, ldflag))
        A("s_add_u32 s%d, s%d, %d\ns_add_u32 s%d, s%d, 1024" % (SKO, SKO, 512 * 4096, SVO, SVO))
        A("s_sub_u32 s%d, %d, s%d" % (SWS, B2_SLOT, SWS))
    dma()
    A("v_and_b32 v%d, 31, v0\nv_lshrrev_b32 v%d, 5, v0" % (T, T + 1))
    A("v_lshlrev_b32 v12, 12, v%d\nv_lshl_add_u32 v12, v%d, 4, v12" % (T, T + 1))
    A("s_lshl_b32 s%d, s%d, 20\ns_lshl_b32 s%d, s%d, 17\ns_add_u32 s%d, s%d, s%d\ns_lshl_b32 s%d, s%d, 6\ns_add_u32 s%d, s%d, s%d\ns_add_u32 s%d, s%d, %d" % (T0, s_qb, T1, s_wave, T0, T0, T1, T1, s_head, T0, T0, T1, T0, T0, BQK))
    A("buffer_load_dwordx4 %s, v12, s[8:11], s%d offen %s" % (vr(Q, 4), T0, ldflag))
    A("buffer_load_dwordx4 %s, v12, s[8:11], s%d offen offset:32 %s" % (vr(Q + 4, 4), T0, ldflag))
    A("v_lshlrev_b32 v13, 11, v%d\nv_lshl_add_u32 v13, v%d, 4, v13" % (T, T + 1))
    A("v_and_b32 v14, 0x13, v%d\nv_bfe_u32 v15, v%d, 2, 1\nv_lshl_or_b32 v14, v15, 3, v14\nv_bfe_u32 v15, v%d, 3, 1\nv_lshl_or_b32 v14, v15, 2, v14" % (T, T, T))
    A("v_bfe_u32 v15, v14, 2, 2\nv_xor_b32 v15, v15, v%d" % (T + 1))
    A("v_lshlrev_b32 v14, 6, v14\nv_lshl_add_u32 v%d, v15, 4, v14\nv_xor_b32 v%d, 32, v%d" % (KA, KA + 1, KA))
    A("s_movk_i32 s%d, %d\nv_mul_lo_u32 v%d, v%d, s%d\nv_lshl_add_u32 v%d, v%d, 4, v%d\nv_add_u32 v%d, %d, v%d" % (T0, B2_VROW, VA_, T, T0, VA_, T + 1, VA_, VA_, B2_KSLOT, VA_))
    for i in range(16): A("v_mov_b32 v%d, 0\nv_mov_b32 v%d, 0" % (O + i, LS + i))
    for i in range(4): A("v_mov_b32 v%d, 0x3f803f80" % (ONE + i))
    A("v_mov_b32 v%d, 0xff800000" % M)
    A("s_mov_b32 s%d, 0\ns_mov_b32 s%d, 0" % (SRS, SCH))
    def kreads(off):
        return ["ds_read_b128 %s, v%d offset:%d" % (vr(KF + 8 * t + 4 * ks, 4), CK + ks, off + 2048 * t) for t in range(2) for ks in range(2)]
    def vreads(off):
        return ["ds_read_b128 %s, v%d offset:%d" % (vr(VF + 4 * j, 4), CV, off + 32 * j) for j in range(4)]
    def qk(sb, c0):
        Lm = []
        for ks in range(2):
            for t in range(2):
                d = vr(SB[sb] + 16 * t, 16)
                Lm.append("v_mfma_f32_32x32x16_bf16 %s, %s, %s, %s" % (d, vr(KF + 8 * t + 4 * ks, 4), vr(Q + 4 * ks, 4), c0 if ks == 0 else d))
        return Lm
    def rowmax(s, first):
        A("v_max3_f32 v%d, v%d, v%d, v%d" % (MN, first, s, s + 1))
        for j in range(2, 32, 2): A("v_max3_f32 v%d, v%d, v%d, v%d" % (MN, MN, s + j, s + j + 1))
        A("v_mov_b32 v%d, v%d\nv_permlane32_swap_b32 v%d, v%d\nv_max_f32 v%d, v%d, v%d" % (T, MN, MN, T, MN, MN, T))
    def exp_pv(sb, nxt, sub):
        s = SB[sb]; nx = list(nxt)
        for u in range(4):
            b = s + 8 * u
            if sub:
                for j in range(8): A("v_sub_f32 v%d, v%d, v%d" % (b + j, b + j, M))
            for j in range(8):
                A("v_exp_f32 v%d, v%d" % (b + j, b + j))
                if j == 3 and u > 0: A("v_mfma_f32_32x32x16_bf16 %s, %s, %s, %s" % (vr(LS, 16), vr(ONE, 4), vr(P + 4 * u - 4, 4), vr(LS, 16)))
                if j == 7 and nx: A(nx.pop(0))
            for j in range(4): A("v_cvt_pk_bf16_f32 v%d, v%d, v%d" % (P + 4 * u + j, b + 2 * j, b + 2 * j + 1))
            if u == 0 and not nxt: A("s_waitcnt lgkmcnt(0)")
            A("v_mfma_f32_32x32x16_bf16 %s, %s, %s, %s" % (vr(O, 16), vr(VF + 4 * u, 4), vr(P + 4 * u, 4), vr(O, 16)))
        A("v_mfma_f32_32x32x16_bf16 %s, %s, %s, %s" % (vr(LS, 16), vr(ONE, 4), vr(P + 12, 4), vr(LS, 16)))
    def chunk_head(v):
        A.label("B2%s_CH%s" % (tag, v))
        A("s_waitcnt vmcnt(0)\ns_barrier")
        A("s_cmp_eq_u32 s%d, 3\ns_cbranch_scc1 B2%s_ND%s" % (SCH, tag, v))
        dma()
        A.label("B2%s_ND%s" % (tag, v))
        A("v_add_u32 v%d, s%d, v%d\nv_add_u32 v%d, s%d, v%d\nv_add_u32 v%d, s%d, v%d" % (CK, SRS, KA, CK + 1, SRS, KA + 1, CV, SRS, VA_))
        A("s_sub_u32 s%d, %d, s%d" % (SRS, B2_SLOT, SRS))
        for r in kreads(0): A(r)
        A("s_waitcnt lgkmcnt(0)")
    A("s_cmp_eq_u32 s%d, 1\ns_cbranch_scc1 B2%s_CHx" % (SMODE, tag))
    chunk_head("f")
    A("s_cmp_lg_u32 s%d, 0\ns_cbranch_scc1 B2%s_HAVEM" % (SCH, tag))
    for m in qk(0, "0"): A(m)
    rowmax(SB[0], SB[0])
    for i in range(16): A("v_sub_f32 v%d, 0, v%d" % (NM + i, MN))
    A.label("B2%s_HAVEM" % tag)
    for m in qk(0, vr(NM, 16)): A(m)
    for it in range(8):
        sb = it & 1
        for r in vreads(128 * it): A(r)
        nxt = []
        if it < 7:
            for r in kreads(4096 * (it + 1)): A(r)
            q = qk(1 - sb, vr(NM, 16))
            nxt = ["s_waitcnt lgkmcnt(0)\n" + q[0]] + q[1:]
        exp_pv(sb, nxt, False)
    A("s_add_u32 s%d, s%d, 1\ns_cmp_lt_u32 s%d, 4\ns_cbranch_scc1 B2%s_CHf" % (SCH, SCH, SCH, tag))
    A("v_mov_b32 v%d, 0x4e800000\nv_cmp_nlt_f32 vcc, v%d, v%d" % (T, LS, T))
    A("s_cmp_lg_u64 vcc, 0\ns_cselect_b32 s%d, 1, 0\ns_lshl_b32 s%d, s%d, 2" % (T0, T1, s_wave))
    A("v_mov_b32 v%d, s%d\nv_mov_b32 v%d, s%d\nds_write_b32 v%d, v%d\ns_waitcnt lgkmcnt(0)\ns_barrier" % (T, T1, T + 1, T0, T, T + 1))
    A("v_and_b32 v%d, 7, v0\nv_lshlrev_b32 v%d, 2, v%d\nds_read_b32 v%d, v%d\ns_waitcnt lgkmcnt(0)" % (T, T, T, T + 1, T))
    A("v_cmp_ne_u32 vcc, 0, v%d\ns_cbranch_vccz B2%s_FIN" % (T + 1, tag))
    A("s_barrier\ns_mov_b32 s%d, 1\ns_branch B2%s_START" % (SMODE, tag))
    chunk_head("x")
    A("s_mov_b32 s%d, 0" % T1)
    A.label("B2%s_XL" % tag)
    for m in qk(0, "0"): A(m)
    for r in vreads(0): A(r)
    rowmax(SB[0], M)
    A("v_sub_f32 v%d, v%d, v%d\nv_exp_f32 v%d, v%d\nv_mov_b32 v%d, v%d" % (T, M, MN, T, T, M, MN))
    for j in range(16): A("v_mul_f32 v%d, v%d, v%d" % (O + j, O + j, T))
    A("v_mul_f32 v%d, v%d, v%d" % (LS, LS, T))
    exp_pv(0, [], True)
    A("v_add_u32 v%d, 0x1000, v%d\nv_add_u32 v%d, 0x1000, v%d\nv_add_u32 v%d, 0x80, v%d" % (CK, CK, CK + 1, CK + 1, CV, CV))
    A("s_add_u32 s%d, s%d, 1\ns_cmp_eq_u32 s%d, 8\ns_cbranch_scc1 B2%s_XN" % (T1, T1, T1, tag))
    for r in kreads(0): A(r)
    A("s_waitcnt lgkmcnt(0)\ns_branch B2%s_XL" % tag)
    A.label("B2%s_XN" % tag)
    A("s_add_u32 s%d, s%d, 1\ns_cmp_lt_u32 s%d, 4\ns_cbranch_scc1 B2%s_CHx" % (SCH, SCH, SCH, tag))
    A.label("B2%s_FIN" % tag)
    A("v_rcp_f32 v%d, v%d" % (M, LS))
    for j in range(16): A("v_mul_f32 v%d, v%d, v%d" % (O + j, O + j, M))
    for j in range(8): A("v_cvt_pk_bf16_f32 v%d, v%d, v%d" % (P + j, O + 2 * j, O + 2 * j + 1))
    A("s_lshl_b32 s%d, s%d, 19\ns_lshl_b32 s%d, s%d, 16\ns_add_u32 s%d, s%d, s%d\ns_lshl_b32 s%d, s%d, 6\ns_add_u32 s%d, s%d, s%d\ns_add_u32 s%d, s%d, %d" % (T0, s_qb, T1, s_wave, T0, T0, T1, T1, s_head, T0, T0, T1, T0, T0, BO))
    for k in range(2):
        A("v_permlane32_swap_b32 v%d, v%d\nv_permlane32_swap_b32 v%d, v%d" % (P + 4 * k, P + 4 * k + 2, P + 4 * k + 1, P + 4 * k + 3))
        A("buffer_store_dwordx4 %s, v13, s[8:11], s%d offen offset:%d %s" % (vr(P + 4 * k, 4), T0, 32 * k, stflag))
```

```python
from asmlib import *
from layout import *
import math, struct, os
OPT = os.environ.get("OPT", "").split(",")

def f32bits(x):
    return struct.unpack("<I", struct.pack("<f", x))[0]

S_WS = 8
S_W = 12
S_PB = 22
S_X, S_C, S_WAVE, S_STEP, S_CUR, S_NXT, S_RST, S_DONE = 32, 33, 34, 35, 36, 37, 38, 39
S_MLO = 40
S_MM = 42
S_TO = 44
S_T0, S_T1, S_T2, S_T3 = 45, 46, 47, 48
S_SC = 49
S_KOFF, S_VOFF, S_KMOFF, S_VMOFF = 50, 51, 52, 53
S_RDY = 25
S_PCUR, S_PRST = 27, 28
S_PSEL = 26
S_DUM = 24
S_G2 = 54
S_PTR = 60
TIMEOUT = 200000

RED_QK, RED_V, RED_O = 0, 8192, 16384
PSEL_LDS = 131072

def ptr(i):
    return S_PTR + 2 * i

def mk_srd(A, d, p, nbytes):
    A("s_mov_b32 s%d, s%d\ns_and_b32 s%d, s%d, 0xffff\ns_mov_b32 s%d, 0x%x\ns_mov_b32 s%d, 0x20000" % (d, p, d + 1, p + 1, d + 2, nbytes, d + 3))

def check(A, regs_list, tmp, retry):
    r = list(regs_list)
    if len(r) >= 3:
        A("v_max3_u32 v%d, v%d, v%d, v%d" % (tmp, r[0], r[1], r[2])); r = r[3:]
    else:
        A("v_max_u32 v%d, v%d, v%d" % (tmp, r[0], r[1])); r = r[2:]
    while r:
        if len(r) >= 2:
            A("v_max3_u32 v%d, v%d, v%d, v%d" % (tmp, tmp, r[0], r[1])); r = r[2:]
        else:
            A("v_max_u32 v%d, v%d, v%d" % (tmp, tmp, r[0])); r = r[1:]
    A("v_cmp_eq_u32 vcc, -1, v%d" % tmp)
    A("s_cbranch_vccnz %s" % retry)

def poll_head(A, name, abort):
    A("s_mov_b32 s%d, 0" % S_TO)
    A.label(name)
    A("s_add_u32 s%d, s%d, 1\ns_cmp_gt_u32 s%d, %d\ns_cbranch_scc1 %s" % (S_TO, S_TO, S_TO, TIMEOUT, abort))

def seq_poll(A, name, abort, n, issue, regs_of, block, vtmp, first=None, dbg=False, tails=None, back=3):
    first = first or n
    def chk_ops(u):
        r = list(regs_of(u))
        return ["v_max3_u32 v%d, v%d, v%d, v%d" % (vtmp, r[0], r[1], r[2]), "v_max_u32 v%d, v%d, v%d" % (vtmp, vtmp, r[3]), "v_cmp_eq_u32 vcc, -1, v%d" % vtmp]
    tmo = "s_add_u32 s%d, s%d, 1\ns_cmp_gt_u32 s%d, %d\ns_cbranch_scc1 %s" % (S_TO, S_TO, S_TO, TIMEOUT, abort)
    A("s_mov_b32 s%d, 0" % S_TO)
    A.label(name + "_R0")
    for u in range(first): A(issue(u))
    A(tmo)
    A("s_waitcnt vmcnt(%d)" % (first - 1))
    for x in chk_ops(0): A(x)
    A("s_cbranch_vccnz %s_R0" % name)
    if dbg: A("s_memrealtime s[94:95]\ns_mov_b32 s98, s%d" % S_TO)
    for u in range(first, n): A(issue(u))
    for u in range(n):
        if u:
            A("s_cbranch_vccnz %s_R%d" % (name, u))
            A.label("%s_B%d" % (name, u))
        blk = block(u)
        if u < n - 1:
            extra = ["s_waitcnt vmcnt(%d)" % (n - 2 - u)] + chk_ops(u + 1)
            idx = [i for i, x in enumerate(blk) if x.startswith("v_mfma")]
            pos = idx[-back:]
            out = []
            for i, x in enumerate(blk):
                if i == pos[0]: out.append(extra[0])
                out.append(x)
                if i == pos[0]: out.append(extra[1])
                if i == pos[1]: out += extra[2:]
            blk = out
        for x in blk: A(x)
    T = Asm()
    for u in range(1, n):
        T.label("%s_R%d" % (name, u))
        for v in range(u, n): T(issue(v))
        T(tmo)
        T("s_waitcnt vmcnt(%d)" % (n - 1 - u))
        for x in chk_ops(u): T(x)
        T("s_cbranch_vccnz %s_R%d" % (name, u))
        T("s_branch %s_B%d" % (name, u))
    tails.extend(T.lines)

def load_weights(A, vbase, nmat, mats, vtmp):
    va, vw, vt = vtmp, vtmp + 1, vtmp + 2
    for b, (pi, nb, rs, soff) in enumerate(mats):
        mk_srd(A, S_W, ptr(pi), nb)
        A("v_lshrrev_b32 v%d, 2, v0" % va)
        A("s_mov_b32 s%d, %d" % (S_T0, rs))
        A("v_mul_lo_u32 v%d, v%d, s%d" % (va, va, S_T0))
        A("v_and_b32 v%d, 3, v0\nv_lshl_add_u32 v%d, v%d, 4, v%d" % (vt, va, vt, va))
        A("s_mov_b32 s%d, s%d" % (S_T1, soff))
        for i in range(16):
            A("buffer_load_dwordx4 %s, v%d, s[%d:%d], s%d offen" % (vr(vbase + b * 64 + i * 4, 4), va, S_W, S_W + 3, S_T1))
            if i < 15: A("s_add_u32 s%d, s%d, %d" % (S_T1, S_T1, 16 * rs))
    A("s_lshl_b32 s%d, s%d, 14" % (S_T0, S_WAVE))
    A("v_lshlrev_b32 v%d, 4, v0\nv_add_u32 v%d, s%d, v%d" % (vw, vw, S_T0, vw))
    A("v_lshrrev_b32 v%d, 4, v0\nv_lshlrev_b32 v%d, 9, v%d" % (va, va, va))
    A("v_bfe_u32 v%d, v0, 2, 2\nv_lshl_add_u32 v%d, v%d, 6, v%d" % (vt, va, vt, va))
    A("v_and_b32 v%d, 3, v0\nv_lshl_add_u32 v%d, v%d, 4, v%d" % (vt, va, vt, va))
    A("v_add_u32 v%d, s%d, v%d" % (va, S_T0, va))
    for b in range(nmat):
        A("s_waitcnt vmcnt(%d)" % ((nmat - 1 - b) * 16))
        for i in range(16):
            A("ds_write_b128 v%d, %s offset:%d" % (vw, vr(vbase + b * 64 + i * 4, 4), i * 1024))
        A("s_waitcnt lgkmcnt(0)")
        for kk in range(8):
            for a in range(2):
                for hf in range(2):
                    A("ds_read_b64_tr_b16 %s, v%d offset:%d" % (vr(vbase + b * 64 + kk * 8 + a * 4 + hf * 2, 2), va, kk * 2048 + hf * 256 + a * 8))
            if kk % 2 == 1: A("s_waitcnt lgkmcnt(0)")

def emit_probe(A, res):
    A("s_and_b32 s96, s2, 31\ns_lshl_b32 s96, s96, 7\ns_lshr_b32 s97, s2, 5\ns_lshl_b32 s97, s97, 14\ns_add_u32 s96, s96, s97\ns_add_u32 s96, s96, %d" % (PARTB + 0x100000))
    A("s_mov_b64 exec, 1")
    A("s_add_u32 s97, s96, 8192\nbuffer_store_dword v2, off, s[8:11], s96 sc1\nbuffer_store_dword v2, off, s[8:11], s97 sc1\ns_waitcnt vmcnt(0)")
    A("s_mov_b32 s94, -1\ns_mov_b32 s95, -1")
    for i in range(4):
        h = i & 1
        A("s_add_u32 s97, s96, %d" % (h * 8192))
        A("s_memtime s[90:91]\ns_waitcnt lgkmcnt(0)")
        A("buffer_store_dword v2, off, s[8:11], s97 sc1\ns_waitcnt vmcnt(0)")
        A("s_memtime s[92:93]\ns_waitcnt lgkmcnt(0)\ns_sub_u32 s92, s92, s90\ns_min_u32 s%d, s%d, s92" % (94 + h, 94 + h))
    A("s_mov_b64 exec, -1")
    A("s_cmp_lt_u32 s95, s94\ns_cselect_b32 s%d, 1, 0" % res)

def next_slots(A):
    A("s_mov_b32 s%d, s%d\ns_mov_b32 s%d, s%d" % (S_CUR, S_NXT, S_NXT, S_RST))
    A("s_add_u32 s%d, s%d, %d\ns_cmp_eq_u32 s%d, %d\ns_cselect_b32 s%d, %d, s%d" % (S_RST, S_RST, SLOT, S_RST, EXCH + 4 * SLOT, S_RST, EXCH, S_RST))
    A("s_add_u32 s%d, s%d, 1" % (S_STEP, S_STEP))
    part_slots(A)

def part_slots(A):
    A("s_bfe_u32 s%d, s%d, 0x140001\ns_bfe_u32 s%d, s%d, 0x140001" % (S_PCUR, S_CUR, S_PRST, S_RST))

def part_off(A, dst, sx):
    A("s_lshl_b32 s%d, s%d, 10" % (dst, sx))
    A("s_lshr_b32 s%d, s%d, 1\ns_lshl_b32 s%d, s%d, 14\ns_add_u32 s%d, s%d, s%d" % (S_T1, S_C, S_T1, S_T1, dst, dst, S_T1))
    A("s_and_b32 s%d, s%d, 1\ns_lshl_b32 s%d, s%d, 12\ns_add_u32 s%d, s%d, s%d\ns_add_u32 s%d, s%d, %d" % (S_T1, S_C, S_T1, S_T1, dst, dst, S_T1, dst, dst, PARTB))

def pk_add(A, d, a, b, n):
    if "nopk" in OPT:
        for i in range(n): A("v_add_f32 v%d, v%d, v%d" % (d + i, a + i, b + i))
        return
    for i in range(0, n, 2):
        A("v_pk_add_f32 %s, %s, %s" % (vr(d + i, 2), vr(a + i, 2), vr(b + i, 2)))

def emit_chain(A0, done, intra="", nstep=64, ready_wait=None, stamps=False, pfx="CH_", gate=False):
    A = Asm()
    _emit_chain(A, done, intra, nstep, ready_wait, stamps, gate)
    for l in A.lines: A0.lines.append(l.replace("CH_", pfx))

def _emit_chain(A, done, intra="", nstep=64, ready_wait=None, stamps=False, gate=False):
    ab = done
    tails = []
    def flush():
        A.lines.extend(tails); del tails[:]
    def optn(k, dflt):
        for o in OPT:
            if o.startswith(k): return int(o[len(k):])
        return dflt
    FINE = "fine" in OPT
    def st(i):
        if stamps and not FINE: A("s_memrealtime s[%d:%d]" % (86 + 2 * i, 87 + 2 * i))
    def ft(i):
        if stamps and FINE: A("s_memtime s[%d:%d]" % (86 + 2 * i, 87 + 2 * i))
    def cnt():
        if stamps: A("s_mov_b32 s100, s%d" % S_TO)
    def dump(tag):
        if not stamps: return
        A("s_cmp_lg_u32 s%d, %d\ns_cbranch_scc1 CH_ND%s" % (S_STEP, stamps, tag))
        A("s_waitcnt lgkmcnt(0)")
        A("s_lshl_b32 s%d, s2, 3\ns_add_u32 s%d, s%d, s%d\ns_lshl_b32 s%d, s%d, 6\ns_add_u32 s%d, s%d, 0x6000000" % (S_T0, S_T0, S_T0, S_WAVE, S_T0, S_T0, S_T0, S_T0))
        A("s_mov_b64 exec, 1")
        for i in range(8):
            A("v_mov_b32 v5, s%d\nbuffer_store_dword v5, v2, s[8:11], s%d offen offset:%d" % (86 + 2 * i, S_T0, 4 * i))
        A("s_mov_b64 exec, -1")
        A.label("CH_ND" + tag)
    def backoff(k, dflt):
        n = dflt
        for o in OPT:
            if o.startswith("d" + k): n = int(o[2:])
        if n: A("s_sleep %d" % n)
    def kv_gate(name, soff):
        A("s_mov_b32 s%d, 0" % S_TO)
        A.label(name)
        A("buffer_load_dword v5, off, s[8:11], s%d sc1" % soff)
        A("s_add_u32 s%d, s%d, 1\ns_cmp_gt_u32 s%d, %d\ns_cbranch_scc1 %s" % (S_TO, S_TO, S_TO, TIMEOUT, ab))
        A("s_waitcnt vmcnt(0)\nv_cmp_eq_u32 vcc, 64, v5\ns_cbranch_vccnz %s_OK\ns_sleep 4\ns_branch %s" % (name, name))
        A.label(name + "_OK")
    last = lambda: A("s_cmp_eq_u32 s%d, %d\ns_cbranch_scc1 %s" % (S_STEP, nstep - 1, done))
    A("v_lshrrev_b32 v1, 6, v0\nv_and_b32 v0, 63, v0\nv_readfirstlane_b32 s%d, v1" % S_WAVE)
    A("s_mov_b32 s%d, 0x00ff00ff\ns_mov_b32 s%d, 0x00ff00ff" % (S_MLO, S_MLO + 1))
    A("s_mov_b32 s%d, 0\ns_mov_b32 s%d, 0x00ff00ff" % (S_MM, S_MM + 1))
    A("s_mov_b32 s%d, 0\ns_mov_b32 s%d, -1" % (S_G2, S_G2 + 1))
    A("s_mov_b32 s%d, %d" % (S_DUM, EXCH + 4 * SLOT))
    A("s_mov_b32 s%d, 0\ns_mov_b32 s%d, %d\ns_mov_b32 s%d, %d\ns_mov_b32 s%d, %d" % (S_STEP, S_CUR, EXCH, S_NXT, EXCH + SLOT, S_RST, EXCH + 2 * SLOT))
    part_slots(A)
    A("v_bfe_u32 v1, v0, 3, 1\nv_lshlrev_b32 v1, 9, v1\nv_lshrrev_b32 v2, 4, v0\nv_lshl_add_u32 v1, v2, 7, v1\nv_and_b32 v2, 7, v0\nv_lshl_add_u32 v1, v2, 4, v1")
    A("v_lshlrev_b32 v2, 4, v0")
    A("s_lshl_b32 s%d, s%d, 5\ns_add_u32 s%d, s%d, s%d" % (S_T2, S_X, S_T2, S_T2, S_C))
    A("s_cmp_ge_u32 s%d, 4\ns_cbranch_scc1 CH_WO" % S_WAVE)

    W = 64
    A("s_lshl_b32 s%d, s%d, 6" % (S_T3, S_T2))
    A("s_lshl_b32 s%d, s%d, 21\ns_add_u32 s%d, s%d, s%d" % (S_T0, S_WAVE, S_T3, S_T3, S_T0))
    load_weights(A, W, 3, [(2, 0x800000, 8192, S_T3), (3, 0x800000, 8192, S_T3), (4, 0x800000, 8192, S_T3)], 4)
    A("s_lshl_b32 s%d, s%d, 14\ns_lshl_b32 s%d, s%d, 12\ns_add_u32 s%d, s%d, s%d" % (S_T0, S_X, S_T1, S_WAVE, S_T0, S_T0, S_T1))
    A("v_add_u32 v3, s%d, v1" % S_T0)
    A("s_lshl_b32 s%d, s%d, 11\nv_add_u32 v4, s%d, v2" % (S_T0, S_WAVE, S_T0))
    R, RR, AQ, AK, AV = 8, 24, 40, 48, 56
    for i in range(16): A("v_mov_b32 v%d, 0" % (AQ + i))
    A("s_barrier")
    wq = lambda kk, a: vr(W + kk * 8 + a * 4, 4)
    wk = lambda kk, a: vr(W + 64 + kk * 8 + a * 4, 4)
    wv = lambda kk, a: vr(W + 128 + kk * 8 + a * 4, 4)
    A.label("CH_Q_LOOP")
    st(0)
    backoff("m", 0)
    def q_blk(u):
        L = []
        for a in range(2):
            L.append("v_mfma_f32_16x16x32_bf16 %s, %s, %s, %s" % (vr(AQ + 4 * a, 4), wq(2 * u, a), vr(R + 4 * u, 4), vr(AQ + 4 * a, 4)))
            for i in range(2): L.append("v_mov_b32_dpp v%d, v%d row_ror:8 row_mask:0xf bank_mask:0xf" % (RR + 4 * u + 2 * a + i, R + 4 * u + 2 * a + i))
        for a in range(2):
            L.append("v_mfma_f32_16x16x32_bf16 %s, %s, %s, %s" % (vr(AK + 4 * a, 4), wk(2 * u + 1, a), vr(R + 4 * u, 4), vr(AK + 4 * a, 4)))
        for a in range(2):
            L.append("v_mfma_f32_16x16x32_bf16 %s, %s, %s, %s" % (vr(AQ + 4 * a, 4), wq(2 * u + 1, a), vr(RR + 4 * u, 4), vr(AQ + 4 * a, 4)))
            L.append("v_mfma_f32_16x16x32_bf16 %s, %s, %s, %s" % (vr(AK + 4 * a, 4), wk(2 * u, a), vr(RR + 4 * u, 4), vr(AK + 4 * a, 4)))
        return L
    seq_poll(A, "CH_QP", ab, 4,
             lambda u: "buffer_load_dwordx4 %s, v3, s[8:11], s%d offen offset:%d sc1" % (vr(R + 4 * u, 4), S_CUR, u * 1024),
             lambda u: range(R + 4 * u, R + 4 * u + 4), q_blk, 5, first=optn("fq", 2), back=optn("bq", 4), dbg=bool(stamps) and not FINE, tails=tails)
    st(1); cnt(); ft(0)
    for a in range(2):
        A("v_mfma_f32_16x16x32_bf16 %s, %s, %s, 0" % (vr(AV + 4 * a, 4), vr(R, 4), wv(1, a)))
    for i in range(8):
        A("v_cndmask_b32 v%d, v%d, v%d, s[%d:%d]" % (AQ + i, AK + i, AQ + i, S_MLO, S_MLO + 1))
        if i == 3: A("ds_write_b128 v4, %s offset:%d" % (vr(AQ, 4), RED_QK))
    A("ds_write_b128 v4, %s offset:%d" % (vr(AQ + 4, 4), RED_QK + 1024))
    st(2); ft(1)
    A("s_waitcnt lgkmcnt(0)")
    ft(2)
    A("s_barrier")
    st(3); ft(3)
    backoff("v", 0)
    for u in range(4):
        for a in range(2):
            if u > 0:
                A("v_mfma_f32_16x16x32_bf16 %s, %s, %s, %s" % (vr(AV + 4 * a, 4), vr(R + 4 * u, 4), wv(2 * u + 1, a), vr(AV + 4 * a, 4)))
            A("v_mfma_f32_16x16x32_bf16 %s, %s, %s, %s" % (vr(AV + 4 * a, 4), vr(RR + 4 * u, 4), wv(2 * u, a), vr(AV + 4 * a, 4)))
    A("ds_write_b128 v4, %s offset:%d" % (vr(AV, 4), RED_V))
    A("ds_write_b128 v4, %s offset:%d" % (vr(AV + 4, 4), RED_V + 1024))
    A("s_waitcnt lgkmcnt(0)\ns_barrier")
    dump("Q")
    last()
    next_slots(A)
    for i in range(16): A("v_mov_b32 v%d, 0" % (AQ + i))
    A("s_barrier\ns_barrier\ns_barrier")
    A("s_branch CH_Q_LOOP")
    flush()

    A.label("CH_WO")
    WO = 192
    A("s_lshl_b32 s%d, s%d, 21\ns_sub_u32 s%d, s%d, 4\ns_lshl_b32 s%d, s%d, 19\ns_add_u32 s%d, s%d, s%d" % (S_T3, S_X, S_T0, S_WAVE, S_T0, S_T0, S_T3, S_T3, S_T0))
    A("s_lshl_b32 s%d, s%d, 6\ns_add_u32 s%d, s%d, s%d" % (S_T0, S_C, S_T3, S_T3, S_T0))
    load_weights(A, WO, 1, [(5, 0x800000, 2048, S_T3)], 4)
    wo = lambda kk, a: vr(WO + kk * 8 + a * 4, 4)
    A("s_lshl_b32 s%d, s%d, 14\ns_sub_u32 s%d, s%d, 4\ns_lshl_b32 s%d, s%d, 12\ns_add_u32 s%d, s%d, s%d\ns_add_u32 s%d, s%d, %d" % (S_T0, S_X, S_T1, S_WAVE, S_T1, S_T1, S_T0, S_T0, S_T1, S_T0, S_T0, E_OX))
    A("v_add_u32 v3, s%d, v1" % S_T0)
    A("s_sub_u32 s%d, s%d, 4\ns_lshl_b32 s%d, s%d, 10\nv_add_u32 v4, s%d, v2" % (S_T0, S_WAVE, S_T0, S_T0, S_T0))
    A("v_lshrrev_b32 v6, 4, v0\nv_lshlrev_b32 v6, 7, v6\nv_and_b32 v7, 7, v0\nv_lshl_add_u32 v6, v7, 4, v6")
    A("s_lshl_b32 s%d, s%d, 9\nv_add_u32 v6, s%d, v6" % (S_T0, S_T2, S_T0))
    A("v_bfe_u32 v7, v0, 3, 1\nv_lshl_add_u32 v7, v7, 3, v6")
    part_off(A, S_T0, S_X)
    A("v_add_u32 v8, s%d, v2" % S_T0)
    A("s_mul_i32 s%d, s%d, 1280\ns_add_u32 s%d, s%d, %d\nv_add_u32 v9, s%d, v2" % (S_T0, S_T2, S_T0, S_T0, E_SX, S_T0))
    for i in range(4): A("v_mov_b32 v%d, -1" % (12 + i))
    def resets(soff, poff):
        A("buffer_store_dwordx4 v[12:15], v9, s[8:11], %s offen %s" % (soff, intra))
        A("buffer_store_dwordx4 v[12:15], v8, s[8:11], %s offen sc1" % poff)
        A("buffer_store_dwordx2 v[12:13], v7, s[8:11], %s offen offset:%d %s" % (soff, E_MEM, intra))
        A("s_add_u32 s%d, %s, %d" % (S_T0, soff, E_OX))
        A("buffer_store_dwordx2 v[12:13], v7, s[8:11], s%d offen %s" % (S_T0, intra))
        A("s_mov_b64 exec, 0xffff")
        A("buffer_store_dwordx4 v[12:15], v9, s[8:11], %s offen offset:1024 %s" % (soff, intra))
        A("s_mov_b64 exec, -1")
    R, RR, AO = 16, 32, 48
    def zero_ao():
        for i in range(8): A("v_mov_b32 v%d, 0" % (AO + i))
    def wo_phase(tag):
        if tag != "5": st(0)
        backoff("o", 2)
        def blk(u):
            L = ["v_mfma_f32_16x16x32_bf16 %s, %s, %s, %s" % (vr(AO, 4), wo(2 * u, 0), vr(R + 4 * u, 4), vr(AO, 4))]
            for i in range(4): L.append("v_mov_b32_dpp v%d, v%d row_ror:8 row_mask:0xf bank_mask:0xf" % (RR + i, R + 4 * u + i))
            L.append("v_mfma_f32_16x16x32_bf16 %s, %s, %s, %s" % (vr(AO + 4, 4), wo(2 * u + 1, 1), vr(R + 4 * u, 4), vr(AO + 4, 4)))
            L.append("v_mfma_f32_16x16x32_bf16 %s, %s, %s, %s" % (vr(AO, 4), wo(2 * u + 1, 0), vr(RR, 4), vr(AO, 4)))
            L.append("v_mfma_f32_16x16x32_bf16 %s, %s, %s, %s" % (vr(AO + 4, 4), wo(2 * u, 1), vr(RR, 4), vr(AO + 4, 4)))
            return L
        seq_poll(A, "CH_OP" + tag, ab, 4,
                 lambda u: "buffer_load_dwordx4 %s, v3, s[8:11], s%d offen offset:%d sc1" % (vr(R + 4 * u, 4), S_CUR, u * 1024),
                 lambda u: range(R + 4 * u, R + 4 * u + 4), blk, 5, first=optn("fo", 4), dbg=bool(stamps) and tag == "7" and not FINE, tails=tails)
        if tag != "5": st(1)
        if tag in "47": cnt()
        for i in range(4):
            A("v_cndmask_b32 v%d, v%d, v%d, s[%d:%d]" % (AO + i, AO + 4 + i, AO + i, S_MLO, S_MLO + 1))
        A("ds_write_b128 v4, %s offset:%d" % (vr(AO, 4), RED_O))
        if tag != "5": st(2)
        A("s_waitcnt lgkmcnt(0)\ns_barrier")
        if tag != "5": st(3)
    def red_o(me):
        o = [w for w in range(4) if w != me]
        for n, w in enumerate(o):
            A("ds_read_b128 %s, v2 offset:%d" % (vr(RR + 4 * n, 4), RED_O + w * 1024))
        A("s_waitcnt lgkmcnt(1)")
        pk_add(A, AO, AO, RR, 4)
        A("s_waitcnt lgkmcnt(0)")
        pk_add(A, RR + 4, RR + 4, RR + 8, 4)
        pk_add(A, AO, AO, RR + 4, 4)
    zero_ao()
    A("s_cmp_eq_u32 s%d, 4\ns_cbranch_scc1 CH_W4" % S_WAVE)
    A("s_cmp_eq_u32 s%d, 5\ns_cbranch_scc1 CH_W5" % S_WAVE)
    A("s_cmp_eq_u32 s%d, 6\ns_cbranch_scc1 CH_W6" % S_WAVE)

    WAH = optn("wa", 2)
    def warm_init(kind):
        o = {"k": 0, "v0": 1408, "v1": 2816}[kind]
        A("s_lshl_b32 s%d, s%d, 18\ns_add_u32 s%d, s%d, %d" % (S_T0, S_T2, S_T0, S_T0, KV + 4096 * WAH + o))
        A("s_add_u32 s%d, s%d, s%d\ns_addc_u32 s%d, s%d, 0" % (S_PB, ptr(12), S_T0, S_PB + 1, ptr(12) + 1))
    def warm(kind, half):
        if "nowarm" in OPT: return
        A("s_cmp_ge_u32 s%d, %d\ns_cbranch_scc1 CH_NW%s%d" % (S_STEP, nstep - WAH, kind, half))
        n = 10 if kind == "v1" else 11
        for r in range(half * n, half * n + n):
            A("s_load_dword s20, s[%d:%d], 0x%x" % (S_PB, S_PB + 1, r * 64))
        if half: A("s_add_u32 s%d, s%d, 4096\ns_addc_u32 s%d, s%d, 0" % (S_PB, S_PB, S_PB + 1, S_PB + 1))
        A.label("CH_NW%s%d" % (kind, half))
    warm_init("k")
    A("s_barrier")
    A("v_mov_b32 v24, %d\nds_read_b32 v25, v24\ns_waitcnt lgkmcnt(0)\nv_add_u32 v8, v8, v25" % PSEL_LDS)
    A.label("CH_W7_LOOP")
    if gate:
        A("s_add_u32 s%d, s%d, %d\ns_and_b32 s%d, s%d, 0x47\ns_cbranch_scc1 CH_W7_NG" % (S_T0, S_STEP, WAH, S_T1, S_T0))
        A("s_lshl_b32 s%d, s%d, 4\ns_add_u32 s%d, s%d, %d" % (S_T0, S_T0, S_T0, S_T0, FLAGS + F_KV * 128))
        kv_gate("CH_W7_G", S_T0)
        A.label("CH_W7_NG")
    warm("k", 0)
    A("s_barrier")
    resets("s%d" % S_RST, "s%d" % S_PRST)
    A("s_barrier")
    last()
    warm("k", 1)
    A("s_barrier")
    wo_phase("7")
    dump("7")
    zero_ao()
    next_slots(A)
    A("s_barrier")
    A("s_branch CH_W7_LOOP")
    flush()

    A.label("CH_W6")
    for t in range(1, 4):
        A("s_add_u32 s%d, s%d, %d\ns_and_b32 s%d, s%d, 3" % (S_T0, S_X, t, S_T0, S_T0))
        part_off(A, S_T0, S_T0)
        A("v_add_u32 v%d, s%d, v2" % (59 + t, S_T0))
    warm_init("v1")
    A("s_barrier")
    A("v_mov_b32 v24, %d\nds_read_b32 v25, v24\ns_waitcnt lgkmcnt(0)" % PSEL_LDS)
    for t in range(3): A("v_add_u32 v%d, v%d, v25" % (60 + t, 60 + t))
    A.label("CH_W6_LOOP")
    warm("v1", 0)
    A("s_barrier\ns_barrier")
    last()
    warm("v1", 1)
    A("s_barrier")
    wo_phase("6")
    red_o(2)
    backoff("p", 8)
    st(4)
    A("s_mov_b32 s%d, 0" % S_TO)
    A.label("CH_PP")
    for u in range(3): A("buffer_load_dwordx4 %s, v%d, s[8:11], s%d offen sc1" % (vr(R + 4 * u, 4), 60 + u, S_PCUR))
    A("s_waitcnt vmcnt(2)")
    pk_add(A, RR + 4, AO, R, 4)
    A("s_waitcnt vmcnt(1)")
    pk_add(A, RR + 4, RR + 4, R + 4, 4)
    A("s_waitcnt vmcnt(0)")
    pk_add(A, RR + 4, RR + 4, R + 8, 4)
    A("v_pk_add_f32 %s, %s, %s" % (vr(RR + 2, 2), vr(RR + 4, 2), vr(RR + 6, 2)))
    A("v_cvt_pk_bf16_f32 v%d, v%d, v%d" % (RR, RR + 4, RR + 5))
    A("v_cmp_u_f32 vcc, v%d, v%d" % (RR + 2, RR + 3))
    A("v_cvt_pk_bf16_f32 v%d, v%d, v%d" % (RR + 1, RR + 6, RR + 7))
    A("s_cbranch_vccnz CH_PP_X")
    T = Asm(); A0 = A.lines; A.lines = T.lines
    A.label("CH_PP_X")
    A("s_add_u32 s%d, s%d, 1\ns_and_b32 s%d, s%d, 15\ns_cbranch_scc1 CH_PP" % (S_TO, S_TO, S_T0, S_TO))
    A("s_cmp_gt_u32 s%d, %d\ns_cbranch_scc1 %s" % (S_TO, TIMEOUT, ab))
    check(A, range(R, R + 12), 5, "CH_PP")
    A("s_branch CH_PP_OK")
    tails.extend(T.lines); A.lines = A0
    A.label("CH_PP_OK")
    st(5); cnt()
    A("v_min_u32 v%d, -2, v%d\nv_min_u32 v%d, -2, v%d" % (RR, RR, RR + 1, RR + 1))
    A("buffer_store_dwordx2 %s, v7, s[8:11], s%d offen offset:%d %s" % (vr(RR, 2), S_NXT, E_MEM, intra))
    A("s_barrier")
    st(6)
    dump("6")
    zero_ao()
    next_slots(A)
    A("s_branch CH_W6_LOOP")
    flush()

    A.label("CH_W4")
    for sl in range(4):
        A("s_mov_b32 s%d, %d\ns_mov_b32 s%d, %d" % (S_T1, EXCH + sl * SLOT, S_T3, sl * SLOT // 2))
        resets("s%d" % S_T1, "s%d" % S_T3)
        A("s_add_u32 s%d, s%d, 0x2000" % (S_T3, S_T3))
        A("buffer_store_dwordx4 v[12:15], v8, s[8:11], s%d offen sc1" % S_T3)
    mk_srd(A, S_W, ptr(1), 16384)
    A("v_and_b32 v10, 7, v0\nv_lshlrev_b32 v10, 11, v10\nv_lshrrev_b32 v11, 4, v0\nv_lshl_add_u32 v10, v11, 4, v10")
    A("s_lshl_b32 s%d, s%d, 6" % (S_T0, S_C))
    A("buffer_load_dwordx4 v[16:19], v10, s[%d:%d], s%d offen" % (S_W, S_W + 3, S_T0))
    A("s_waitcnt vmcnt(0)")
    if ready_wait: ready_wait(A)
    A("v_mov_b32 v24, %d\nds_write_b32 v24, v25\nv_add_u32 v8, v8, v25\ns_waitcnt lgkmcnt(0)" % PSEL_LDS)
    for i in range(4): A("v_min_u32 v%d, -2, v%d" % (16 + i, 16 + i))
    A("s_mov_b64 exec, s[%d:%d]" % (S_MLO, S_MLO + 1))
    A("buffer_store_dwordx4 v[16:19], v6, s[8:11], s%d offen offset:%d %s" % (S_CUR, E_MEM, intra))
    A("s_mov_b64 exec, -1")
    A("s_setprio 2")
    warm_init("v0")
    A("s_barrier")
    A.label("CH_W4_LOOP")
    warm("v0", 0)
    A("s_barrier\ns_barrier")
    last()
    warm("v0", 1)
    A("s_barrier")
    wo_phase("4")
    red_o(0)
    A("buffer_store_dwordx4 %s, v8, s[8:11], s%d offen sc1" % (vr(AO, 4), S_PCUR))
    st(4)
    dump("4")
    next_slots(A)
    zero_ao()
    A("s_barrier")
    A("s_branch CH_W4_LOOP")
    flush()

    A.label("CH_W5")
    KT, VT, X, T01, TM, T1, VM, P, PM, ONE, LA, OA, OS, TMP = 64, 72, 80, 84, 88, 92, 96, 100, 104, 108, 112, 136, 144, 148
    RB = 152
    Z = RB + 8; ZM = Z + 4
    A("v_bfe_u32 v10, v0, 2, 2\nv_lshlrev_b32 v10, 3, v10\nv_and_b32 v11, 3, v0\nv_add_u32 v10, v10, v11")
    A("v_lshrrev_b32 v11, 4, v0\nv_lshlrev_b32 v11, 4, v11")
    A("v_lshl_add_u32 v56, v10, 6, v11")
    A("s_lshl_b32 s%d, s%d, 18\ns_add_u32 s%d, s%d, %d" % (S_KOFF, S_T2, S_KOFF, S_KOFF, KV))
    A("s_lshl_b32 s%d, s%d, 6\ns_add_u32 s%d, s%d, %d" % (S_KMOFF, S_T2, S_KMOFF, S_KMOFF, KM))
    A("s_lshl_b32 s%d, s%d, 9\ns_add_u32 s%d, s%d, %d" % (S_VMOFF, S_T2, S_VMOFF, S_VMOFF, VMT))
    A("v_and_b32 v60, 7, v0\nv_lshl_add_u32 v60, v60, 13, v11")
    A("v_lshlrev_b32 v61, 4, v10\nv_bfe_u32 v62, v0, 4, 1\nv_lshl_add_u32 v61, v62, 3, v61")
    A("v_bfe_u32 v62, v0, 4, 1\nv_lshlrev_b32 v62, 7, v62\nv_and_b32 v63, 7, v0\nv_lshl_add_u32 v62, v63, 4, v62\nv_add_u32 v62, 0x400, v62")
    A("s_mul_i32 s%d, s%d, 1280\ns_add_u32 s%d, s%d, %d\nv_add_u32 v63, s%d, v62" % (S_T0, S_T2, S_T0, S_T0, E_SX, S_T0))
    for t in range(1, 4):
        A("s_add_u32 s%d, s%d, %d\ns_and_b32 s%d, s%d, 3\ns_and_b32 s%d, s%d, 0xfc\ns_add_u32 s%d, s%d, s%d\ns_mul_i32 s%d, s%d, 1280\ns_add_u32 s%d, s%d, %d" % (S_T0, S_T2, t, S_T0, S_T0, S_T1, S_T2, S_T0, S_T0, S_T1, S_T0, S_T0, S_T0, S_T0, E_SX))
        A("v_add_u32 v%d, s%d, v2\nv_add_u32 v%d, s%d, v62" % (183 + t, S_T0, 186 + t, S_T0))
    A("s_mov_b32 s%d, 0x%x" % (S_SC, f32bits(128 ** -0.5 * math.log2(math.e))))
    for i in range(4): A("v_mov_b32 v%d, 0x3f803f80" % (ONE + i))
    for i in range(2): A("v_mov_b32 v%d, 0" % (PM + i))
    for i in range(24): A("v_mov_b32 v%d, 0" % (LA + i))
    def prefetch():
        for i in range(4):
            A("buffer_load_dwordx4 %s, v56, s[8:11], s%d offen offset:%d sc1" % (vr(KT + 4 * i, 4), S_KOFF, (i >> 1) * 2048 + (i & 1) * 256))
        A("s_add_u32 s%d, s%d, 4096" % (S_KOFF, S_KOFF))
    def red8(base, dst):
        for w in range(4):
            for a in range(2):
                A("ds_read_b128 %s, v2 offset:%d" % (vr(RB + w * 8 + a * 4, 4), base + w * 2048 + a * 1024))
    def sum8(dst):
        A("s_waitcnt lgkmcnt(4)")
        pk_add(A, RB, RB, RB + 8, 8)
        A("s_waitcnt lgkmcnt(2)")
        pk_add(A, RB, RB, RB + 16, 8)
        A("s_waitcnt lgkmcnt(0)")
        pk_add(A, RB, RB, RB + 24, 8)
        for i in range(4): A("v_cvt_pk_bf16_f32 v%d, v%d, v%d" % (dst + i, RB + 2 * i, RB + 2 * i + 1))
    if gate:
        A("s_mov_b32 s%d, %d" % (S_T0, FLAGS + F_KV * 128))
        kv_gate("CH_W5_G", S_T0)
    prefetch()
    A("s_setprio 2")
    A("s_barrier")
    A.label("CH_W5_LOOP")
    A("s_waitcnt vmcnt(0)")
    A("s_barrier")
    st(0)
    ft(0)
    red8(RED_QK, X); ft(1); sum8(X); ft(2)
    A("v_mfma_f32_16x16x32_bf16 %s, %s, %s, 0" % (vr(T01, 4), vr(KT, 4), vr(X, 4)))
    A("v_mfma_f32_16x16x32_bf16 %s, %s, %s, 0" % (vr(T1, 4), vr(KT + 4, 4), vr(X, 4)))
    A("v_mfma_f32_16x16x32_bf16 %s, %s, %s, 0" % (vr(TM, 4), vr(X, 4), vr(X, 4)))
    A("s_mov_b64 exec, s[%d:%d]" % (S_MLO, S_MLO + 1))
    A("buffer_store_dwordx4 %s, v9, s[8:11], s%d offen %s" % (vr(T01, 4), S_CUR, intra))
    A("buffer_store_dwordx4 %s, v9, s[8:11], s%d offen offset:128 %s" % (vr(T1, 4), S_CUR, intra))
    A("s_mov_b64 exec, s[%d:%d]" % (S_MM, S_MM + 1))
    A("buffer_store_dwordx4 %s, v63, s[8:11], s%d offen %s" % (vr(TM, 4), S_CUR, intra))
    A("s_mov_b64 exec, -1")
    st(1); ft(3)
    def vm_store():
        A("s_not_b64 exec, s[%d:%d]" % (S_MLO, S_MLO + 1))
        A("buffer_store_dwordx4 %s, v60, s[8:11], s%d offen" % (vr(X, 4), S_KMOFF))
        A("s_mov_b64 exec, s[%d:%d]" % (S_G2, S_G2 + 1))
        A("buffer_store_dwordx2 %s, v61, s[8:11], s%d offen" % (vr(VM, 2), S_VMOFF))
        A("buffer_store_dwordx2 %s, v61, s[8:11], s%d offen offset:64" % (vr(VM + 2, 2), S_VMOFF))
        A("s_mov_b64 exec, -1")
        A("s_add_u32 s%d, s%d, 0x10000\ns_add_u32 s%d, s%d, 0x10000" % (S_KMOFF, S_KMOFF, S_VMOFF, S_VMOFF))
    def sx_issue():
        for t in range(3): A("buffer_load_dwordx4 %s, v%d, s[8:11], s%d offen sc1" % (vr(LA + 8 * t, 4), 184 + t, S_CUR))
        A("s_mov_b64 exec, s[%d:%d]" % (S_MM, S_MM + 1))
        for t in range(3): A("buffer_load_dwordx4 %s, v%d, s[8:11], s%d offen sc1" % (vr(LA + 8 * t + 4, 4), 187 + t, S_CUR))
        A("s_mov_b64 exec, -1")
    for i in range(4): A("v_mov_b32_dpp v%d, v%d row_ror:8 row_mask:0xf bank_mask:0xc" % (T01 + i, T1 + i))
    for i in range(4): A("v_cndmask_b32 v%d, 0, v%d, s[%d:%d]" % (TM + i, TM + i, S_MM, S_MM + 1))
    backoff("s", 3)
    sx_issue()
    A("s_barrier")
    red8(RED_V, VM)
    sum8(VM)
    A("s_mov_b32 s%d, 0" % S_TO)
    A("s_cmp_eq_u32 s%d, %d\ns_cbranch_scc1 CH_W5_END" % (S_STEP, nstep - 1))
    T = Asm(); A0 = A.lines; A.lines = T.lines
    A.label("CH_W5_END")
    vm_store()
    A("s_waitcnt vmcnt(0)\ns_branch %s" % done)
    A.label("CH_SP_X")
    A("s_add_u32 s%d, s%d, 1\ns_and_b32 s%d, s%d, 15\ns_cbranch_scc1 CH_SP" % (S_TO, S_TO, S_T0, S_TO))
    A("s_cmp_gt_u32 s%d, %d\ns_cbranch_scc1 %s" % (S_TO, TIMEOUT, ab))
    check(A, range(LA, LA + 24), 5, "CH_SP")
    A("s_branch CH_SP_OK")
    A.label("CH_SP")
    sx_issue()
    A("s_branch CH_SP_W")
    tails.extend(T.lines); A.lines = A0
    A.label("CH_SP_W")
    A("s_waitcnt vmcnt(4)")
    pk_add(A, Z, T01, LA, 4)
    pk_add(A, Z, Z, LA + 8, 4)
    A("s_waitcnt vmcnt(2)")
    pk_add(A, Z, Z, LA + 16, 4)
    pk_add(A, Z + 4, TM, LA + 4, 4)
    A("s_waitcnt vmcnt(0)")
    pk_add(A, RB, LA + 12, LA + 20, 4)
    A("v_pk_add_f32 %s, %s, %s" % (vr(RB + 4, 2), vr(Z, 2), vr(Z + 2, 2)))
    pk_add(A, Z + 4, Z + 4, RB, 4)
    A("v_max3_f32 v%d, v%d, v%d, v%d" % (TMP, Z, Z + 1, Z + 2))
    A("v_pk_add_f32 %s, %s, %s" % (vr(RB + 4, 2), vr(RB + 4, 2), vr(Z + 4, 2)))
    A("v_max_f32 v%d, v%d, v%d" % (TMP, TMP, Z + 3))
    A("v_pk_add_f32 %s, %s, %s" % (vr(RB + 4, 2), vr(RB + 4, 2), vr(Z + 6, 2)))
    A("s_mov_b64 exec, s[%d:%d]" % (S_MM, S_MM + 1))
    A("v_max3_f32 v%d, v%d, v%d, v%d\nv_max3_f32 v%d, v%d, v%d, v%d" % (TMP, TMP, Z + 4, Z + 5, TMP, TMP, Z + 6, Z + 7))
    A("s_mov_b64 exec, -1")
    A("v_cmp_u_f32 vcc, v%d, v%d" % (RB + 4, RB + 5))
    A("v_max_f32_dpp v%d, v%d, v%d row_ror:8 row_mask:0xf bank_mask:0xf" % (TMP, TMP, TMP))
    A("s_cbranch_vccnz CH_SP_X")
    A.label("CH_SP_OK")
    ft(4)
    st(4); cnt()
    A("v_mov_b32 v%d, v%d\nv_permlane16_swap_b32 v%d, v%d\nv_max_f32 v%d, v%d, v%d" % (TMP + 1, TMP, TMP, TMP + 1, TMP, TMP, TMP + 1))
    A("v_mov_b32 v%d, v%d\nv_permlane32_swap_b32 v%d, v%d\nv_max_f32 v%d, v%d, v%d" % (TMP + 1, TMP, TMP, TMP + 1, TMP, TMP, TMP + 1))
    A("v_mul_f32 v%d, s%d, v%d" % (TMP, S_SC, TMP))
    for i in range(4): A("v_fma_f32 v%d, v%d, s%d, -v%d" % (ZM + i, ZM + i, S_SC, TMP))
    for i in range(4): A("v_fma_f32 v%d, v%d, s%d, -v%d" % (Z + i, Z + i, S_SC, TMP))
    for i in range(4): A("v_exp_f32 v%d, v%d" % (ZM + i, ZM + i))
    for i in range(2): A("v_exp_f32 v%d, v%d" % (Z + i, Z + i))
    A("s_mov_b64 exec, s[%d:%d]" % (S_MM, S_MM + 1))
    A("v_cvt_pk_bf16_f32 v%d, v%d, v%d\nv_cvt_pk_bf16_f32 v%d, v%d, v%d" % (PM, ZM, ZM + 1, PM + 1, ZM + 2, ZM + 3))
    A("s_mov_b64 exec, -1")
    for i in range(2, 4): A("v_exp_f32 v%d, v%d" % (Z + i, Z + i))
    A("v_mfma_f32_16x16x16_bf16 %s, %s, %s, 0" % (vr(OS, 4), vr(ONE, 2), vr(PM, 2)))
    A("v_cvt_pk_bf16_f32 v%d, v%d, v%d\nv_cvt_pk_bf16_f32 v%d, v%d, v%d" % (P, Z, Z + 1, P + 1, Z + 2, Z + 3))
    A("v_mfma_f32_16x16x16_bf16 %s, %s, %s, 0" % (vr(OA, 4), vr(VM, 2), vr(PM, 2)))
    A("v_mfma_f32_16x16x16_bf16 %s, %s, %s, 0" % (vr(OA + 4, 4), vr(VM + 2, 2), vr(PM, 2)))
    A("v_mov_b32_dpp v%d, v%d row_ror:8 row_mask:0xf bank_mask:0xf\nv_mov_b32_dpp v%d, v%d row_ror:8 row_mask:0xf bank_mask:0xf" % (P + 2, P, P + 3, P + 1))
    A("v_mfma_f32_16x16x32_bf16 %s, %s, %s, %s" % (vr(OS, 4), vr(ONE, 4), vr(P, 4), vr(OS, 4)))
    A("v_mfma_f32_16x16x32_bf16 %s, %s, %s, %s" % (vr(OA, 4), vr(VT, 4), vr(P, 4), vr(OA, 4)))
    A("v_mfma_f32_16x16x32_bf16 %s, %s, %s, %s" % (vr(OA + 4, 4), vr(VT + 4, 4), vr(P, 4), vr(OA + 4, 4)))
    ft(5)
    A("s_add_u32 s%d, s%d, %d" % (S_T0, S_CUR, E_OX))
    A("v_rcp_f32 v%d, v%d" % (TMP, OS))
    for i in range(0, 8, 2): A("v_pk_mul_f32 %s, %s, %s op_sel_hi:[1,0]" % (vr(OA + i, 2), vr(OA + i, 2), vr(TMP, 2)))
    for i in range(4): A("v_cvt_pk_bf16_f32 v%d, v%d, v%d" % (T1 + i, OA + 2 * i, OA + 2 * i + 1))
    for i in range(4): A("v_min_u32 v%d, -2, v%d" % (T1 + i, T1 + i))
    A("s_mov_b64 exec, s[%d:%d]" % (S_MLO, S_MLO + 1))
    A("buffer_store_dwordx4 %s, v6, s[8:11], s%d offen %s" % (vr(T1, 4), S_T0, intra))
    A("s_mov_b64 exec, -1")
    st(5); ft(6)
    A("s_barrier")
    wo_phase("5")
    st(6)
    if "novm" not in OPT: vm_store()
    if "nopf" not in OPT: prefetch()
    if stamps:
        st(2); A("s_waitcnt vmcnt(0)"); st(3)
    dump("5")
    zero_ao()
    next_slots(A)
    A("s_barrier")
    A("s_branch CH_W5_LOOP")
    flush()
```

```python
from asmlib import *

G_SA, G_SW, G_SC = 12, 16, 20
G_AOFF, G_WOFF = 24, 25
G_COFF, G_LR, G_RS, G_CS = 26, 27, 28, 29
G_LDA, G_LDW = 30, 31
G_WAVE = 34
G_T0, G_T1, G_RA, G_RW, G_WA, G_WW, G_CNT, G_WSTEP, G_MA, G_MW = 45, 46, 47, 48, 49, 50, 51, 52, 53, 54
TN, BK = 128, 64
W_SLOT = BK * TN * 2

class Gemm:
    def __init__(self, A, MT=4, NSL=3, aflag="sc1"):
        self.A = A; self.MT = MT; self.NSL = NSL; self.aflag = aflag
        self.A_SLOT = 64 * MT * BK * 2
        self.W_BASE = NSL * self.A_SLOT
        self.LDS = NSL * (self.A_SLOT + W_SLOT)
        self.ND = MT + 2
        self.NS = 2 * MT
        self.ACC = 64; self.F = [128, 160]
        self.VA, self.VW, self.BA, self.BW, self.CA, self.CW, self.T = 2, 6, 8, 10, 14, 16, 20
        self.VWK = 24
        self.VE = 26

    def setup_static(self):
        A, T, MT = self.A, self.T, self.MT
        A("s_and_b32 s%d, s%d, 1\ns_lshl_b32 s%d, s%d, 2" % (G_T0, G_WAVE, G_T0, G_T0))
        A("v_lshrrev_b32 v%d, 4, v0\nv_or_b32 v%d, s%d, v%d" % (T, T + 1, G_T0, T))
        A("v_bfe_u32 v%d, v0, 1, 3\nv_xor_b32 v%d, v%d, v%d" % (T + 2, T + 2, T + 2, T + 1))
        A("v_and_b32 v%d, 1, v0\nv_lshl_or_b32 v%d, v%d, 1, v%d\nv_lshlrev_b32 v%d, 4, v%d" % (T + 3, T + 2, T + 2, T + 3, self.VWK + 1, T + 2))
        A("s_lshl_b32 s%d, s%d, 3\nv_add_u32 v%d, s%d, v%d" % (G_T0, G_WAVE, self.VWK, G_T0, T))
        A("s_mul_i32 s%d, s%d, %d" % (G_MA, G_WAVE, 1024 * MT))
        A("s_lshl_b32 s%d, s%d, 11\ns_add_u32 s%d, s%d, %d" % (G_MW, G_WAVE, G_MW, G_MW, self.W_BASE))
        BA, BW = self.BA, self.BW
        A("v_and_b32 v%d, 15, v0\nv_lshrrev_b32 v%d, 4, v0" % (T, T + 1))
        A("v_bfe_u32 v%d, v0, 1, 3\nv_xor_b32 v%d, v%d, v%d" % (T + 2, T + 2, T + 2, T + 1))
        A("v_lshlrev_b32 v%d, 7, v%d\nv_lshl_add_u32 v%d, v%d, 4, v%d" % (T, T, BA, T + 2, T))
        A("s_lshr_b32 s%d, s%d, 1\ns_mul_i32 s%d, s%d, %d" % (G_T0, G_WAVE, G_T0, G_T0, 2048 * MT))
        A("v_add_u32 v%d, s%d, v%d\nv_xor_b32 v%d, 64, v%d" % (BA, G_T0, BA, BA + 1, BA))
        A("v_bfe_u32 v%d, v0, 2, 2" % T)
        A("v_lshl_add_u32 v%d, v%d, 3, v%d\nv_lshlrev_b32 v%d, 8, v%d" % (T + 2, T + 1, T, T + 2, T + 2))
        A("v_and_b32 v%d, 3, v0\nv_lshl_add_u32 v%d, v%d, 3, v%d" % (T + 3, T + 2, T + 3, T + 2))
        A("v_add_u32 v%d, %d, v%d" % (T + 2, self.W_BASE, T + 2))
        A("v_bfe_u32 v%d, v0, 4, 1\nv_lshl_or_b32 v%d, v%d, 2, v%d" % (T + 3, T, T + 3, T))
        A("s_and_b32 s%d, s%d, 1\ns_lshl_b32 s%d, s%d, 2" % (G_T0, G_WAVE, G_T0, G_T0))
        for t in range(4):
            A("s_or_b32 s%d, s%d, %d" % (G_T1, G_T0, t))
            A("v_xor_b32 v%d, s%d, v%d\nv_lshl_add_u32 v%d, v%d, 5, v%d" % (T + 3, G_T1, T, BW + t, T + 3, T + 2))
        VE = self.VE
        A("v_and_b32 v%d, 15, v0\nv_bfe_u32 v%d, v0, 4, 1\nv_lshrrev_b32 v%d, 5, v0" % (VE, VE + 1, T))
        A("v_lshlrev_b32 v%d, 5, v%d\nv_lshl_add_u32 v%d, v%d, 4, v%d" % (VE + 1, VE + 1, VE + 1, T, VE + 1))

    def setup_lda(self):
        A, T, MT = self.A, self.T, self.MT
        A("v_lshrrev_b32 v%d, 3, v0" % T)
        A("s_mul_i32 s%d, s%d, %d\nv_add_u32 v%d, s%d, v%d" % (G_T0, G_WAVE, 8 * MT, T, G_T0, T))
        for j in range(MT):
            A("v_add_u32 v%d, %d, v%d" % (T + 1, 8 * j, T))
            A("v_bfe_u32 v%d, v%d, 1, 3" % (T + 2, T + 1))
            A("v_and_b32 v%d, 7, v0\nv_xor_b32 v%d, v%d, v%d" % (T + 3, T + 2, T + 2, T + 3))
            A("v_mul_lo_u32 v%d, v%d, s%d" % (T + 1, T + 1, G_LDA))
            A("v_lshl_add_u32 v%d, v%d, 4, v%d" % (self.VA + j, T + 2, T + 1))
            if j: A("v_subrev_u32 v%d, %d, v%d" % (self.VA + j, 1024 * j, self.VA + j))

    def setup_ldw(self):
        A, VW = self.A, self.VW
        A("v_mul_lo_u32 v%d, v%d, s%d" % (VW, self.VWK, G_LDW))
        A("s_lshl_b32 s%d, s%d, 2\ns_sub_u32 s%d, s%d, 1024\ns_lshl_b32 s%d, s%d, 6" % (G_T0, G_LDW, G_T0, G_T0, G_WSTEP, G_LDW))
        A("v_add_u32 v%d, v%d, v%d\nv_add_u32 v%d, s%d, v%d" % (VW, VW, self.VWK + 1, VW + 1, G_T0, VW))

    def dma(self):
        A = self.A
        A("s_add_u32 m0, s%d, s%d" % (G_MA, G_WA))
        for j in range(self.MT):
            A("buffer_load_dwordx4 v%d, s[%d:%d], s%d offen offset:%d %s lds" % (self.VA + j, G_SA, G_SA + 3, G_AOFF, 1024 * j, self.aflag))
        A("s_add_u32 m0, s%d, s%d" % (G_MW, G_WW))
        for j in range(2):
            A("buffer_load_dwordx4 v%d, s[%d:%d], s%d offen offset:%d lds" % (self.VW + j, G_SW, G_SW + 3, G_WOFF, 1024 * j))
        A("s_add_u32 s%d, s%d, 128\ns_add_u32 s%d, s%d, s%d" % (G_AOFF, G_AOFF, G_WOFF, G_WOFF, G_WSTEP))
        A("s_add_u32 s%d, s%d, %d\ns_add_u32 s%d, s%d, %d" % (G_WA, G_WA, self.A_SLOT, G_WW, G_WW, W_SLOT))
        A("s_cmp_eq_u32 s%d, %d\ns_cselect_b32 s%d, 0, s%d\ns_cselect_b32 s%d, 0, s%d" % (G_WA, self.NSL * self.A_SLOT, G_WA, G_WA, G_WW, G_WW))

    def set_addr(self):
        A = self.A
        for i in range(2): A("v_add_u32 v%d, s%d, v%d" % (self.CA + i, G_RA, self.BA + i))
        for t in range(4): A("v_add_u32 v%d, s%d, v%d" % (self.CW + t, G_RW, self.BW + t))
        A("s_add_u32 s%d, s%d, %d\ns_add_u32 s%d, s%d, %d" % (G_RA, G_RA, self.A_SLOT, G_RW, G_RW, W_SLOT))
        A("s_cmp_eq_u32 s%d, %d\ns_cselect_b32 s%d, 0, s%d\ns_cselect_b32 s%d, 0, s%d" % (G_RA, self.NSL * self.A_SLOT, G_RA, G_RA, G_RW, G_RW))

    def reads(self, f, ks):
        L = []; F = self.F
        for m in range(4):
            if m < self.MT: L.append("ds_read_b128 %s, v%d offset:%d" % (vr(F[f] + 4 * m, 4), self.CA + ks, 2048 * m))
            for hf in range(2):
                L.append("ds_read_b64_tr_b16 %s, v%d offset:%d" % (vr(F[f] + 16 + 4 * m + 2 * hf, 2), self.CW + m, (32 * ks + 4 * hf) * 256))
        return L

    def mfmas(self, f, mode, zero=False):
        L = []; F = self.F
        for m in range(self.MT):
            for n in range(4):
                a, b = vr(F[f] + 4 * m, 4), vr(F[f] + 16 + 4 * n, 4)
                acc = vr(self.ACC + 16 * m + 4 * n, 4)
                if mode == "row": a, b = b, a
                L.append("v_mfma_f32_16x16x32_bf16 %s, %s, %s, %s" % (acc, a, b, "0" if zero else acc))
        return L

    def inter(self, ms, others):
        A = self.A; o = list(others)
        per = max(1, -(-len(o) // max(1, len(ms))))
        for m in ms:
            A(m)
            for k in range(per):
                if o: A(o.pop(0))
        for x in o: A(x)

    def cold(self, full_wait=True):
        A = self.A
        A("s_mov_b32 s%d, 0\ns_mov_b32 s%d, 0\ns_mov_b32 s%d, 0\ns_mov_b32 s%d, 0" % (G_WA, G_WW, G_RA, G_RW))
        for i in range(self.NSL): self.dma()
        A("s_waitcnt vmcnt(%d)\ns_barrier" % (0 if full_wait else (self.NSL - 1) * self.ND))
        self.set_addr()
        for r in self.reads(0, 0): A(r)

    def step(self, mode, do_dma, vm, more=True, zero=False, after_barrier=None):
        A = self.A
        A("s_waitcnt lgkmcnt(0)")
        self.inter(self.mfmas(0, mode, zero), self.reads(1, 1))
        if more:
            A("s_waitcnt vmcnt(%d) lgkmcnt(0)\ns_barrier" % vm)
            self.set_addr()
            ms = self.mfmas(1, mode)
            k = len(ms) * 3 // 4
            self.inter(ms[:k], self.reads(0, 0))
            if after_barrier: after_barrier()
            if do_dma: self.dma()
            self.inter(ms[k:], [])
        else:
            A("s_waitcnt lgkmcnt(0)")
            self.inter(self.mfmas(1, mode), [])

    def epilogue(self, mode, store_flags):
        A, T, MT, ACC = self.A, self.T, self.MT, self.ACC
        P = self.F[1]
        A("s_lshr_b32 s%d, s%d, 1\ns_and_b32 s%d, s%d, 1\ns_lshl_b32 s%d, s%d, 1" % (G_T0, G_WAVE, G_T1, G_WAVE, G_T1, G_T1))
        A("v_mul_lo_u32 v%d, v%d, s%d" % (T, self.VE, G_LR))
        if mode == "row":
            NO, NP = MT, 2
            if MT == 1:
                A("s_and_b32 s%d, s%d, 1\ns_mul_i32 s%d, s%d, s%d\ns_lshl_b32 s%d, s%d, 4\ns_add_u32 s%d, s%d, s%d\ns_lshr_b32 s%d, s%d, 1" % (G_CNT, G_T0, G_CNT, G_CNT, G_LR, G_CNT, G_CNT, G_COFF, G_COFF, G_CNT, G_T0, G_T0))
            else:
                A("s_mul_i32 s%d, s%d, %d" % (G_T0, G_T0, MT // 2))
            A("s_mul_i32 s%d, s%d, s%d\ns_mul_i32 s%d, s%d, s%d" % (G_T0, G_T0, G_RS, G_T1, G_T1, G_CS))
        else:
            NO, NP = 4, MT // 2
            A("s_mul_i32 s%d, s%d, %d" % (G_T0, G_T0, MT // 2))
            A("s_mul_i32 s%d, s%d, s%d\ns_mul_i32 s%d, s%d, s%d" % (G_T0, G_T0, G_CS, G_T1, G_T1, G_RS))
        A("s_add_u32 s%d, s%d, s%d\ns_add_u32 s%d, s%d, s%d" % (G_COFF, G_COFF, G_T0, G_COFF, G_COFF, G_T1))
        A("v_add_u32 v%d, v%d, v%d" % (T, T, self.VE + 1))
        A("s_lshl_b32 s%d, s%d, 4\nv_add_u32 v%d, s%d, v%d" % (G_T0, G_LR, T + 1, G_T0, T))
        n = 0
        for o in range(NO):
            for p in range(NP):
                if mode == "row": t0, t1 = ACC + 16 * o + 8 * p, ACC + 16 * o + 8 * p + 4
                else: t0, t1 = ACC + 16 * (2 * p) + 4 * o, ACC + 16 * (2 * p + 1) + 4 * o
                d = P + 4 * n; n += 1
                A("v_cvt_pk_bf16_f32 v%d, v%d, v%d\nv_cvt_pk_bf16_f32 v%d, v%d, v%d" % (d, t0, t0 + 1, d + 1, t0 + 2, t0 + 3))
                A("v_cvt_pk_bf16_f32 v%d, v%d, v%d\nv_cvt_pk_bf16_f32 v%d, v%d, v%d" % (d + 2, t1, t1 + 1, d + 3, t1 + 2, t1 + 3))
        n = 0
        for o in range(NO):
            if o == 2: A("s_add_u32 s%d, s%d, s%d" % (G_COFF, G_COFF, G_RS))
            if o % 2 == 0 and NP > 1: A("s_add_u32 s%d, s%d, s%d" % (G_T1, G_COFF, G_CS))
            for p in range(NP):
                d = P + 4 * n; n += 1
                A("v_permlane16_swap_b32 v%d, v%d\nv_permlane16_swap_b32 v%d, v%d" % (d, d + 2, d + 1, d + 3))
                A("buffer_store_dwordx4 %s, v%d, s[%d:%d], s%d offen %s" % (vr(d, 4), T + (o & 1), G_SC, G_SC + 3, G_T1 if p else G_COFF, store_flags))

    def simple(self, tag, mode, nk, store_flags=""):
        A = self.A; ND, NSL = self.ND, self.NSL
        self.setup_static(); self.setup_lda(); self.setup_ldw()
        self.cold(full_wait=False)
        vm = (NSL - 2) * ND
        self.step(mode, True, vm, zero=True)
        A("s_mov_b32 s%d, %d" % (G_CNT, nk - NSL - 1))
        A.label("G%s_LOOP" % tag)
        self.step(mode, True, vm)
        A("s_sub_u32 s%d, s%d, 1\ns_cmp_lg_u32 s%d, 0\ns_cbranch_scc1 G%s_LOOP" % (G_CNT, G_CNT, G_CNT, tag))
        for i in range(NSL - 1): self.step(mode, False, (NSL - 2 - i) * ND)
        self.step(mode, False, 0, more=False)
        self.epilogue(mode, store_flags)
```

```python
KV   = 0x0000000
QX   = 0x2000000
OXA  = 0x3000000
KM   = 0x4000000
VMT  = 0x4400000
BQK  = 0x4800000
BVT  = 0x5000000
BO   = 0x5400000
EXCH = 0x5800000
SLOT = 0x80000
E_MEM = 0
E_OX  = 0x10000
E_SX  = 0x20000
PARTB = 0x5C00000
FLAGS = 0x5E00000
F_KV, F_B1, F_B2 = 0, 8, 16
WS_BYTES = 0x10000000
```

```python
import sys
from asmlib import *
from layout import *
from chain import *
from gemm2 import *
from attn import *

HDR = open("concat_heads__memory_aug_recurrent_mem_tr__mha_block__prompt.s.ref").read().split("; Override launch geometry")[0] if len(sys.argv) > 2 and sys.argv[2] == "hdr" else ""
STAMP = "bst" in OPT
A = Asm()
if HDR: A.raw(HDR.rstrip("\n"))
G = Gemm(A, 4, 3, aflag="" if "aplain" in OPT else "sc1")
G3 = Gemm(A, 1, 5, aflag="")
A.raw("; @launch kernel=main_kernel grid=(256,1,1) block=(512,1,1) lds=%d" % G.LDS)
A.raw("; @launch kernel=xattn_kernel grid=(256,1,1) block=(512,1,1) lds=0")
A.raw("; @launch kernel=outp_kernel grid=(256,1,1) block=(512,1,1) lds=%d" % G3.LDS)
A.raw('.amdgcn_target "amdgcn-amd-amdhsa--gfx950"\n.text')
LOADP = "s_load_dwordx16 s[60:75], s[0:1], 0\ns_load_dwordx8 s[76:83], s[0:1], 64\ns_load_dwordx2 s[84:85], s[0:1], 96"

A.raw(kernel_header("main_kernel"))
A("s_cmp_ge_u32 s2, 256\ns_cbranch_scc1 C_DONE")
A(LOADP)
A("v_lshrrev_b32 v1, 6, v0\nv_readfirstlane_b32 s34, v1")
A("s_waitcnt lgkmcnt(0)")
mk_srd(A, S_WS, ptr(12), WS_BYTES)
mk_srd(A, 16, ptr(11), 256)
A("s_cmp_eq_u32 s34, 1\ns_cbranch_scc1 R_PROBE")
A("s_cmp_lg_u32 s34, 0\ns_cbranch_scc1 R_WAIT")
A("s_getreg_b32 s40, hwreg(HW_REG_XCC_ID)\ns_and_b32 s40, s40, 7\ns_lshl_b32 s41, s40, 2")
A("v_mov_b32 v2, s41\nv_mov_b32 v3, 1\nv_lshlrev_b32 v4, 2, v0\nv_mov_b32 v5, 0")
A("s_lshl_b32 s43, s2, 7\ns_add_u32 s43, s43, %d" % FLAGS)
A("s_mov_b64 exec, 1")
A("buffer_store_dword v5, off, s[8:11], s43 sc1\ns_waitcnt vmcnt(0)")
A("buffer_atomic_add v3, v2, s[16:19], 0 offen sc0\ns_waitcnt vmcnt(0)")
A("v_readfirstlane_b32 s42, v3")
A("s_mov_b64 exec, 0xff")
poll_head(A, "R_POLL", "C_DONE")
A("buffer_load_dword v5, v4, s[16:19], 0 offen sc1\ns_waitcnt vmcnt(0)")
A("s_mov_b32 s50, 0\ns_mov_b32 s51, 0\ns_mov_b32 s52, 0")
for x in range(8):
    A("v_readlane_b32 s53, v5, %d" % x)
    A("s_add_u32 s50, s50, s53\ns_cmp_lg_u32 s53, 32\ns_cselect_b32 s52, 1, s52")
    A("s_cmp_gt_u32 s40, %d\ns_cselect_b32 s53, s53, 0\ns_add_u32 s51, s51, s53" % x)
A("s_cmp_lg_u32 s50, 256\ns_cbranch_scc1 R_POLL")
A("s_add_u32 s51, s51, s42\ns_lshl_b32 s52, s52, 8\ns_or_b32 s51, s51, s52")
A("v_mov_b32 v2, 0\nv_mov_b32 v3, s51\nds_write_b32 v2, v3\ns_mov_b64 exec, -1\ns_waitcnt lgkmcnt(0)\ns_branch R_WAIT")
A.label("R_PROBE")
A("v_mov_b32 v2, 0")
emit_probe(A, 29)
A("v_mov_b32 v3, s29\nds_write_b32 v2, v3 offset:4\ns_waitcnt lgkmcnt(0)")
A.label("R_WAIT")
A("s_barrier")
A("v_mov_b32 v2, 0\nds_read_b64 v[4:5], v2\ns_waitcnt lgkmcnt(0)\nv_readfirstlane_b32 s51, v4\nv_readfirstlane_b32 s29, v5\ns_barrier")
A("s_bfe_u32 s%d, s51, 0x30005\ns_and_b32 s%d, s51, 31" % (S_X, S_C))
A("s_cmp_ge_u32 s%d, 4\ns_cbranch_scc1 C_BULK" % S_X)
A("s_and_b32 s29, s29, 1\ns_lshl_b32 s29, s29, 16\ns_add_u32 s29, s29, 1")
def ready(A):
    A("v_mov_b32 v24, 64\nv_mov_b32 v25, s29")
    A("s_mov_b64 exec, 1")
    A("buffer_atomic_add v25, v24, s[16:19], 0 offen")
    poll_head(A, "CH_RDY", "C_DONE")
    A("buffer_load_dword v25, v24, s[16:19], 0 offen sc1\ns_waitcnt vmcnt(0)")
    A("v_and_b32 v26, 0xffff, v25\nv_cmp_ne_u32 vcc, 128, v26\ns_cbranch_vccnz CH_RDY")
    A("v_readfirstlane_b32 s29, v25\ns_lshr_b32 s29, s29, 16\ns_cmp_gt_u32 s29, 64\ns_cselect_b32 s29, 0x2000, 0")
    A("s_mov_b64 exec, -1")
    A("v_mov_b32 v25, s29")
if STAMP: A("s_memrealtime s[56:57]\ns_memtime s[58:59]\ns_waitcnt lgkmcnt(0)")
if "nochain" in OPT: A("s_branch C_FIN")
A("s_bitcmp1_b32 s51, 8\ns_cbranch_scc1 C_SLOW")
emit_chain(A, "C_FIN", intra="", ready_wait=ready, pfx="CF_", gate="nobulk" not in OPT, stamps=(20 if "cst" in OPT else 0))
A.label("C_SLOW")
emit_chain(A, "C_FIN", intra="sc1", ready_wait=ready, pfx="CS_", gate=True)
A.label("C_FIN")
if STAMP:
    A("s_memrealtime s[90:91]\ns_lshl_b32 s40, s%d, 5\ns_add_u32 s40, s40, s%d\ns_lshl_b32 s40, s40, 6\ns_add_u32 s40, s40, 0x6100000\ns_waitcnt lgkmcnt(0)\nv_mov_b32 v2, s90\ns_mov_b64 exec, 1" % (S_X, S_C))
    A("buffer_store_dword v2, off, s[8:11], s40")
    A("s_memtime s[92:93]\ns_waitcnt lgkmcnt(0)\ns_sub_u32 s92, s92, s58\ns_sub_u32 s90, s90, s56\nv_mov_b32 v4, s92\nv_mov_b32 v5, s90")
    A("buffer_store_dwordx2 v[4:5], off, s[8:11], s40 offset:8\ns_waitcnt vmcnt(0)")
A("s_endpgm")

A.label("C_BULK")
if "nobulk" in OPT: A("s_endpgm")
SLOT_, CTYPE, CSIG, PSIG, RET = 35, 36, 37, 38, 39
N_WTGT, N_OUT, N_HEAD, N_QB, XB = 55, 56, 57, 58, 59
N_TYPE, N_ASZ, N_PA, N_PW, N_WSZ, N_AOFF, N_WOFF, N_LDW, N_COFF, N_LR, N_RS, N_CS, N_SIG, N_WAIT = 86, 87, 88, 90, 92, 93, 94, 95, 96, 97, 98, 99, 100, 101
T0, T1, T2, T3 = 40, 41, 42, 43
N_SCL, CSCL = 4, 5
CB = S_C
A("v_and_b32 v0, 63, v0")
A("s_sub_u32 s%d, s%d, 4\ns_mov_b32 s%d, -1\ns_mov_b32 s%d, 0\ns_mov_b32 s%d, 0\ns_mov_b32 s%d, 0\ns_mov_b32 s%d, 0" % (XB, S_X, SLOT_, RET, CTYPE, CSIG, PSIG))
A("s_mov_b32 s%d, 2048" % G_LDA)
mk_srd(A, G_SA, ptr(0), 0x400000); mk_srd(A, G_SW, ptr(3), 0x800000); mk_srd(A, G_SC, ptr(12), WS_BYTES)
def setp(dst, pi): A("s_mov_b64 s[%d:%d], s[%d:%d]" % (dst, dst + 1, ptr(pi), ptr(pi) + 1))
def flag(i): return FLAGS + 128 * i
def bstamp():
    if not STAMP: return
    L = A.newlabel("BST")
    A("s_cmp_lg_u32 s34, 0\ns_cbranch_scc1 %s" % L)
    A("s_memrealtime s[40:41]\ns_lshl_b32 s42, s%d, 5\ns_add_u32 s42, s42, s%d\ns_lshl_b32 s42, s42, 6\ns_lshl_b32 s43, s%d, 2\ns_add_u32 s42, s42, s43\ns_add_u32 s42, s42, 0x6100004\ns_waitcnt lgkmcnt(0)\nv_mov_b32 v1, s40\ns_mov_b64 exec, 1" % (S_X, S_C, SLOT_))
    A("buffer_store_dword v1, off, s[8:11], s42")
    A("s_memtime s[40:41]\ns_add_u32 s42, s42, 0x10000\ns_waitcnt lgkmcnt(0)\nv_mov_b32 v1, s40\nbuffer_store_dword v1, off, s[8:11], s42\ns_mov_b64 exec, -1")
    A.label(L)
A.label("B_DECODE")
bstamp()
A("s_add_u32 s%d, s%d, 1" % (SLOT_, SLOT_))
A("s_mov_b32 s%d, 0\ns_mov_b32 s%d, 0\ns_mov_b32 s%d, 0\ns_mov_b32 s%d, 0\ns_mov_b32 s%d, 0" % (N_TYPE, N_SIG, N_WAIT, N_OUT, N_WTGT))
setp(N_PA, 0); setp(N_PW, 2)
A("s_mov_b32 s%d, 0" % N_SCL)
A("s_mov_b32 s%d, 0x400000\ns_mov_b32 s%d, 0x800000\ns_mov_b32 s%d, 8192\ns_mov_b32 s%d, 64" % (N_ASZ, N_WSZ, N_LDW, N_CS))
SCHED = ["KV0", "KV1", "KV2", "KV3", "B1a", "B1b_Qa", "B2a", "B2b", "Qb", "Qc_B3"]
for i, nm in enumerate(SCHED):
    A("s_cmp_eq_u32 s%d, %d\ns_cbranch_scc1 D_%s" % (SLOT_, i, nm))
A("s_mov_b32 s%d, 3\ns_branch B_DECODED" % N_TYPE)
for rho in range(4):
    A.label("D_KV%d" % rho)
    A("s_mov_b32 s%d, %d\ns_branch D_KV" % (T0, 2 * rho))
A.label("D_KV")
A("s_lshr_b32 s%d, s%d, 4\ns_add_u32 s%d, s%d, s%d" % (T1, CB, T0, T0, T1))
A("s_and_b32 s%d, s%d, 1\ns_lshl_b32 s%d, s%d, 4\ns_and_b32 s%d, s%d, 15\ns_add_u32 s%d, s%d, s%d" % (T1, XB, T1, T1, T2, CB, T1, T1, T2))
A("s_lshl_b32 s%d, s%d, 19\ns_lshl_b32 s%d, s%d, 8" % (N_AOFF, T0, N_WOFF, T1))
A("s_lshl_b32 s%d, s%d, 20\ns_lshl_b32 s%d, s%d, 15\ns_add_u32 s%d, s%d, s%d" % (N_COFF, T1, T2, T0, N_COFF, N_COFF, T2))
A("s_lshl_b32 s%d, s%d, 7\ns_add_u32 s%d, s%d, %d\ns_mov_b32 s%d, 64" % (N_SIG, T0, N_SIG, N_SIG, flag(F_KV), N_LR))
A("s_cmp_ge_u32 s%d, 2\ns_cbranch_scc1 D_KV_V" % XB)
setp(N_PW, 3)
A("s_mov_b32 s%d, 4096\ns_mov_b32 s%d, 0x40000\ns_add_u32 s%d, s%d, %d\ns_branch B_DECODED" % (N_RS, N_CS, N_COFF, N_COFF, KV))
A.label("D_KV_V")
setp(N_PW, 4)
A("s_mov_b32 s%d, 0x40000\ns_mov_b32 s%d, 4096\ns_add_u32 s%d, s%d, %d\ns_mov_b32 s%d, 1\ns_branch B_DECODED" % (N_RS, N_CS, N_COFF, N_COFF, KV + 2048, N_TYPE))
A.label("D_B1b_Qa")
A("s_sub_u32 s%d, s%d, 16\ns_cmp_ge_u32 s%d, 16\ns_cbranch_scc1 D_Q" % (T0, CB, CB))
A("s_add_u32 s%d, s%d, 32\ns_branch D_B1" % (T0, CB))
A.label("D_B1a")
A("s_mov_b32 s%d, s%d" % (T0, CB))
A.label("D_B1")
setp(N_PA, 7); setp(N_PW, 8)
A("s_mov_b32 s%d, 0x600000\ns_mov_b32 s%d, 6144\ns_mov_b32 s%d, 4096\ns_mov_b32 s%d, 0x20000" % (N_WSZ, N_LDW, N_LR, N_RS))
A("s_and_b32 s%d, s%d, 7\ns_lshl_b32 s%d, s%d, 19" % (T1, T0, N_AOFF, T1))
A("s_bfe_u32 s%d, s%d, 0x10003\ns_lshl_b32 s%d, s%d, 1\ns_add_u32 s%d, s%d, s%d" % (T2, T0, T3, XB, T2, T2, T3))
A("s_lshl_b32 s%d, s%d, 7\ns_add_u32 s%d, s%d, %d" % (N_SIG, T2, N_SIG, N_SIG, flag(F_B1)))
A("s_lshr_b32 s%d, s%d, 4\ns_lshl_b32 s%d, s%d, 3\ns_add_u32 s%d, s%d, s%d\ns_lshl_b32 s%d, s%d, 8" % (T0, T0, T3, T0, T3, T3, T2, N_WOFF, T3))
A("s_cmp_eq_u32 s%d, 0\ns_cselect_b32 s%d, 1, 0" % (T0, N_SCL))
A("s_cmp_eq_u32 s%d, 2\ns_cbranch_scc1 D_B1_V" % T0)
A("s_lshl_b32 s%d, s%d, 20\ns_add_u32 s%d, s%d, s%d\ns_add_u32 s%d, s%d, %d\ns_branch B_DECODED" % (N_COFF, T1, N_COFF, N_COFF, N_WOFF, N_COFF, N_COFF, BQK))
A.label("D_B1_V")
A("s_lshl_b32 s%d, s%d, 19\ns_lshl_b32 s%d, s%d, 9\ns_add_u32 s%d, s%d, s%d\ns_add_u32 s%d, s%d, %d\ns_mov_b32 s%d, 1\ns_branch B_DECODED" % (N_COFF, T2, T1, T1, N_COFF, N_COFF, T1, N_COFF, N_COFF, BVT, N_TYPE))
A.label("D_Qb")
A("s_add_u32 s%d, s%d, 16\ns_branch D_Q" % (T0, CB))
A.label("D_Qc_B3")
A("s_cmp_ge_u32 s%d, 16\ns_cbranch_scc1 D_B3" % CB)
A("s_add_u32 s%d, s%d, 48" % (T0, CB))
A.label("D_Q")
A("s_lshr_b32 s%d, s%d, 3\ns_and_b32 s%d, s%d, 7\ns_lshl_b32 s%d, s%d, 3\ns_add_u32 s%d, s%d, s%d" % (T1, T0, T2, T0, T3, XB, T2, T2, T3))
A("s_lshl_b32 s%d, s%d, 19\ns_lshl_b32 s%d, s%d, 8\ns_mov_b32 s%d, 8192\ns_mov_b32 s%d, 0x40000" % (N_AOFF, T1, N_WOFF, T2, N_LR, N_RS))
A("s_lshl_b32 s%d, s%d, 21\ns_add_u32 s%d, s%d, s%d\ns_add_u32 s%d, s%d, %d\ns_branch B_DECODED" % (N_COFF, T1, N_COFF, N_COFF, N_WOFF, N_COFF, N_COFF, QX))
A.label("D_B3")
setp(N_PA, 12); setp(N_PW, 9)
A("s_mov_b32 s%d, 0x%x\ns_mov_b32 s%d, 0x200000\ns_mov_b32 s%d, 2048\ns_mov_b32 s%d, 4096\ns_mov_b32 s%d, 0x20000\ns_mov_b32 s%d, 1" % (N_ASZ, WS_BYTES, N_WSZ, N_LDW, N_LR, N_RS, N_OUT))
A("s_bfe_u32 s%d, s%d, 0x10003\ns_lshl_b32 s%d, s%d, 1\ns_add_u32 s%d, s%d, s%d\ns_and_b32 s%d, s%d, 7" % (T1, CB, T3, XB, T1, T1, T3, T2, CB))
A("s_lshl_b32 s%d, s%d, 19\ns_add_u32 s%d, s%d, %d\ns_lshl_b32 s%d, s%d, 8" % (N_AOFF, T1, N_AOFF, N_AOFF, BO, N_WOFF, T2))
A("s_lshl_b32 s%d, s%d, 20\ns_add_u32 s%d, s%d, s%d\ns_add_u32 s%d, s%d, 2048" % (N_COFF, T1, N_COFF, N_COFF, N_WOFF, N_COFF, N_COFF))
A("s_lshl_b32 s%d, s%d, 7\ns_add_u32 s%d, s%d, %d\ns_mov_b32 s%d, 32\ns_branch B_DECODED" % (N_WAIT, T1, N_WAIT, N_WAIT, flag(F_B2), N_WTGT))
A.label("D_B2b")
A("s_mov_b32 s%d, 4\ns_branch D_B2" % T0)
A.label("D_B2a")
A("s_mov_b32 s%d, 0" % T0)
A.label("D_B2")
A("s_lshl_b32 s%d, s%d, 3\ns_and_b32 s%d, s%d, 7\ns_add_u32 s%d, s%d, s%d" % (N_HEAD, XB, T1, CB, N_HEAD, N_HEAD, T1))
A("s_lshr_b32 s%d, s%d, 3\ns_add_u32 s%d, s%d, s%d" % (N_QB, CB, N_QB, N_QB, T0))
A("s_lshr_b32 s%d, s%d, 2\ns_lshl_b32 s%d, s%d, 7\ns_add_u32 s%d, s%d, %d\ns_mov_b32 s%d, 24" % (N_WAIT, N_HEAD, N_WAIT, N_WAIT, N_WAIT, N_WAIT, flag(F_B1), N_WTGT))
A("s_lshl_b32 s%d, s%d, 7\ns_add_u32 s%d, s%d, %d\ns_mov_b32 s%d, 2" % (N_SIG, N_QB, N_SIG, N_SIG, flag(F_B2), N_TYPE))
A.label("B_DECODED")
if "samew" in OPT: A("s_mov_b32 s%d, 0" % N_WOFF)
if "samea" in OPT: A("s_mov_b32 s%d, 0" % N_AOFF)
A("s_cmp_eq_u32 s%d, 0\ns_cbranch_scc1 B_COLD" % RET)
A("s_cmp_eq_u32 s%d, 1\ns_cbranch_scc1 B_BODY_tr\ns_branch B_BODY_row" % CTYPE)

def signal(sreg, tag):
    A("s_cmp_lg_u32 s%d, 0\ns_cbranch_scc1 SG_%s\ns_cmp_eq_u32 s%d, 0\ns_cbranch_scc1 SG_%s" % (G_WAVE, tag, sreg, tag))
    A("v_mov_b32 v1, 1\ns_mov_b64 exec, 1\nbuffer_atomic_add v1, off, s[8:11], s%d\ns_mov_b64 exec, -1" % sreg)
    A.label("SG_" + tag)
def switch():
    A("s_mov_b32 s%d, s%d\ns_and_b32 s%d, s%d, 0xffff\ns_mov_b32 s%d, s%d" % (G_SA, N_PA, G_SA + 1, N_PA + 1, G_SA + 2, N_ASZ))
    A("s_mov_b32 s%d, s%d\ns_and_b32 s%d, s%d, 0xffff\ns_mov_b32 s%d, s%d" % (G_SW, N_PW, G_SW + 1, N_PW + 1, G_SW + 2, N_WSZ))
    A("s_mov_b32 s%d, s%d\ns_mov_b32 s%d, s%d\ns_mov_b32 s%d, s%d" % (G_AOFF, N_AOFF, G_WOFF, N_WOFF, G_LDW, N_LDW))
    G.setup_ldw()

A.label("B_COLD")
A("s_cmp_eq_u32 s%d, 3\ns_cbranch_scc1 C_DONE" % N_TYPE)
A("s_cmp_eq_u32 s%d, 0\ns_cbranch_scc1 B_NOWAIT" % N_WAIT)
A("s_cmp_lg_u32 s%d, 0\ns_cbranch_scc1 B_WOK" % G_WAVE)
A("s_mov_b32 s44, 0")
A.label("B_WPOLL")
A("buffer_load_dword v1, off, s[8:11], s%d sc1" % N_WAIT)
A("s_add_u32 s44, s44, 1\ns_cmp_gt_u32 s44, %d\ns_cbranch_scc1 C_DONE" % TIMEOUT)
A("s_waitcnt vmcnt(0)\nv_cmp_eq_u32 vcc, s%d, v1\ns_cbranch_vccnz B_WOK\ns_sleep 8\ns_branch B_WPOLL" % N_WTGT)
A.label("B_WOK")
A("s_barrier")
A.label("B_NOWAIT")
A("s_cmp_lg_u32 s%d, 2\ns_cbranch_scc1 B_CG" % N_TYPE)
emit_b2(A, "", N_HEAD, N_QB, G_WAVE, ldflag="sc1", stflag="sc1")
A("s_waitcnt vmcnt(0)\ns_barrier")
signal(N_SIG, "b2")
A("s_mov_b32 s%d, 0\ns_branch B_DECODE" % RET)
A.label("B_CG")
G.setup_static(); G.setup_lda()
switch()
G.cold(full_wait=True)
A("s_mov_b32 s%d, 0" % PSIG)
A.label("B_WARM")
A("s_mov_b32 s%d, s%d" % (CSCL, N_SCL))
A("s_mov_b32 s%d, s%d\ns_mov_b32 s%d, s%d\ns_mov_b32 s%d, s%d\ns_mov_b32 s%d, s%d\ns_mov_b32 s%d, s%d\ns_mov_b32 s%d, s%d" % (G_COFF, N_COFF, G_LR, N_LR, G_RS, N_RS, G_CS, N_CS, CSIG, N_SIG, CTYPE, N_TYPE))
A("s_cmp_eq_u32 s%d, 1\ns_cselect_b32 s%d, s%d, s%d\ns_cselect_b32 s%d, s%d, s%d\ns_and_b32 s%d, s%d, 0xffff" % (N_OUT, G_SC, ptr(10), ptr(12), G_SC + 1, ptr(10) + 1, ptr(12) + 1, G_SC + 1, G_SC + 1))
A("s_cmp_eq_u32 s%d, 1\ns_cselect_b32 s%d, 0x800000, 0x%x" % (N_OUT, G_SC + 2, WS_BYTES) if False else "s_mov_b32 s%d, 0x%x\ns_cmp_eq_u32 s%d, 1\ns_cselect_b32 s%d, 0x800000, s%d" % (G_SC + 2, WS_BYTES, N_OUT, G_SC + 2, G_SC + 2))
A("s_mov_b32 s%d, 1\ns_branch B_DECODE" % RET)
PH = 44
for mode in ("row", "tr"):
    A.label("B_BODY_" + mode)
    G.step(mode, True, 14, zero=True)
    G.step(mode, True, 14)
    G.step(mode, True, 6, after_barrier=lambda: signal(PSIG, "p" + mode))
    A("s_mov_b32 s%d, 10\ns_mov_b32 s%d, 0" % (G_CNT, PH))
    A.label("B_LOOP_" + mode)
    G.step(mode, True, 6)
    A("s_sub_u32 s%d, s%d, 1\ns_cmp_lg_u32 s%d, 0\ns_cbranch_scc1 B_LOOP_%s" % (G_CNT, G_CNT, G_CNT, mode))
    A("s_cmp_eq_u32 s%d, 1\ns_cbranch_scc1 B_EPW_%s" % (PH, mode))
    A("s_cmp_ge_u32 s%d, 2\ns_cbranch_scc1 B_TAIL_%s\ns_cmp_lg_u32 s%d, 0\ns_cbranch_scc1 B_TAIL_%s" % (N_TYPE, mode, N_WAIT, mode))
    switch()
    A("s_mov_b32 s%d, 3\ns_mov_b32 s%d, 1\ns_branch B_LOOP_%s" % (G_CNT, PH, mode))
    A.label("B_TAIL_" + mode)
    G.step(mode, False, 6); G.step(mode, False, 0); G.step(mode, False, 0, more=False)
    A.label("B_EPW_" + mode)
    if mode == "row":
        A("s_cmp_eq_u32 s%d, 0\ns_cbranch_scc1 B_NOSC" % CSCL)
        A("v_mov_b32 v1, 0x%x" % f32bits(B2_QSCALE))
        for i in range(64): A("v_mul_f32 v%d, v%d, v1" % (G.ACC + i, G.ACC + i))
        A.label("B_NOSC")
    G.epilogue(mode, "" if "splain" in OPT else "sc1")
    A("s_mov_b32 s%d, s%d" % (PSIG, CSIG))
    A("s_cmp_eq_u32 s%d, 1\ns_cbranch_scc1 B_WARM" % PH)
    A("s_waitcnt vmcnt(0)\ns_barrier")
    signal(CSIG, "c" + mode)
    A("s_branch B_COLD")
A.label("C_DONE")
A("s_endpgm")

A.raw(kernel_header("xattn_kernel"))
A("s_cmp_ge_u32 s2, 256\ns_cbranch_scc1 X_DONE")
A(LOADP)
A("v_lshrrev_b32 v1, 6, v0\nv_and_b32 v0, 63, v0\nv_readfirstlane_b32 s34, v1")
A("s_lshr_b32 s36, s2, 2\ns_and_b32 s37, s2, 3\ns_lshl_b32 s37, s37, 3\ns_add_u32 s37, s37, s34")
A("s_waitcnt lgkmcnt(0)")
mk_srd(A, S_WS, ptr(12), WS_BYTES)
emit_a2(A, "", 36, 37)
A.label("X_DONE")
A("s_endpgm")

A.raw(kernel_header("outp_kernel"))
A("s_cmp_ge_u32 s2, 256\ns_cbranch_scc1 O_DONE")
A(LOADP)
A("v_lshrrev_b32 v1, 6, v0\nv_and_b32 v0, 63, v0\nv_readfirstlane_b32 s%d, v1" % G_WAVE)
A("s_and_b32 s40, s2, 7\ns_lshl_b32 s40, s40, 2\ns_lshr_b32 s41, s2, 6\ns_add_u32 s40, s40, s41\ns_bfe_u32 s41, s2, 0x30003")
A("s_waitcnt lgkmcnt(0)")
mk_srd(A, G_SC, ptr(10), 0x800000)
mk_srd(A, G_SA, ptr(12), WS_BYTES)
mk_srd(A, G_SW, ptr(5), 0x800000)
A("s_mov_b32 s%d, 2048\ns_mov_b32 s%d, 8192\ns_lshl_b32 s%d, s41, 8" % (G_LDW, G_LDA, G_WOFF))
A("s_mov_b32 s%d, 4096\ns_mov_b32 s%d, 0x20000\ns_mov_b32 s%d, 64" % (G_LR, G_RS, G_CS))
A("s_lshl_b32 s%d, s40, 18\ns_add_u32 s%d, s%d, s%d" % (G_COFF, G_COFF, G_COFF, G_WOFF))
A("s_lshl_b32 s%d, s40, 19\ns_add_u32 s%d, s%d, %d" % (G_AOFF, G_AOFF, G_AOFF, OXA))
G3.simple("O", "row", 64)
A.label("O_DONE")
A("s_endpgm")
for k in ("main_kernel", "xattn_kernel", "outp_kernel"):
    A.raw(kernel_desc(k))
open(sys.argv[1], "w").write(A.text())
```

```python
from asmlib import *
from layout import *
from chain import f32bits
import math

A2_K, A2_V = 192, 224

def a2_kv_loads(A, s_seg, s_head):
    A("v_bfe_u32 v28, v0, 2, 2\nv_lshlrev_b32 v28, 3, v28\nv_and_b32 v29, 3, v0\nv_add_u32 v28, v28, v29")
    A("v_lshrrev_b32 v29, 4, v0\nv_lshlrev_b32 v29, 9, v29\nv_lshl_add_u32 v28, v28, 4, v29")
    A("s_lshl_b32 s40, s%d, 20\ns_lshl_b32 s41, s%d, 12\ns_add_u32 s40, s40, s41\ns_add_u32 s40, s40, %d" % (s_head, s_seg, KV))
    for ks in range(4):
        for a in range(2):
            A("buffer_load_dwordx4 %s, v28, s[8:11], s40 offen offset:%d sc1" % (vr(A2_K + 16 * a + 4 * ks, 4), 64 * a))
        for a in range(2):
            A("buffer_load_dwordx4 %s, v28, s[8:11], s40 offen offset:%d sc1" % (vr(A2_V + 8 * ks + 4 * a, 4), 2048 + 64 * a))
        if ks < 3: A("s_add_u32 s40, s40, 0x40000")

def emit_a2(A, tag, s_seg, s_head, s_wave, abort):
    T0, T1, SKM, SO, SC = 40, 41, 42, 43, 48
    K, V = A2_K, A2_V
    Q, KMf, VMf, S, O = 16, 48, 64, 80, 104
    P, PM, ONE, OS, TMP = 168, 176, 180, 184, 8
    A("v_and_b32 v1, 15, v0\nv_lshrrev_b32 v2, 4, v0\nv_lshlrev_b32 v3, 4, v2")
    A("v_bfe_u32 v4, v0, 2, 2\nv_lshlrev_b32 v4, 3, v4\nv_and_b32 v5, 3, v0\nv_add_u32 v4, v4, v5")
    A("v_lshlrev_b32 v5, 9, v2\nv_lshl_add_u32 v5, v1, 4, v5")
    A("v_and_b32 v7, 7, v0\nv_lshlrev_b32 v7, 4, v7\nv_lshl_add_u32 v7, v2, 7, v7")
    A("v_and_b32 v13, 1, v2\nv_lshlrev_b32 v13, 3, v13\nv_lshl_add_u32 v13, v4, 4, v13")
    A("v_lshrrev_b32 v6, 1, v2\nv_and_b32 v12, 1, v2\nv_lshl_or_b32 v6, v12, 1, v6\nv_lshl_add_u32 v6, v6, 4, v1\nv_lshlrev_b32 v6, 4, v6")
    A("s_lshr_b32 s%d, s%d, 1\ns_lshl_b32 s%d, s%d, 14\ns_and_b32 s%d, s%d, 1\ns_lshl_b32 s%d, s%d, 12\ns_add_u32 s%d, s%d, s%d\nv_add_u32 v6, s%d, v6" % (T0, s_wave, T0, T0, T1, s_wave, T1, T1, T0, T0, T1, T0))
    for qt in range(2):
        for ks in range(4):
            A("ds_read_b128 %s, v6 offset:%d" % (vr(Q + 16 * qt + 4 * ks, 4), (ks >> 1) * 8192 + qt * 2048 + (ks & 1) * 1024))
    A("s_lshl_b32 s%d, s%d, 18\ns_lshl_b32 s%d, s%d, 10\ns_add_u32 s%d, s%d, s%d\ns_add_u32 s%d, s%d, %d" % (SKM, s_head, T0, s_seg, SKM, SKM, T0, SKM, SKM, KVM))
    A("s_lshl_b32 s%d, s%d, 18\ns_lshl_b32 s%d, s%d, 13\ns_add_u32 s%d, s%d, s%d\ns_add_u32 s%d, s%d, %d" % (SO, s_seg, T0, s_head, SO, SO, T0, SO, SO, OT))
    A("s_mov_b32 s%d, 0x%x" % (SC, f32bits(128 ** -0.5 * math.log2(math.e))))
    for i in range(4): A("v_mov_b32 v%d, 0x3f803f80" % (ONE + i))
    A("v_lshlrev_b32 v14, 3, v2\nv_sub_u32 v14, v1, v14")
    A("v_mov_b32 v15, 0xff800000")
    A("s_waitcnt vmcnt(0) lgkmcnt(0)")
    for ks in range(4):
        for qt in range(2):
            for kt in range(2):
                d = vr(S + 12 * qt + 4 * kt, 4)
                A("v_mfma_f32_16x16x32_bf16 %s, %s, %s, %s" % (d, vr(K + 16 * kt + 4 * ks, 4), vr(Q + 16 * qt + 4 * ks, 4), "0" if ks == 0 else d))
    A("s_lshr_b32 s%d, s%d, 3\ns_lshl_b32 s%d, s%d, 7" % (T0, s_head, T0, T0))
    A("s_lshr_b32 s%d, s%d, 3\ns_add_u32 s%d, s%d, 1\ns_sub_u32 s50, s%d, 48\ns_cmp_ge_u32 s%d, 56\ns_cselect_b32 s%d, s50, s%d\ns_lshl_b32 s%d, s%d, 5" % (T1, s_seg, T1, T1, s_seg, s_seg, T1, T1, T1, T1))
    A("s_cmp_ge_u32 s%d, 62\ns_cselect_b32 s%d, 32, s%d\ns_cselect_b32 s50, %d, 0\ns_add_u32 s%d, s%d, s50\ns_add_u32 s%d, s%d, %d" % (s_seg, T1, T1, (F_CPL - F_CP) * 128, T0, T0, T0, T0, FLAGS + F_CP * 128))
    A("s_mov_b32 s50, 0")
    A.label("A2%s_W" % tag)
    A("buffer_load_dword v12, off, s[8:11], s%d sc1" % T0)
    A("s_add_u32 s50, s50, 1\ns_cmp_gt_u32 s50, 400000\ns_cbranch_scc1 %s" % abort)
    A("s_waitcnt vmcnt(0)\nv_cmp_le_u32 vcc, s%d, v12\ns_cbranch_vccnz A2%s_GO\ns_sleep 6\ns_branch A2%s_W" % (T1, tag, tag))
    A.label("A2%s_GO" % tag)
    for ks in range(4):
        A("buffer_load_dwordx4 %s, v7, s[8:11], s%d offen sc1" % (vr(KMf + 4 * ks, 4), SKM))
        for a in range(2):
            A("buffer_load_dwordx2 %s, v13, s[8:11], s%d offen offset:%d sc1" % (vr(VMf + 4 * ks + 2 * a, 2), SKM, 512 + 64 * a))
        if ks < 3: A("s_add_u32 s%d, s%d, 0x10000" % (SKM, SKM))
    for qt in range(2):
        s = S + 12 * qt
        for j in range(8):
            A("v_cmp_le_i32 vcc, %d, v14" % (j - 16 * qt))
            A("v_cndmask_b32 v%d, v15, v%d, vcc" % (s + j, s + j))
    A("s_waitcnt vmcnt(0)")
    for ks in range(4):
        for qt in range(2):
            d = vr(S + 12 * qt + 8, 4)
            A("v_mfma_f32_16x16x32_bf16 %s, %s, %s, %s" % (d, vr(KMf + 4 * ks, 4), vr(Q + 16 * qt + 4 * ks, 4), "0" if ks == 0 else d))
    A("s_mov_b32 s50, -1\ns_mov_b32 s51, 0")
    for qt in range(2):
        s = S + 12 * qt
        for j in range(4):
            A("v_cndmask_b32 v%d, v15, v%d, s[50:51]" % (s + 8 + j, s + 8 + j))
        m = TMP
        A("v_max3_f32 v%d, v%d, v%d, v%d" % (m, s, s + 1, s + 2))
        for j in range(3, 11, 2): A("v_max3_f32 v%d, v%d, v%d, v%d" % (m, m, s + j, s + j + 1))
        A("v_max_f32 v%d, v%d, v%d" % (m, m, s + 11))
        A("v_mov_b32 v%d, v%d\nv_permlane16_swap_b32 v%d, v%d\nv_max_f32 v%d, v%d, v%d" % (m + 1, m, m, m + 1, m, m, m + 1))
        A("v_mov_b32 v%d, v%d\nv_permlane32_swap_b32 v%d, v%d\nv_max_f32 v%d, v%d, v%d" % (m + 1, m, m, m + 1, m, m, m + 1))
        A("v_mul_f32 v%d, s%d, v%d" % (m, SC, m))
        for j in range(12): A("v_fma_f32 v%d, v%d, s%d, -v%d" % (s + j, s + j, SC, m))
        for j in range(12): A("v_exp_f32 v%d, v%d" % (s + j, s + j))
        for j in range(4): A("v_cvt_pk_bf16_f32 v%d, v%d, v%d" % (P + 4 * qt + j, s + 2 * j, s + 2 * j + 1))
        for j in range(2): A("v_cvt_pk_bf16_f32 v%d, v%d, v%d" % (PM + 2 * qt + j, s + 8 + 2 * j, s + 9 + 2 * j))
        A("v_mfma_f32_16x16x32_bf16 %s, %s, %s, 0" % (vr(OS + 4 * qt, 4), vr(ONE, 4), vr(P + 4 * qt, 4)))
        for et in range(8):
            A("v_mfma_f32_16x16x32_bf16 %s, %s, %s, 0" % (vr(O + 32 * qt + 4 * et, 4), vr(V + 4 * et, 4), vr(P + 4 * qt, 4)))
        A("v_mfma_f32_16x16x16_bf16 %s, %s, %s, %s" % (vr(OS + 4 * qt, 4), vr(ONE, 2), vr(PM + 2 * qt, 2), vr(OS + 4 * qt, 4)))
        for et in range(8):
            d = vr(O + 32 * qt + 4 * et, 4)
            A("v_mfma_f32_16x16x16_bf16 %s, %s, %s, %s" % (d, vr(VMf + 2 * et, 2), vr(PM + 2 * qt, 2), d))
    A("s_add_u32 s%d, s%d, 4096" % (T0, SO))
    for qt in range(2):
        o = O + 32 * qt
        A("v_rcp_f32 v%d, v%d" % (TMP, OS + 4 * qt))
        for j in range(32): A("v_mul_f32 v%d, v%d, v%d" % (o + j, o + j, TMP))
        for j in range(16): A("v_cvt_pk_bf16_f32 v%d, v%d, v%d" % (Q + 16 * qt + j, o + 2 * j, o + 2 * j + 1))
        for T in range(4):
            A("buffer_store_dwordx4 %s, v5, s[8:11], s%d offen offset:%d sc1" % (vr(Q + 16 * qt + 4 * T, 4), T0 if T >= 2 else SO, 2048 * (T & 1) + 256 * qt))
    A("s_lshl_b32 s%d, s%d, 7\ns_add_u32 s%d, s%d, %d" % (T0, s_seg, T0, T0, FLAGS + F_CO * 128))
    A("v_mov_b32 v1, 1\ns_waitcnt vmcnt(0)\ns_mov_b64 exec, 1\nbuffer_atomic_add v1, off, s[8:11], s%d\ns_mov_b64 exec, -1" % T0)

def emit_a3w(A, s_grp, s_cb, s_wave, done, abort):
    from chain import load_weights, mk_srd, ptr
    W, ACC, ST = 128, 16, 32
    SEG, SB, IDX, PAR, TO, SO0, SO1, MASK = 40, 41, 49, 50, 44, 47, 48, 52
    A("s_barrier")
    A("s_getpc_b64 s[0:1]")
    A.label("A3_PC")
    A("s_add_u32 s0, s0, SEGS-A3_PC\ns_addc_u32 s1, s1, 0")
    A("s_lshl_b32 s42, s%d, 7\nv_and_b32 v9, 31, v0\nv_lshlrev_b32 v9, 2, v9\nv_add_u32 v9, s42, v9" % s_grp)
    A("global_load_dword v9, v9, s[0:1]")
    A("s_waitcnt vmcnt(0)\nv_readfirstlane_b32 s42, v9\ns_cmp_ge_u32 s42, 64\ns_cbranch_scc1 %s" % done)
    A("s_lshl_b32 s%d, s%d, 20\ns_lshl_b32 s%d, s%d, 6\ns_add_u32 s%d, s%d, s%d\ns_add_u32 s%d, s%d, 0x80000" % (SO0, s_wave, SO1, s_cb, SO0, SO0, SO1, SO1, SO0))
    load_weights(A, W, 2, [(5, 0x800000, 2048, SO0), (5, 0x800000, 2048, SO1)], 4)
    mk_srd(A, 20, ptr(10), 0x800000)
    A("v_and_b32 v1, 15, v0\nv_lshrrev_b32 v2, 4, v0\nv_lshlrev_b32 v3, 9, v2\nv_lshl_add_u32 v3, v1, 4, v3")
    A("v_lshlrev_b32 v4, 4, v0\ns_lshl_b32 s42, s%d, 12\nv_add_u32 v5, s42, v4" % s_wave)
    A("s_lshl_b32 s42, s%d, 10\nv_add_u32 v6, s42, v4" % s_wave)
    A("s_lshr_b32 s42, s%d, 1\ns_lshl_b32 s42, s42, 16\ns_and_b32 s43, s%d, 1\ns_lshl_b32 s43, s43, 3\ns_add_u32 s42, s42, s43\ns_lshl_b32 s43, s%d, 6\ns_add_u32 s42, s42, s43" % (s_wave, s_wave, s_cb))
    A("v_lshlrev_b32 v7, 12, v1\nv_lshl_add_u32 v7, v2, 4, v7\nv_add_u32 v7, s42, v7")
    A("v_lshlrev_b32 v8, 7, v9\nv_add_u32 v8, %d, v8" % (FLAGS + F_CO * 128))
    A("s_lshl_b32 s51, s%d, 15\ns_add_u32 s51, s51, %d" % (s_wave, OT))
    A("s_mov_b32 s%d, 0" % IDX)
    A("s_barrier")
    def ld(j):
        for tt in range(2):
            A("buffer_load_dwordx4 %s, v3, s[8:11], s%d offen offset:%d sc1" % (vr(ST + (j % 8) * 8 + 4 * tt, 4), SB, (j & 1) * 2048 + tt * 256))
        if j & 1: A("s_add_u32 s%d, s%d, 4096" % (SB, SB))
    def mm(j):
        for tt in range(2):
            for a in range(2):
                d = vr(ACC + 8 * tt + 4 * a, 4)
                A("v_mfma_f32_16x16x32_bf16 %s, %s, %s, %s" % (d, vr(W + j * 8 + 4 * a, 4), vr(ST + (j % 8) * 8 + 4 * tt, 4), "0" if j == 0 else d))
    A.label("A3_COLD")
    A("v_readlane_b32 s%d, v9, s%d" % (SEG, IDX))
    A("s_cmp_ge_u32 s%d, 64\ns_cbranch_scc1 %s" % (SEG, done))
    A("s_mov_b32 s%d, 0" % TO)
    A.label("A3_W")
    A("buffer_load_dword v10, v8, s[8:11], 0 offen sc1")
    A("s_add_u32 s%d, s%d, 1\ns_cmp_gt_u32 s%d, 400000\ns_cbranch_scc1 %s" % (TO, TO, TO, abort))
    A("s_waitcnt vmcnt(0)\nv_cmp_eq_u32 s[%d:%d], 32, v10" % (MASK, MASK + 1))
    A("s_bitcmp1_b32 s%d, s%d\ns_cbranch_scc1 A3_RDY\ns_sleep 4\ns_branch A3_W" % (MASK, IDX))
    A.label("A3_RDY")
    A("s_lshl_b32 s%d, s%d, 18\ns_add_u32 s%d, s%d, s51" % (SB, SEG, SB, SB))
    for j in range(8): ld(j)
    A.label("A3_BODY")
    for j in range(8):
        A("s_waitcnt vmcnt(14)")
        mm(j); ld(j + 8)
    A("s_add_u32 s%d, s%d, 1\ns_bitcmp1_b32 s%d, s%d\ns_cselect_b32 s%d, 1, 0\ns_cbranch_scc0 A3_DRAIN" % (IDX, IDX, MASK, IDX, PAR))
    A("v_readlane_b32 s43, v9, s%d" % IDX)
    A("s_lshl_b32 s%d, s43, 18\ns_add_u32 s%d, s%d, s51" % (SB, SB, SB))
    for j in range(8, 16):
        A("s_waitcnt vmcnt(14)")
        mm(j); ld(j - 8)
    A("s_branch A3_RED")
    A.label("A3_DRAIN")
    for j in range(8, 16):
        A("s_waitcnt vmcnt(%d)" % (2 * (15 - j)))
        mm(j)
    A.label("A3_RED")
    for t in range(4): A("ds_write_b128 v5, %s offset:%d" % (vr(ACC + 4 * t, 4), 1024 * t))
    A("v_xor_b32 v5, 0x8000, v5")
    A("s_waitcnt lgkmcnt(0)\ns_barrier")
    A("s_cmp_ge_u32 s%d, 4\ns_cbranch_scc1 A3_NR" % s_wave)
    RD = 96
    for w in range(8): A("ds_read_b128 %s, v6 offset:%d" % (vr(RD + 4 * w, 4), 4096 * w))
    A("v_xor_b32 v6, 0x8000, v6")
    for w in range(1, 8):
        A("s_waitcnt lgkmcnt(%d)" % (7 - w))
        for i in range(4): A("v_add_f32 v%d, v%d, v%d" % (RD + i, RD + i, RD + 4 * w + i))
    A("v_cvt_pk_bf16_f32 v%d, v%d, v%d\nv_cvt_pk_bf16_f32 v%d, v%d, v%d" % (RD + 4, RD, RD + 1, RD + 5, RD + 2, RD + 3))
    A("s_lshl_b32 s42, s%d, 17" % SEG)
    A("buffer_store_dwordx2 %s, v7, s[20:23], s42 offen" % vr(RD + 4, 2))
    A.label("A3_NR")
    A("s_cmp_eq_u32 s%d, 0\ns_cbranch_scc1 A3_COLD" % PAR)
    A("s_mov_b32 s%d, s43\ns_branch A3_BODY" % SEG)

def emit_ctail(A, ct0, abort, stamp=None):
    from chain import mk_srd, ptr, S_X, S_C, S_WAVE
    n = 64 - ct0
    assert n % 4 == 0 and n <= 32
    if n == 0: return
    WO, ACC, ST = 192, 16, 32
    SEG, SB, TO, MASK = 40, 41, 44, 52
    A("s_waitcnt vmcnt(0) lgkmcnt(0)\ns_barrier")
    A("v_and_b32 v1, 15, v0\nv_lshrrev_b32 v2, 4, v0\nv_lshlrev_b32 v4, 4, v0")
    A("s_mov_b32 s%d, 0" % SEG)
    A("s_cmp_lt_u32 s%d, 4\ns_cbranch_scc1 CT_RED" % S_WAVE)
    A("v_lshlrev_b32 v3, 9, v2\nv_lshl_add_u32 v3, v1, 4, v3")
    A("s_sub_u32 s42, s%d, 4\ns_lshl_b32 s43, s42, 12\nv_add_u32 v5, s43, v4" % S_WAVE)
    A("s_lshl_b32 s42, s42, 14\ns_lshl_b32 s43, s%d, 16\ns_add_u32 s51, s42, s43\ns_add_u32 s51, s51, %d" % (S_X, OT + ct0 * 0x40000))
    A("v_lshlrev_b32 v8, 7, v0\nv_add_u32 v8, %d, v8" % (FLAGS + (F_CO + ct0) * 128))
    ACC = 160
    def ld(j):
        for tt in range(2):
            A("buffer_load_dwordx4 %s, v3, s[8:11], s%d offen offset:%d sc1" % (vr(ST + j * 8 + 4 * tt, 4), SB, (j & 1) * 2048 + tt * 256))
        if j == 7: A("s_add_u32 s%d, s%d, %d" % (SB, SB, 0x40000 - 12288))
        elif j & 1: A("s_add_u32 s%d, s%d, 4096" % (SB, SB))
    def mm(j):
        for tt in range(2):
            for a in range(2):
                d = vr(ACC + 16 * (j >> 3) + 8 * tt + 4 * a, 4)
                A("v_mfma_f32_16x16x32_bf16 %s, %s, %s, %s" % (d, vr(WO + (j & 7) * 8 + 4 * a, 4), vr(ST + j * 8 + 4 * tt, 4), "0" if j & 7 == 0 else d))
    def both():
        A("s_lshr_b64 s[42:43], s[%d:%d], s%d\ns_and_b32 s42, s42, 3\ns_cmp_eq_u32 s42, 3" % (MASK, MASK + 1, SEG))
    A.label("CT_COLD")
    A("s_mov_b32 s%d, 0" % TO)
    A.label("CT_W")
    A("buffer_load_dword v10, v8, s[8:11], 0 offen sc1")
    A("s_add_u32 s%d, s%d, 1\ns_cmp_gt_u32 s%d, 400000\ns_cbranch_scc1 %s" % (TO, TO, TO, abort))
    A("s_waitcnt vmcnt(0)\nv_cmp_eq_u32 s[%d:%d], 32, v10" % (MASK, MASK + 1))
    both()
    A("s_cbranch_scc0 CT_W")
    A("s_lshl_b32 s%d, s%d, 18\ns_add_u32 s%d, s%d, s51" % (SB, SEG, SB, SB))
    for j in range(16): ld(j)
    A.label("CT_ML")
    A("s_add_u32 s%d, s%d, 2" % (SEG, SEG))
    both()
    A("s_cselect_b32 s50, 1, 0\ns_cbranch_scc0 CT_DRAIN")
    A("s_lshl_b32 s%d, s%d, 18\ns_add_u32 s%d, s%d, s51" % (SB, SEG, SB, SB))
    for j in range(16):
        A("s_waitcnt vmcnt(30)")
        mm(j); ld(j)
    A("s_branch CT_PUT")
    A.label("CT_DRAIN")
    for j in range(16):
        A("s_waitcnt vmcnt(%d)" % (30 - 2 * j))
        mm(j)
    A.label("CT_PUT")
    for t in range(8): A("ds_write_b128 v5, %s offset:%d" % (vr(ACC + 4 * t, 4), 1024 * (t & 3) + 16384 * (t >> 2)))
    A("v_xor_b32 v5, 0x8000, v5")
    A("s_waitcnt lgkmcnt(0)\ns_barrier")
    A("s_cmp_eq_u32 s50, 1\ns_cbranch_scc1 CT_ML")
    A("s_cmp_lg_u32 s%d, %d\ns_cbranch_scc1 CT_COLD\ns_branch CT_SYNC" % (SEG, n))
    A.label("CT_RED")
    A("s_lshl_b32 s42, s%d, 10\nv_add_u32 v6, s42, v4" % S_WAVE)
    A("s_lshl_b32 s42, s%d, 14\ns_lshl_b32 s43, s%d, 12\ns_add_u32 s51, s42, s43\ns_add_u32 s51, s51, %d" % (S_C, S_WAVE, PT))
    A("s_lshl_b32 s42, s%d, 10\ns_add_u32 s49, s51, s42" % S_X)
    A("s_sub_u32 s48, s%d, s%d\ns_and_b32 s48, s48, 3" % (S_X, S_WAVE))
    OWN = 64
    for q in range(n // 4):
        for k in range(4):
            b = k
            if k % 2 == 0: A("s_barrier")
            for w in range(4): A("ds_read_b128 %s, v6 offset:%d" % (vr(ST + 4 * w, 4), 4096 * w + 16384 * b))
            A("s_waitcnt lgkmcnt(2)")
            for i in range(4): A("v_add_f32 v%d, v%d, v%d" % (ST + 16 + i, ST + i, ST + 4 + i))
            A("s_waitcnt lgkmcnt(0)")
            for i in range(4): A("v_add_f32 v%d, v%d, v%d" % (ST + 8 + i, ST + 8 + i, ST + 12 + i))
            L = A.newlabel("CT_O")
            A("s_cmp_eq_u32 s48, %d\ns_cbranch_scc1 %sa" % (k, L))
            for i in range(4): A("v_add_f32 v%d, v%d, v%d" % (ST + 20 + i, ST + 16 + i, ST + 8 + i))
            import os
            if "ctnost" not in os.environ.get("OPT", ""): A("buffer_store_dwordx4 %s, v4, s[8:11], s49 offen sc1" % vr(ST + 20, 4))
            A("s_branch %sb" % L)
            A.label(L + "a")
            for i in range(4): A("v_add_f32 v%d, v%d, v%d" % (OWN + 4 * q + i, ST + 16 + i, ST + 8 + i))
            A.label(L + "b")
            A("s_add_u32 s49, s49, 0x80000")
    A("s_waitcnt vmcnt(0)")
    A.label("CT_SYNC")
    A("s_barrier")
    if stamp: stamp()
    A("s_cmp_ge_u32 s%d, 4\ns_cbranch_scc1 CT_END" % S_WAVE)
    A("s_lshl_b32 s42, s%d, 7\ns_add_u32 s42, s42, %d" % (S_C, FLAGS + F_CT * 128))
    A("s_cmp_lg_u32 s%d, 0\ns_cbranch_scc1 CT_NS" % S_WAVE)
    A("v_mov_b32 v9, 1\ns_mov_b64 exec, 1\nbuffer_atomic_add v9, off, s[8:11], s42\ns_mov_b64 exec, -1")
    A.label("CT_NS")
    A("s_mov_b32 s%d, 0" % TO)
    A.label("CT_FW")
    A("buffer_load_dword v10, off, s[8:11], s42 sc1")
    A("s_add_u32 s%d, s%d, 1\ns_cmp_gt_u32 s%d, 400000\ns_cbranch_scc1 %s" % (TO, TO, TO, abort))
    A("s_waitcnt vmcnt(0)\nv_cmp_ne_u32 vcc, 4, v10\ns_cbranch_vccnz CT_FW")
    mk_srd(A, 20, ptr(10), 0x800000)
    for t in range(1, 4):
        A("s_add_u32 s42, s%d, %d\ns_and_b32 s42, s42, 3\ns_lshl_b32 s42, s42, 10\nv_add_u32 v%d, s42, v4" % (S_X, t, 10 + t))
    A("s_lshl_b32 s42, s48, 19\ns_add_u32 s51, s51, s42")
    GA = 128
    for q in range(n // 4):
        for t in range(3): A("buffer_load_dwordx4 %s, v%d, s[8:11], s51 offen sc1" % (vr(GA + 12 * q + 4 * t, 4), 11 + t))
        A("s_add_u32 s51, s51, 0x200000")
    A("s_lshr_b32 s42, s%d, 1\ns_lshl_b32 s42, s42, 16\ns_and_b32 s43, s%d, 1\ns_lshl_b32 s43, s43, 3\ns_add_u32 s42, s42, s43\ns_lshl_b32 s43, s%d, 6\ns_add_u32 s42, s42, s43" % (S_WAVE, S_WAVE, S_C))
    A("v_lshlrev_b32 v7, 12, v1\nv_lshl_add_u32 v7, v2, 4, v7\nv_add_u32 v7, s42, v7")
    A("s_add_u32 s42, s48, %d\ns_lshl_b32 s42, s42, 17" % ct0)
    for q in range(n // 4):
        A("s_waitcnt vmcnt(%d)" % (3 * (n // 4 - 1 - q) + q))
        for t in range(3):
            for i in range(4): A("v_add_f32 v%d, v%d, v%d" % (OWN + 4 * q + i, OWN + 4 * q + i, GA + 12 * q + 4 * t + i))
        A("v_cvt_pk_bf16_f32 v%d, v%d, v%d\nv_cvt_pk_bf16_f32 v%d, v%d, v%d" % (OWN + 4 * q, OWN + 4 * q, OWN + 4 * q + 1, OWN + 4 * q + 1, OWN + 4 * q + 2, OWN + 4 * q + 3))
        A("buffer_store_dwordx2 %s, v7, s[20:23], s42 offen\ns_add_u32 s42, s42, 0x80000" % vr(OWN + 4 * q, 2))
    A.label("CT_END")

B2_KSLOT = 32768
B2_SLOT = 2 * B2_KSLOT
B2_LDS = 2 * B2_SLOT

B2_QSCALE = 32 ** -0.5 * math.log2(math.e)

def emit_b2(A, tag, s_head, s_qb, s_wave, ldflag="", stflag=""):
    T0, T1, SKO, SVO, SMODE, SCH, SWS, SRS, SMK, SMV = 40, 41, 42, 43, 44, 46, 47, 48, 49, 50
    Q, O, KF, VF, P = 16, 24, 40, 56, 72
    SB = [96, 128]
    NM, LS, ONE = 160, 176, 192
    M, L, MN, T = 88, 90, 92, 94
    VKD, VVD, KA, VA_, CK, CV = 2, 3, 4, 6, 8, 10
    A("s_mov_b32 s%d, 0" % SMODE)
    A.label("B2%s_START" % tag)
    A("v_lshlrev_b32 v%d, 4, v0" % VKD)
    A("s_lshl_b32 s%d, s%d, 17\ns_lshl_b32 s%d, s%d, 12\ns_add_u32 s%d, s%d, s%d\ns_add_u32 s%d, s%d, %d\ns_add_u32 s%d, s%d, %d" % (SKO, s_head, SMK, s_wave, SKO, SKO, SMK, SVO, SKO, BV, SKO, SKO, BK))
    A("s_add_u32 s%d, s%d, %d" % (SMV, SMK, B2_KSLOT))
    A("s_mov_b32 s%d, 0" % SWS)
    def dma():
        A("s_add_u32 m0, s%d, s%d" % (SMK, SWS))
        for j in range(4): A("buffer_load_dwordx4 v%d, s[8:11], s%d offen offset:%d %s lds" % (VKD, SKO, 1024 * j, ldflag))
        A("s_add_u32 m0, s%d, s%d" % (SMV, SWS))
        for j in range(4): A("buffer_load_dwordx4 v%d, s[8:11], s%d offen offset:%d %s lds" % (VKD, SVO, 1024 * j, ldflag))
        A("s_add_u32 s%d, s%d, 0x8000\ns_add_u32 s%d, s%d, 0x8000" % (SKO, SKO, SVO, SVO))
        A("s_sub_u32 s%d, %d, s%d" % (SWS, B2_SLOT, SWS))
    dma()
    A("v_and_b32 v%d, 31, v0\nv_lshrrev_b32 v%d, 5, v0" % (T, T + 1))
    A("s_lshl_b32 s%d, s%d, 14\ns_lshl_b32 s%d, s%d, 11\ns_add_u32 s%d, s%d, s%d\ns_lshl_b32 s%d, s%d, 17\ns_add_u32 s%d, s%d, s%d\ns_add_u32 s%d, s%d, %d" % (T0, s_qb, T1, s_wave, T0, T0, T1, T1, s_head, T0, T0, T1, T0, T0, BQ))
    A("buffer_load_dwordx4 %s, v%d, s[8:11], s%d offen %s" % (vr(Q, 4), VKD, T0, ldflag))
    A("buffer_load_dwordx4 %s, v%d, s[8:11], s%d offen offset:1024 %s" % (vr(Q + 4, 4), VKD, T0, ldflag))
    A("v_lshlrev_b32 v13, 11, v%d\nv_lshl_add_u32 v13, v%d, 4, v13" % (T, T + 1))
    A("v_and_b32 v14, 0x13, v%d\nv_bfe_u32 v15, v%d, 2, 1\nv_lshl_or_b32 v14, v15, 3, v14\nv_bfe_u32 v15, v%d, 3, 1\nv_lshl_or_b32 v14, v15, 2, v14" % (T, T, T))
    A("v_lshlrev_b32 v14, 4, v14\nv_lshl_add_u32 v%d, v%d, 9, v14" % (KA, T + 1))
    A("v_add_u32 v%d, %d, v%d" % (VA_, B2_KSLOT, VKD))
    for i in range(16): A("v_mov_b32 v%d, 0\nv_mov_b32 v%d, 0" % (O + i, LS + i))
    for i in range(4): A("v_mov_b32 v%d, 0x3f803f80" % (ONE + i))
    A("v_mov_b32 v%d, 0xff800000" % M)
    A("s_mov_b32 s%d, 0\ns_mov_b32 s%d, 0" % (SRS, SCH))
    def kreads(off):
        return ["ds_read_b128 %s, v%d offset:%d" % (vr(KF + 8 * t + 4 * ks, 4), CK, off + 2048 * t + 1024 * ks) for t in range(2) for ks in range(2)]
    def vreads(off):
        return ["ds_read_b128 %s, v%d offset:%d" % (vr(VF + 4 * j, 4), CV, off + 1024 * j) for j in range(4)]
    def qk(sb, c0):
        Lm = []
        for ks in range(2):
            for t in range(2):
                d = vr(SB[sb] + 16 * t, 16)
                Lm.append("v_mfma_f32_32x32x16_bf16 %s, %s, %s, %s" % (d, vr(KF + 8 * t + 4 * ks, 4), vr(Q + 4 * ks, 4), c0 if ks == 0 else d))
        return Lm
    def rowmax(s, first):
        A("v_max3_f32 v%d, v%d, v%d, v%d" % (MN, first, s, s + 1))
        for j in range(2, 32, 2): A("v_max3_f32 v%d, v%d, v%d, v%d" % (MN, MN, s + j, s + j + 1))
        A("v_mov_b32 v%d, v%d\nv_permlane32_swap_b32 v%d, v%d\nv_max_f32 v%d, v%d, v%d" % (T, MN, MN, T, MN, MN, T))
    def exp_pv(sb, nxt, sub):
        s = SB[sb]; nx = list(nxt)
        for u in range(4):
            b = s + 8 * u
            if sub:
                for j in range(8): A("v_sub_f32 v%d, v%d, v%d" % (b + j, b + j, M))
            for j in range(8):
                A("v_exp_f32 v%d, v%d" % (b + j, b + j))
                if j == 3 and u > 0: A("v_mfma_f32_32x32x16_bf16 %s, %s, %s, %s" % (vr(LS, 16), vr(ONE, 4), vr(P + 4 * u - 4, 4), vr(LS, 16)))
                if j == 7 and nx: A(nx.pop(0))
            for j in range(4): A("v_cvt_pk_bf16_f32 v%d, v%d, v%d" % (P + 4 * u + j, b + 2 * j, b + 2 * j + 1))
            if u == 0 and not nxt: A("s_waitcnt lgkmcnt(0)")
            A("v_mfma_f32_32x32x16_bf16 %s, %s, %s, %s" % (vr(O, 16), vr(VF + 4 * u, 4), vr(P + 4 * u, 4), vr(O, 16)))
        A("v_mfma_f32_32x32x16_bf16 %s, %s, %s, %s" % (vr(LS, 16), vr(ONE, 4), vr(P + 12, 4), vr(LS, 16)))
    def chunk_head(v):
        A.label("B2%s_CH%s" % (tag, v))
        A("s_waitcnt vmcnt(0)\ns_barrier")
        A("s_cmp_eq_u32 s%d, 3\ns_cbranch_scc1 B2%s_ND%s" % (SCH, tag, v))
        dma()
        A.label("B2%s_ND%s" % (tag, v))
        A("v_add_u32 v%d, s%d, v%d\nv_add_u32 v%d, s%d, v%d" % (CK, SRS, KA, CV, SRS, VA_))
        A("s_sub_u32 s%d, %d, s%d" % (SRS, B2_SLOT, SRS))
        for r in kreads(0): A(r)
        A("s_waitcnt lgkmcnt(0)")
    A("s_cmp_eq_u32 s%d, 1\ns_cbranch_scc1 B2%s_CHx" % (SMODE, tag))
    chunk_head("f")
    A("s_cmp_lg_u32 s%d, 0\ns_cbranch_scc1 B2%s_HAVEM" % (SCH, tag))
    for m in qk(0, "0"): A(m)
    rowmax(SB[0], SB[0])
    for i in range(16): A("v_sub_f32 v%d, 0, v%d" % (NM + i, MN))
    A.label("B2%s_HAVEM" % tag)
    for m in qk(0, vr(NM, 16)): A(m)
    for it in range(8):
        sb = it & 1
        for r in vreads(4096 * it): A(r)
        nxt = []
        if it < 7:
            for r in kreads(4096 * (it + 1)): A(r)
            q = qk(1 - sb, vr(NM, 16))
            nxt = ["s_waitcnt lgkmcnt(0)\n" + q[0]] + q[1:]
        exp_pv(sb, nxt, False)
    A("s_add_u32 s%d, s%d, 1\ns_cmp_lt_u32 s%d, 4\ns_cbranch_scc1 B2%s_CHf" % (SCH, SCH, SCH, tag))
    A("v_mov_b32 v%d, 0x4e800000\nv_cmp_nlt_f32 vcc, v%d, v%d" % (T, LS, T))
    A("s_cmp_lg_u64 vcc, 0\ns_cselect_b32 s%d, 1, 0\ns_lshl_b32 s%d, s%d, 2" % (T0, T1, s_wave))
    A("v_mov_b32 v%d, s%d\nv_mov_b32 v%d, s%d\nds_write_b32 v%d, v%d\ns_waitcnt lgkmcnt(0)\ns_barrier" % (T, T1, T + 1, T0, T, T + 1))
    A("v_and_b32 v%d, 7, v0\nv_lshlrev_b32 v%d, 2, v%d\nds_read_b32 v%d, v%d\ns_waitcnt lgkmcnt(0)" % (T, T, T, T + 1, T))
    A("v_cmp_ne_u32 vcc, 0, v%d\ns_cbranch_vccz B2%s_FIN" % (T + 1, tag))
    A("s_barrier\ns_mov_b32 s%d, 1\ns_branch B2%s_START" % (SMODE, tag))
    chunk_head("x")
    A("s_mov_b32 s%d, 0" % T1)
    A.label("B2%s_XL" % tag)
    for m in qk(0, "0"): A(m)
    for r in vreads(0): A(r)
    rowmax(SB[0], M)
    A("v_sub_f32 v%d, v%d, v%d\nv_exp_f32 v%d, v%d\nv_mov_b32 v%d, v%d" % (T, M, MN, T, T, M, MN))
    for j in range(16): A("v_mul_f32 v%d, v%d, v%d" % (O + j, O + j, T))
    A("v_mul_f32 v%d, v%d, v%d" % (LS, LS, T))
    exp_pv(0, [], True)
    A("v_add_u32 v%d, 0x1000, v%d\nv_add_u32 v%d, 0x1000, v%d" % (CK, CK, CV, CV))
    A("s_add_u32 s%d, s%d, 1\ns_cmp_eq_u32 s%d, 8\ns_cbranch_scc1 B2%s_XN" % (T1, T1, T1, tag))
    for r in kreads(0): A(r)
    A("s_waitcnt lgkmcnt(0)\ns_branch B2%s_XL" % tag)
    A.label("B2%s_XN" % tag)
    A("s_add_u32 s%d, s%d, 1\ns_cmp_lt_u32 s%d, 4\ns_cbranch_scc1 B2%s_CHx" % (SCH, SCH, SCH, tag))
    A.label("B2%s_FIN" % tag)
    A("v_rcp_f32 v%d, v%d" % (M, LS))
    for j in range(16): A("v_mul_f32 v%d, v%d, v%d" % (O + j, O + j, M))
    for j in range(8): A("v_cvt_pk_bf16_f32 v%d, v%d, v%d" % (P + j, O + 2 * j, O + 2 * j + 1))
    A("s_lshl_b32 s%d, s%d, 19\ns_lshl_b32 s%d, s%d, 16\ns_add_u32 s%d, s%d, s%d\ns_lshl_b32 s%d, s%d, 6\ns_add_u32 s%d, s%d, s%d\ns_add_u32 s%d, s%d, %d" % (T0, s_qb, T1, s_wave, T0, T0, T1, T1, s_head, T0, T0, T1, T0, T0, BO))
    for k in range(2):
        A("v_permlane32_swap_b32 v%d, v%d\nv_permlane32_swap_b32 v%d, v%d" % (P + 4 * k, P + 4 * k + 2, P + 4 * k + 1, P + 4 * k + 3))
        A("buffer_store_dwordx4 %s, v13, s[8:11], s%d offen offset:%d %s" % (vr(P + 4 * k, 4), T0, 32 * k, stflag))
```

```python
from asmlib import *
from layout import *
import math, struct, os
OPT = os.environ.get("OPT", "").split(",")

def f32bits(x):
    return struct.unpack("<I", struct.pack("<f", x))[0]

S_WS = 8
S_W = 12
S_PB = 22
S_X, S_C, S_WAVE, S_STEP, S_CUR, S_NXT, S_RST, S_DONE = 32, 33, 34, 35, 36, 37, 38, 39
S_MLO = 40
S_MM = 42
S_TO = 44
S_T0, S_T1, S_T2, S_T3 = 45, 46, 47, 48
S_SC = 49
S_KOFF, S_VOFF, S_KMOFF, S_VMOFF = 50, 51, 52, 53
S_RDY = 25
S_PCUR, S_PRST = 27, 28
S_PSEL = 26
S_DUM = 24
S_G2 = 54
S_PTR = 60
TIMEOUT = 200000

RED_QK, RED_V, RED_O = 0, 8192, 16384
PSEL_LDS = 131072
KVM_LDS = 20480

def ptr(i):
    return S_PTR + 2 * i

def mk_srd(A, d, p, nbytes):
    A("s_mov_b32 s%d, s%d\ns_and_b32 s%d, s%d, 0xffff\ns_mov_b32 s%d, 0x%x\ns_mov_b32 s%d, 0x20000" % (d, p, d + 1, p + 1, d + 2, nbytes, d + 3))

def check(A, regs_list, tmp, retry):
    r = list(regs_list)
    if len(r) >= 3:
        A("v_max3_u32 v%d, v%d, v%d, v%d" % (tmp, r[0], r[1], r[2])); r = r[3:]
    else:
        A("v_max_u32 v%d, v%d, v%d" % (tmp, r[0], r[1])); r = r[2:]
    while r:
        if len(r) >= 2:
            A("v_max3_u32 v%d, v%d, v%d, v%d" % (tmp, tmp, r[0], r[1])); r = r[2:]
        else:
            A("v_max_u32 v%d, v%d, v%d" % (tmp, tmp, r[0])); r = r[1:]
    A("v_cmp_eq_u32 vcc, -1, v%d" % tmp)
    A("s_cbranch_vccnz %s" % retry)

def poll_head(A, name, abort):
    A("s_mov_b32 s%d, 0" % S_TO)
    A.label(name)
    A("s_add_u32 s%d, s%d, 1\ns_cmp_gt_u32 s%d, %d\ns_cbranch_scc1 %s" % (S_TO, S_TO, S_TO, TIMEOUT, abort))

def seq_poll(A, name, abort, n, issue, regs_of, block, vtmp, first=None, dbg=False, tails=None, back=3):
    first = first or n
    def chk_ops(u):
        r = list(regs_of(u))
        return ["v_max3_u32 v%d, v%d, v%d, v%d" % (vtmp, r[0], r[1], r[2]), "v_max_u32 v%d, v%d, v%d" % (vtmp, vtmp, r[3]), "v_cmp_eq_u32 vcc, -1, v%d" % vtmp]
    tmo = "s_add_u32 s%d, s%d, 1\ns_cmp_gt_u32 s%d, %d\ns_cbranch_scc1 %s" % (S_TO, S_TO, S_TO, TIMEOUT, abort)
    A("s_mov_b32 s%d, 0" % S_TO)
    A.label(name + "_R0")
    for u in range(first): A(issue(u))
    A(tmo)
    A("s_waitcnt vmcnt(%d)" % (first - 1))
    for x in chk_ops(0): A(x)
    A("s_cbranch_vccnz %s_R0" % name)
    if dbg: A("s_memrealtime s[94:95]\ns_mov_b32 s98, s%d" % S_TO)
    for u in range(first, n): A(issue(u))
    for u in range(n):
        if u:
            A("s_cbranch_vccnz %s_R%d" % (name, u))
            A.label("%s_B%d" % (name, u))
        blk = block(u)
        if u < n - 1:
            extra = ["s_waitcnt vmcnt(%d)" % (n - 2 - u)] + chk_ops(u + 1)
            idx = [i for i, x in enumerate(blk) if x.startswith("v_mfma")]
            pos = idx[-back:]
            out = []
            for i, x in enumerate(blk):
                if i == pos[0]: out.append(extra[0])
                out.append(x)
                if i == pos[0]: out.append(extra[1])
                if i == pos[1]: out += extra[2:]
            blk = out
        for x in blk: A(x)
    T = Asm()
    for u in range(1, n):
        T.label("%s_R%d" % (name, u))
        for v in range(u, n): T(issue(v))
        T(tmo)
        T("s_waitcnt vmcnt(%d)" % (n - 1 - u))
        for x in chk_ops(u): T(x)
        T("s_cbranch_vccnz %s_R%d" % (name, u))
        T("s_branch %s_B%d" % (name, u))
    tails.extend(T.lines)

def load_weights(A, vbase, nmat, mats, vtmp, pace=False):
    va, vw, vt = vtmp, vtmp + 1, vtmp + 2
    for b, (pi, nb, rs, soff) in enumerate(mats):
        if pace: A("s_barrier")
        mk_srd(A, S_W, ptr(pi), nb)
        A("v_lshrrev_b32 v%d, 2, v0" % va)
        A("s_mov_b32 s%d, %d" % (S_T0, rs))
        A("v_mul_lo_u32 v%d, v%d, s%d" % (va, va, S_T0))
        A("v_and_b32 v%d, 3, v0\nv_lshl_add_u32 v%d, v%d, 4, v%d" % (vt, va, vt, va))
        A("s_mov_b32 s%d, s%d" % (S_T1, soff))
        for i in range(16):
            A("buffer_load_dwordx4 %s, v%d, s[%d:%d], s%d offen" % (vr(vbase + b * 64 + i * 4, 4), va, S_W, S_W + 3, S_T1))
            if i < 15: A("s_add_u32 s%d, s%d, %d" % (S_T1, S_T1, 16 * rs))
    A("s_lshl_b32 s%d, s%d, 14" % (S_T0, S_WAVE))
    A("v_lshlrev_b32 v%d, 4, v0\nv_add_u32 v%d, s%d, v%d" % (vw, vw, S_T0, vw))
    A("v_lshrrev_b32 v%d, 4, v0\nv_lshlrev_b32 v%d, 9, v%d" % (va, va, va))
    A("v_bfe_u32 v%d, v0, 2, 2\nv_lshl_add_u32 v%d, v%d, 6, v%d" % (vt, va, vt, va))
    A("v_and_b32 v%d, 3, v0\nv_lshl_add_u32 v%d, v%d, 4, v%d" % (vt, va, vt, va))
    A("v_add_u32 v%d, s%d, v%d" % (va, S_T0, va))
    for b in range(nmat):
        A("s_waitcnt vmcnt(%d)" % ((nmat - 1 - b) * 16))
        for i in range(16):
            A("ds_write_b128 v%d, %s offset:%d" % (vw, vr(vbase + b * 64 + i * 4, 4), i * 1024))
        A("s_waitcnt lgkmcnt(0)")
        for kk in range(8):
            for a in range(2):
                for hf in range(2):
                    A("ds_read_b64_tr_b16 %s, v%d offset:%d" % (vr(vbase + b * 64 + kk * 8 + a * 4 + hf * 2, 2), va, kk * 2048 + hf * 256 + a * 8))
            if kk % 2 == 1: A("s_waitcnt lgkmcnt(0)")

def emit_probe(A, res):
    A("s_and_b32 s96, s2, 15\ns_lshl_b32 s96, s96, 8\ns_lshr_b32 s97, s2, 4\ns_lshl_b32 s97, s97, 14\ns_add_u32 s96, s96, s97\ns_add_u32 s96, s96, %d" % (PROBE))
    A("v_and_b32 v3, 3, v0\nv_lshlrev_b32 v3, 12, v3\nv_bfe_u32 v2, v0, 2, 1\nv_lshl_add_u32 v3, v2, 7, v3")
    A("s_mov_b64 exec, 0xff")
    A("buffer_store_dword v3, v3, s[8:11], s96 offen sc1\ns_waitcnt vmcnt(0)")
    A("s_add_u32 s96, s%d, s96\ns_addc_u32 s97, s%d, 0" % (ptr(12), ptr(12) + 1))
    for o in (64, 4096 + 64, 8192 + 64, 12288 + 64): A("s_load_dword s92, s[96:97], 0x%x" % o)
    A("s_mov_b32 s94, -1\ns_mov_b32 s95, -1\ns_waitcnt lgkmcnt(0)")
    for i, (h, o) in enumerate([(0, 128), (1, 128), (1, 4096 + 128), (0, 4096 + 128)]):
        A("s_memtime s[90:91]\ns_waitcnt lgkmcnt(0)")
        A("s_load_dword s92, s[96:97], 0x%x\ns_waitcnt lgkmcnt(0)" % (h * 8192 + o))
        A("s_memtime s[92:93]\ns_waitcnt lgkmcnt(0)\ns_sub_u32 s92, s92, s90\ns_min_u32 s%d, s%d, s92" % (94 + h, 94 + h))
    A("s_mov_b64 exec, -1\nv_mov_b32 v2, 0")
    A("s_cmp_lt_u32 s95, s94\ns_cselect_b32 s%d, 1, 0" % res)

def next_slots(A):
    A("s_mov_b32 s%d, s%d\ns_mov_b32 s%d, s%d" % (S_CUR, S_NXT, S_NXT, S_RST))
    A("s_add_u32 s%d, s%d, %d\ns_cmp_eq_u32 s%d, %d\ns_cselect_b32 s%d, %d, s%d" % (S_RST, S_RST, SLOT, S_RST, EXCH + 4 * SLOT, S_RST, EXCH, S_RST))
    A("s_add_u32 s%d, s%d, 1" % (S_STEP, S_STEP))
    part_slots(A)

def part_slots(A):
    A("s_lshr_b32 s%d, s%d, 3\ns_lshl_b32 s%d, s%d, 22\ns_and_b32 s%d, s%d, 7\ns_lshl_b32 s%d, s%d, 18\ns_add_u32 s%d, s%d, s%d" % (S_PCUR, S_STEP, S_PCUR, S_PCUR, S_PRST, S_STEP, S_PRST, S_PRST, S_PCUR, S_PCUR, S_PRST))

def part_off(A, dst, sx):
    A("s_lshl_b32 s%d, s%d, 10" % (dst, sx))
    A("s_lshr_b32 s%d, s%d, 1\ns_lshl_b32 s%d, s%d, 14\ns_add_u32 s%d, s%d, s%d" % (S_T1, S_C, S_T1, S_T1, dst, dst, S_T1))
    A("s_and_b32 s%d, s%d, 1\ns_lshl_b32 s%d, s%d, 12\ns_add_u32 s%d, s%d, s%d\ns_add_u32 s%d, s%d, %d" % (S_T1, S_C, S_T1, S_T1, dst, dst, S_T1, dst, dst, PARTB))

def pk_add(A, d, a, b, n):
    if "nopk" in OPT:
        for i in range(n): A("v_add_f32 v%d, v%d, v%d" % (d + i, a + i, b + i))
        return
    for i in range(0, n, 2):
        A("v_pk_add_f32 %s, %s, %s" % (vr(d + i, 2), vr(a + i, 2), vr(b + i, 2)))

def emit_chain(A0, done, intra="", nstep=64, ready_wait=None, stamps=False, pfx="CH_", gate=False, abort=None, kv0=64):
    A = Asm()
    _emit_chain(A, done, intra, nstep, ready_wait, stamps, gate, abort, kv0)
    for l in A.lines: A0.lines.append(l.replace("CH_", pfx))

def _emit_chain(A, done, intra="", nstep=64, ready_wait=None, stamps=False, gate=False, abort=None, kv0=64):
    ab = abort or done
    tails = []
    def flush():
        A.lines.extend(tails); del tails[:]
    def optn(k, dflt):
        for o in OPT:
            if o.startswith(k): return int(o[len(k):])
        return dflt
    FINE = "fine" in OPT
    def st(i):
        if stamps and not FINE: A("s_memrealtime s[%d:%d]" % (86 + 2 * i, 87 + 2 * i))
    def ft(i):
        if stamps and FINE: A("s_memtime s[%d:%d]" % (86 + 2 * i, 87 + 2 * i))
    ACCM = "acc" in OPT
    def cnt():
        if stamps: A("s_mov_b32 s100, s%d" % S_TO)
        if ACCM:
            A("s_memrealtime s[96:97]\ns_lshl_b32 s98, s%d, 5\ns_add_u32 s98, s98, s%d\ns_lshl_b32 s98, s98, 3\ns_add_u32 s98, s98, s%d\ns_lshl_b32 s98, s98, 6\ns_add_u32 s98, s98, s%d\ns_lshl_b32 s98, s98, 3\ns_add_u32 s98, s98, 0x6200000\ns_mov_b32 s99, s%d" % (S_X, S_C, S_WAVE, S_STEP, S_TO))
    def logit(va, vb):
        if ACCM:
            A("s_waitcnt lgkmcnt(0)\nv_mov_b32 v%d, s96\nv_mov_b32 v%d, s99\ns_mov_b64 exec, 1\nbuffer_store_dwordx2 v[%d:%d], off, s[8:11], s98\ns_mov_b64 exec, -1" % (va, vb, va, vb))
    def dump(tag):
        if not stamps: return
        A("s_cmp_lg_u32 s%d, %d\ns_cbranch_scc1 CH_ND%s" % (S_STEP, stamps, tag))
        A("s_waitcnt lgkmcnt(0)")
        A("s_lshl_b32 s%d, s%d, 3\ns_add_u32 s%d, s%d, s%d" % (S_T0, S_C, S_T0, S_T0, S_X))
        A("s_lshl_b32 s%d, s45, 3\ns_add_u32 s%d, s%d, s%d\ns_lshl_b32 s%d, s%d, 6\ns_add_u32 s%d, s%d, 0x6000000" % (S_T0, S_T0, S_T0, S_WAVE, S_T0, S_T0, S_T0, S_T0))
        A("s_mov_b64 exec, 1")
        for i in range(8):
            A("v_mov_b32 v5, s%d\nbuffer_store_dword v5, v2, s[8:11], s%d offen offset:%d" % (86 + 2 * i, S_T0, 4 * i))
        A("s_mov_b64 exec, -1")
        A.label("CH_ND" + tag)
    def backoff(k, dflt):
        n = dflt
        for o in OPT:
            if o.startswith("d" + k): n = int(o[2:])
        if n: A("s_sleep %d" % n)
    def kv_gate(name, soff, tgt=64):
        A("s_mov_b32 s%d, 0" % S_TO)
        A.label(name)
        A("buffer_load_dword v5, off, s[8:11], s%d sc1" % soff)
        A("s_add_u32 s%d, s%d, 1\ns_cmp_gt_u32 s%d, %d\ns_cbranch_scc1 %s" % (S_TO, S_TO, S_TO, TIMEOUT, ab))
        A("s_waitcnt vmcnt(0)\nv_cmp_eq_u32 vcc, %d, v5\ns_cbranch_vccnz %s_OK\ns_sleep 8\ns_branch %s" % (tgt, name, name))
        A.label(name + "_OK")
    def progress(f):
        A("s_lshl_b32 s%d, s%d, 7\ns_add_u32 s%d, s%d, %d" % (S_T0, S_X, S_T0, S_T0, FLAGS + f * 128))
        A("v_mov_b32 v5, 1\ns_mov_b64 exec, 1\nbuffer_atomic_add v5, off, s[8:11], s%d\ns_mov_b64 exec, -1" % S_T0)
    def sst():
        if "sst" in OPT:
            A("s_memrealtime s[96:97]\ns_lshl_b32 s98, s%d, 3\ns_add_u32 s98, s98, s%d\ns_lshl_b32 s98, s98, 2\ns_add_u32 s98, s98, 0x6300000\ns_waitcnt lgkmcnt(0)\nv_mov_b32 v5, s96\ns_mov_b64 exec, 1\nbuffer_store_dword v5, off, s[8:11], s98\ns_mov_b64 exec, -1" % (S_T2, S_WAVE))
    PF = "wpf" in OPT
    last = lambda: A("s_cmp_eq_u32 s%d, %d\ns_cbranch_scc1 %s" % (S_STEP, nstep - 1, done))
    A("v_lshrrev_b32 v1, 6, v0\nv_and_b32 v0, 63, v0\nv_readfirstlane_b32 s%d, v1" % S_WAVE)
    A("s_mov_b32 s%d, 0x00ff00ff\ns_mov_b32 s%d, 0x00ff00ff" % (S_MLO, S_MLO + 1))
    A("s_mov_b32 s%d, 0\ns_mov_b32 s%d, 0x00ff00ff" % (S_MM, S_MM + 1))
    A("s_mov_b32 s%d, 0\ns_mov_b32 s%d, -1" % (S_G2, S_G2 + 1))
    A("s_mov_b32 s%d, %d" % (S_DUM, EXCH + 4 * SLOT))
    A("s_mov_b32 s%d, 0\ns_mov_b32 s%d, %d\ns_mov_b32 s%d, %d\ns_mov_b32 s%d, %d" % (S_STEP, S_CUR, EXCH, S_NXT, EXCH + SLOT, S_RST, EXCH + 2 * SLOT))
    part_slots(A)
    A("v_bfe_u32 v1, v0, 3, 1\nv_lshlrev_b32 v1, 9, v1\nv_lshrrev_b32 v2, 4, v0\nv_lshl_add_u32 v1, v2, 7, v1\nv_and_b32 v2, 7, v0\nv_lshl_add_u32 v1, v2, 4, v1")
    A("v_lshlrev_b32 v2, 4, v0")
    A("s_lshl_b32 s%d, s%d, 5\ns_add_u32 s%d, s%d, s%d" % (S_T2, S_X, S_T2, S_T2, S_C))
    A("s_cmp_ge_u32 s%d, 4\ns_cbranch_scc1 CH_WO" % S_WAVE)

    W = 64
    A("s_lshl_b32 s%d, s%d, 6" % (S_T3, S_T2))
    A("s_lshl_b32 s%d, s%d, 21\ns_add_u32 s%d, s%d, s%d" % (S_T0, S_WAVE, S_T3, S_T3, S_T0))
    load_weights(A, W, 3, [(2, 0x800000, 8192, S_T3), (3, 0x800000, 8192, S_T3), (4, 0x800000, 8192, S_T3)], 4, pace=PF)
    A("s_lshl_b32 s%d, s%d, 14\ns_lshl_b32 s%d, s%d, 12\ns_add_u32 s%d, s%d, s%d" % (S_T0, S_X, S_T1, S_WAVE, S_T0, S_T0, S_T1))
    A("v_add_u32 v3, s%d, v1" % S_T0)
    A("s_lshl_b32 s%d, s%d, 11\nv_add_u32 v4, s%d, v2" % (S_T0, S_WAVE, S_T0))
    R, RR, AQ, AK, AV = 8, 24, 40, 48, 56
    for i in range(16): A("v_mov_b32 v%d, 0" % (AQ + i))
    sst()
    A("s_barrier")
    wq = lambda kk, a: vr(W + kk * 8 + a * 4, 4)
    wk = lambda kk, a: vr(W + 64 + kk * 8 + a * 4, 4)
    wv = lambda kk, a: vr(W + 128 + kk * 8 + a * 4, 4)
    A.label("CH_Q_LOOP")
    st(0)
    backoff("m", 0)
    def q_blk(u):
        L = []
        for a in range(2):
            L.append("v_mfma_f32_16x16x32_bf16 %s, %s, %s, %s" % (vr(AQ + 4 * a, 4), wq(2 * u, a), vr(R + 4 * u, 4), vr(AQ + 4 * a, 4)))
            for i in range(2): L.append("v_mov_b32_dpp v%d, v%d row_ror:8 row_mask:0xf bank_mask:0xf" % (RR + 4 * u + 2 * a + i, R + 4 * u + 2 * a + i))
        for a in range(2):
            L.append("v_mfma_f32_16x16x32_bf16 %s, %s, %s, %s" % (vr(AK + 4 * a, 4), wk(2 * u + 1, a), vr(R + 4 * u, 4), vr(AK + 4 * a, 4)))
        for a in range(2):
            L.append("v_mfma_f32_16x16x32_bf16 %s, %s, %s, %s" % (vr(AQ + 4 * a, 4), wq(2 * u + 1, a), vr(RR + 4 * u, 4), vr(AQ + 4 * a, 4)))
            L.append("v_mfma_f32_16x16x32_bf16 %s, %s, %s, %s" % (vr(AK + 4 * a, 4), wk(2 * u, a), vr(RR + 4 * u, 4), vr(AK + 4 * a, 4)))
        return L
    seq_poll(A, "CH_QP", ab, 4,
             lambda u: "buffer_load_dwordx4 %s, v3, s[8:11], s%d offen offset:%d sc1" % (vr(R + 4 * u, 4), S_CUR, u * 1024),
             lambda u: range(R + 4 * u, R + 4 * u + 4), q_blk, 5, first=optn("fq", 2), back=optn("bq", 4), dbg=bool(stamps) and not FINE, tails=tails)
    st(1); cnt(); ft(0)
    for a in range(2):
        A("v_mfma_f32_16x16x32_bf16 %s, %s, %s, 0" % (vr(AV + 4 * a, 4), vr(R, 4), wv(1, a)))
    for i in range(8):
        A("v_cndmask_b32 v%d, v%d, v%d, s[%d:%d]" % (AQ + i, AK + i, AQ + i, S_MLO, S_MLO + 1))
        if i == 3: A("ds_write_b128 v4, %s offset:%d" % (vr(AQ, 4), RED_QK))
    A("ds_write_b128 v4, %s offset:%d" % (vr(AQ + 4, 4), RED_QK + 1024))
    st(2); ft(1)
    A("s_waitcnt lgkmcnt(0)")
    ft(2)
    A("s_barrier")
    st(3); ft(3)
    backoff("v", 0)
    for u in range(4):
        for a in range(2):
            if u > 0:
                A("v_mfma_f32_16x16x32_bf16 %s, %s, %s, %s" % (vr(AV + 4 * a, 4), vr(R + 4 * u, 4), wv(2 * u + 1, a), vr(AV + 4 * a, 4)))
            A("v_mfma_f32_16x16x32_bf16 %s, %s, %s, %s" % (vr(AV + 4 * a, 4), vr(RR + 4 * u, 4), wv(2 * u, a), vr(AV + 4 * a, 4)))
    A("ds_write_b128 v4, %s offset:%d" % (vr(AV, 4), RED_V))
    A("ds_write_b128 v4, %s offset:%d" % (vr(AV + 4, 4), RED_V + 1024))
    A("s_waitcnt lgkmcnt(0)\ns_barrier")
    dump("Q"); logit(8, 9)
    last()
    for i in range(16): A("v_mov_b32 v%d, 0" % (AQ + i))
    next_slots(A)
    A("s_barrier\ns_barrier\ns_barrier")
    A("s_branch CH_Q_LOOP")
    flush()

    A.label("CH_WO")
    WO = 192
    if PF:
        A("s_sub_u32 s%d, s%d, 4\ns_lshl_b32 s%d, s%d, 2\ns_add_u32 s%d, s%d, s%d" % (S_T0, S_WAVE, S_T1, S_C, S_T0, S_T0, S_T1))
        A("s_lshl_b32 s%d, s%d, 16\ns_lshl_b32 s%d, s%d, 11\ns_add_u32 s%d, s%d, s%d" % (S_T3, S_T0, S_T1, S_X, S_T3, S_T3, S_T1))
        A("s_lshl_b32 s%d, s%d, 14\ns_lshl_b32 s%d, s%d, 21\ns_add_u32 s%d, s%d, s%d" % (S_KOFF, S_T0, S_T1, S_X, S_KOFF, S_KOFF, S_T1))
        def pull(pi, soff, rs, vb):
            mk_srd(A, S_W, ptr(pi), 0x800000)
            A("s_mov_b32 s%d, s%d" % (S_T1, soff))
            for r in range(8):
                for h in range(2): A("buffer_load_dwordx4 %s, v2, s[%d:%d], s%d offen offset:%d" % (vr(vb + 8 * r + 4 * h, 4), S_W, S_W + 3, S_T1, 1024 * h))
                A("s_add_u32 s%d, s%d, %d" % (S_T1, S_T1, rs))
        pull(2, S_T3, 8192, 64); pull(3, S_T3, 8192, 128)
        A("s_waitcnt vmcnt(16)\ns_barrier")
        pull(4, S_T3, 8192, 64)
        A("s_waitcnt vmcnt(16)\ns_barrier")
        pull(5, S_KOFF, 2048, 128)
        A("s_waitcnt vmcnt(16)\ns_barrier\ns_waitcnt vmcnt(0)")
    A("s_lshl_b32 s%d, s%d, 21\ns_sub_u32 s%d, s%d, 4\ns_lshl_b32 s%d, s%d, 19\ns_add_u32 s%d, s%d, s%d" % (S_T3, S_X, S_T0, S_WAVE, S_T0, S_T0, S_T3, S_T3, S_T0))
    A("s_lshl_b32 s%d, s%d, 6\ns_add_u32 s%d, s%d, s%d" % (S_T0, S_C, S_T3, S_T3, S_T0))
    load_weights(A, WO, 1, [(5, 0x800000, 2048, S_T3)], 4)
    wo = lambda kk, a: vr(WO + kk * 8 + a * 4, 4)
    A("s_lshl_b32 s%d, s%d, 14\ns_sub_u32 s%d, s%d, 4\ns_lshl_b32 s%d, s%d, 12\ns_add_u32 s%d, s%d, s%d\ns_add_u32 s%d, s%d, %d" % (S_T0, S_X, S_T1, S_WAVE, S_T1, S_T1, S_T0, S_T0, S_T1, S_T0, S_T0, E_OX))
    A("v_add_u32 v3, s%d, v1" % S_T0)
    A("s_sub_u32 s%d, s%d, 4\ns_lshl_b32 s%d, s%d, 10\nv_add_u32 v4, s%d, v2" % (S_T0, S_WAVE, S_T0, S_T0, S_T0))
    A("v_lshrrev_b32 v6, 4, v0\nv_lshlrev_b32 v6, 7, v6\nv_and_b32 v7, 7, v0\nv_lshl_add_u32 v6, v7, 4, v6")
    A("s_lshl_b32 s%d, s%d, 9\nv_add_u32 v6, s%d, v6" % (S_T0, S_T2, S_T0))
    A("v_bfe_u32 v7, v0, 3, 1\nv_lshl_add_u32 v7, v7, 3, v6")
    part_off(A, S_T0, S_X)
    A("v_add_u32 v8, s%d, v2" % S_T0)
    A("s_mul_i32 s%d, s%d, 1280\ns_add_u32 s%d, s%d, %d\nv_add_u32 v9, s%d, v2" % (S_T0, S_T2, S_T0, S_T0, E_SX, S_T0))
    for i in range(4): A("v_mov_b32 v%d, -1" % (12 + i))
    def resets(soff, poff):
        A("buffer_store_dwordx4 v[12:15], v9, s[8:11], %s offen %s" % (soff, intra))
        if poff: A("buffer_store_dwordx4 v[12:15], v8, s[8:11], %s offen sc1" % poff)
        A("buffer_store_dwordx2 v[12:13], v7, s[8:11], %s offen offset:%d %s" % (soff, E_MEM, intra))
        A("s_add_u32 s%d, %s, %d" % (S_T0, soff, E_OX))
        A("buffer_store_dwordx2 v[12:13], v7, s[8:11], s%d offen %s" % (S_T0, intra))
        A("s_mov_b64 exec, 0xffff")
        A("buffer_store_dwordx4 v[12:15], v9, s[8:11], %s offen offset:1024 %s" % (soff, intra))
        A("s_mov_b64 exec, -1")
    R, RR, AO = 16, 32, 48
    def vm_setup():
        A("v_bfe_u32 v10, v0, 2, 2\nv_lshlrev_b32 v10, 3, v10\nv_and_b32 v11, 3, v0\nv_add_u32 v10, v10, v11")
        A("v_lshrrev_b32 v11, 4, v0\nv_lshlrev_b32 v11, 4, v11")
        A("s_lshl_b32 s%d, s%d, 16\ns_add_u32 s%d, s%d, %d" % (S_KMOFF, S_T2, S_KMOFF, S_KMOFF, KVM))
        A("v_and_b32 v60, 7, v0\nv_lshlrev_b32 v60, 4, v60\nv_lshl_add_u32 v60, v11, 3, v60")
        A("v_lshlrev_b32 v61, 4, v10\nv_bfe_u32 v62, v0, 4, 1\nv_lshl_add_u32 v61, v62, 3, v61")
    def vm_put(X, VM):
        A("s_and_b32 s%d, s%d, 7\ns_lshl_b32 s%d, s%d, 10\nv_add_u32 v10, s%d, v60\nv_add_u32 v11, s%d, v61" % (S_T0, S_STEP, S_T0, S_T0, S_T0, S_T0))
        A("s_not_b64 exec, s[%d:%d]" % (S_MLO, S_MLO + 1))
        A("ds_write_b128 v10, %s offset:%d" % (vr(X, 4), KVM_LDS))
        A("s_mov_b64 exec, s[%d:%d]" % (S_G2, S_G2 + 1))
        A("ds_write_b64 v11, %s offset:%d\nds_write_b64 v11, %s offset:%d" % (vr(VM, 2), KVM_LDS + 512, vr(VM + 2, 2), KVM_LDS + 576))
        A("s_mov_b64 exec, -1\ns_waitcnt lgkmcnt(0)")
    def vm_one(sidx, reg):
        A("s_and_b32 s%d, s%d, 7\ns_lshl_b32 s%d, s%d, 10\nv_add_u32 v10, s%d, v2\nds_read_b128 %s, v10 offset:%d" % (S_T0, sidx, S_T0, S_T0, S_T0, vr(reg, 4), KVM_LDS))
        A("s_lshl_b32 s%d, s%d, 10\ns_add_u32 s%d, s%d, s%d\ns_waitcnt lgkmcnt(0)" % (S_T0, sidx, S_T0, S_T0, S_KMOFF))
        A("buffer_store_dwordx4 %s, v2, s[8:11], s%d offen sc1" % (vr(reg, 4), S_T0))
    def zero_ao():
        for i in range(8): A("v_mov_b32 v%d, 0" % (AO + i))
    def wo_phase(tag):
        if tag != "5": st(0)
        backoff("o", 2)
        def blk(u):
            L = ["v_mfma_f32_16x16x32_bf16 %s, %s, %s, %s" % (vr(AO, 4), wo(2 * u, 0), vr(R + 4 * u, 4), vr(AO, 4))]
            for i in range(4): L.append("v_mov_b32_dpp v%d, v%d row_ror:8 row_mask:0xf bank_mask:0xf" % (RR + i, R + 4 * u + i))
            L.append("v_mfma_f32_16x16x32_bf16 %s, %s, %s, %s" % (vr(AO + 4, 4), wo(2 * u + 1, 1), vr(R + 4 * u, 4), vr(AO + 4, 4)))
            L.append("v_mfma_f32_16x16x32_bf16 %s, %s, %s, %s" % (vr(AO, 4), wo(2 * u + 1, 0), vr(RR, 4), vr(AO, 4)))
            L.append("v_mfma_f32_16x16x32_bf16 %s, %s, %s, %s" % (vr(AO + 4, 4), wo(2 * u, 1), vr(RR, 4), vr(AO + 4, 4)))
            return L
        seq_poll(A, "CH_OP" + tag, ab, 4,
                 lambda u: "buffer_load_dwordx4 %s, v3, s[8:11], s%d offen offset:%d sc1" % (vr(R + 4 * u, 4), S_CUR, u * 1024),
                 lambda u: range(R + 4 * u, R + 4 * u + 4), blk, 5, first=optn("fo", 4), dbg=bool(stamps) and tag == "7" and not FINE, tails=tails)
        if tag != "5": st(1)
        if tag in "47": cnt()
        for i in range(4):
            A("v_cndmask_b32 v%d, v%d, v%d, s[%d:%d]" % (AO + i, AO + 4 + i, AO + i, S_MLO, S_MLO + 1))
        A("ds_write_b128 v4, %s offset:%d" % (vr(AO, 4), RED_O))
        if tag != "5": st(2)
        A("s_waitcnt lgkmcnt(0)\ns_barrier")
        if tag != "5": st(3)
    def red_o(me):
        o = [w for w in range(4) if w != me]
        for n, w in enumerate(o):
            A("ds_read_b128 %s, v2 offset:%d" % (vr(RR + 4 * n, 4), RED_O + w * 1024))
        A("s_waitcnt lgkmcnt(1)")
        pk_add(A, AO, AO, RR, 4)
        A("s_waitcnt lgkmcnt(0)")
        pk_add(A, RR + 4, RR + 4, RR + 8, 4)
        pk_add(A, AO, AO, RR + 4, 4)
    zero_ao()
    A("s_cmp_eq_u32 s%d, 4\ns_cbranch_scc1 CH_W4" % S_WAVE)
    A("s_cmp_eq_u32 s%d, 5\ns_cbranch_scc1 CH_W5" % S_WAVE)
    A("s_cmp_eq_u32 s%d, 6\ns_cbranch_scc1 CH_W6" % S_WAVE)

    WAH = optn("wa", 2)
    def warm_init(kind):
        o = {"k": 0, "v0": 1408, "v1": 2816}[kind]
        A("s_lshl_b32 s%d, s%d, 18\ns_add_u32 s%d, s%d, %d" % (S_T0, S_T2, S_T0, S_T0, KV + 4096 * WAH + o))
        A("s_add_u32 s%d, s%d, s%d\ns_addc_u32 s%d, s%d, 0" % (S_PB, ptr(12), S_T0, S_PB + 1, ptr(12) + 1))
    def warm(kind, half):
        if "nowarm" in OPT: return
        A("s_cmp_ge_u32 s%d, %d\ns_cbranch_scc1 CH_NW%s%d" % (S_STEP, nstep - WAH, kind, half))
        n = 10 if kind == "v1" else 11
        for r in range(half * n, half * n + n):
            A("s_load_dword s20, s[%d:%d], 0x%x" % (S_PB, S_PB + 1, r * 64))
        if half: A("s_add_u32 s%d, s%d, 4096\ns_addc_u32 s%d, s%d, 0" % (S_PB, S_PB, S_PB + 1, S_PB + 1))
        A.label("CH_NW%s%d" % (kind, half))
    warm_init("k")
    sst()
    A("s_barrier")
    A.label("CH_W7_LOOP")
    if "tl" in OPT:
        A("s_memrealtime s[96:97]\ns_lshl_b32 s98, s%d, 2\ns_add_u32 s98, s98, 0x8000\ns_waitcnt lgkmcnt(0)\nv_mov_b32 v10, s98\nv_mov_b32 v11, s96\nds_write_b32 v10, v11" % S_STEP)
        A("s_cmp_lg_u32 s%d, 63\ns_cbranch_scc1 CH_TLN" % S_STEP)
        A("v_lshlrev_b32 v10, 2, v0\ns_waitcnt lgkmcnt(0)\nds_read_b32 v11, v10 offset:0x8000\ns_lshl_b32 s98, s%d, 8\ns_add_u32 s98, s98, 0x6200000\ns_waitcnt lgkmcnt(0)" % S_T2)
        A("buffer_store_dword v11, v10, s[8:11], s98 offen")
        A.label("CH_TLN")
    warm("k", 0)
    A("s_barrier")
    if gate:
        A("s_sub_u32 s%d, s%d, 1\ns_and_b32 s%d, s%d, 7\ns_cmp_gt_u32 s%d, 57\ns_cselect_b32 s%d, 0, s%d\ns_cmp_lt_u32 s%d, 2\ns_cselect_b32 s%d, 1, s%d\ns_cmp_lg_u32 s%d, 0\ns_cbranch_scc1 CH_W7_NP" % (S_T0, S_STEP, S_T0, S_T0, S_STEP, S_T0, S_T0, S_STEP, S_T0, S_T0, S_T0))
        progress(F_CP)
        A.label("CH_W7_NP")
    A("s_barrier")
    resets("s%d" % S_RST, None)
    last()
    warm("k", 1)
    A("s_barrier")
    wo_phase("7")
    if gate:
        A("s_add_u32 s%d, s%d, %d\ns_and_b32 s%d, s%d, 0x47\ns_cbranch_scc1 CH_W7_NG" % (S_T0, S_STEP, WAH + 1, S_T1, S_T0))
        A("s_lshl_b32 s%d, s%d, 4\ns_add_u32 s%d, s%d, %d" % (S_T0, S_T0, S_T0, S_T0, FLAGS + F_KV * 128))
        kv_gate("CH_W7_G", S_T0)
        A.label("CH_W7_NG")

    dump("7"); logit(10, 11)
    zero_ao()
    next_slots(A)
    A("s_barrier")
    A("s_branch CH_W7_LOOP")
    flush()

    A.label("CH_W6")
    for t in range(1, 4):
        A("s_add_u32 s%d, s%d, %d\ns_and_b32 s%d, s%d, 3" % (S_T0, S_X, t, S_T0, S_T0))
        part_off(A, S_T0, S_T0)
        A("v_add_u32 v%d, s%d, v2" % (59 + t, S_T0))
    warm_init("v1")
    sst()
    A("s_barrier")
    A("v_mov_b32 v24, %d\nds_read_b32 v25, v24\ns_waitcnt lgkmcnt(0)" % PSEL_LDS)
    for t in range(3): A("v_add_u32 v%d, v%d, v25" % (60 + t, 60 + t))
    A.label("CH_W6_LOOP")
    warm("v1", 0)
    A("s_barrier\ns_barrier")
    last()
    warm("v1", 1)
    A("s_barrier")
    wo_phase("6")
    red_o(2)
    backoff("p", 10)
    st(4)
    A("s_mov_b32 s%d, 0" % S_TO)
    A.label("CH_PP")
    for u in range(3): A("buffer_load_dwordx4 %s, v%d, s[8:11], s%d offen sc1" % (vr(R + 4 * u, 4), 60 + u, S_PCUR))
    A("s_waitcnt vmcnt(2)")
    pk_add(A, RR + 4, AO, R, 4)
    A("s_waitcnt vmcnt(1)")
    pk_add(A, RR + 4, RR + 4, R + 4, 4)
    A("s_waitcnt vmcnt(0)")
    pk_add(A, RR + 4, RR + 4, R + 8, 4)
    A("v_pk_add_f32 %s, %s, %s" % (vr(RR + 2, 2), vr(RR + 4, 2), vr(RR + 6, 2)))
    A("v_cvt_pk_bf16_f32 v%d, v%d, v%d" % (RR, RR + 4, RR + 5))
    A("v_cmp_u_f32 vcc, v%d, v%d" % (RR + 2, RR + 3))
    A("v_cvt_pk_bf16_f32 v%d, v%d, v%d" % (RR + 1, RR + 6, RR + 7))
    A("s_cbranch_vccnz CH_PP_X")
    T = Asm(); A0 = A.lines; A.lines = T.lines
    A.label("CH_PP_X")
    A("s_add_u32 s%d, s%d, 1\ns_and_b32 s%d, s%d, 15\ns_cbranch_scc1 CH_PP" % (S_TO, S_TO, S_T0, S_TO))
    A("s_cmp_gt_u32 s%d, %d\ns_cbranch_scc1 %s" % (S_TO, TIMEOUT, ab))
    check(A, range(R, R + 12), 5, "CH_PP")
    A("s_branch CH_PP_OK")
    tails.extend(T.lines); A.lines = A0
    A.label("CH_PP_OK")
    st(5); cnt()
    A("v_min_u32 v%d, -2, v%d\nv_min_u32 v%d, -2, v%d" % (RR, RR, RR + 1, RR + 1))
    A("buffer_store_dwordx2 %s, v7, s[8:11], s%d offen offset:%d %s" % (vr(RR, 2), S_NXT, E_MEM, intra))
    A("s_barrier")
    st(6)
    dump("6"); logit(10, 11)
    zero_ao()
    next_slots(A)
    A("s_branch CH_W6_LOOP")
    flush()

    A.label("CH_W4")
    for sl in range(4):
        A("s_mov_b32 s%d, %d" % (S_T1, EXCH + sl * SLOT))
        resets("s%d" % S_T1, None)
    mk_srd(A, S_W, ptr(1), 16384)
    A("v_and_b32 v10, 7, v0\nv_lshlrev_b32 v10, 11, v10\nv_lshrrev_b32 v11, 4, v0\nv_lshl_add_u32 v10, v11, 4, v10")
    A("s_lshl_b32 s%d, s%d, 6" % (S_T0, S_C))
    A("buffer_load_dwordx4 v[16:19], v10, s[%d:%d], s%d offen" % (S_W, S_W + 3, S_T0))
    A("s_waitcnt vmcnt(0)")
    if ready_wait: ready_wait(A)
    A("v_mov_b32 v24, %d\nds_write_b32 v24, v25\nv_xor_b32 v26, 0x2000, v25\nv_add_u32 v56, v8, v26\nv_add_u32 v8, v8, v25\ns_waitcnt lgkmcnt(0)" % PSEL_LDS)
    for i in range(4): A("v_min_u32 v%d, -2, v%d" % (16 + i, 16 + i))
    A("s_mov_b64 exec, s[%d:%d]" % (S_MLO, S_MLO + 1))
    A("buffer_store_dwordx4 v[16:19], v6, s[8:11], s%d offen offset:%d %s" % (S_CUR, E_MEM, intra))
    A("s_mov_b64 exec, -1")
    vm_setup()
    A("s_setprio 2")
    warm_init("v0")
    sst()
    A("s_barrier")
    A.label("CH_W4_LOOP")
    warm("v0", 0)
    A("s_barrier")
    A("s_cmp_gt_u32 s%d, 56\ns_cbranch_scc1 CH_W4_V1" % S_STEP)
    A("s_and_b32 s%d, s%d, 7\ns_cbranch_scc1 CH_W4_NV\ns_cmp_eq_u32 s%d, 0\ns_cbranch_scc1 CH_W4_NV" % (S_T0, S_STEP, S_STEP))
    for i in range(8): A("ds_read_b128 %s, v2 offset:%d" % (vr(64 + 4 * i, 4), KVM_LDS + 1024 * i))
    A("s_sub_u32 s%d, s%d, 8\ns_lshl_b32 s%d, s%d, 10\ns_add_u32 s%d, s%d, s%d\ns_add_u32 s%d, s%d, 4096\ns_waitcnt lgkmcnt(0)" % (S_T0, S_STEP, S_T0, S_T0, S_T0, S_T0, S_KMOFF, S_T1, S_T0))
    for i in range(8): A("buffer_store_dwordx4 %s, v2, s[8:11], s%d offen offset:%d sc1" % (vr(64 + 4 * i, 4), S_T0 if i < 4 else S_T1, 1024 * (i & 3)))
    A("s_branch CH_W4_NV")
    A.label("CH_W4_V1")
    A("s_sub_u32 s%d, s%d, 1" % (S_T1, S_STEP))
    vm_one(S_T1, 64)
    A("s_cmp_lg_u32 s%d, %d\ns_cbranch_scc1 CH_W4_NV\ns_waitcnt vmcnt(0)" % (S_STEP, nstep - 1))
    A.label("CH_W4_NV")
    A("s_barrier")
    last()
    warm("v0", 1)
    A("s_barrier")
    wo_phase("4")
    red_o(0)
    A("buffer_store_dwordx4 %s, v56, s[8:11], s%d offen sc1" % (vr(AO, 4), S_PCUR))
    A("buffer_store_dwordx4 %s, v8, s[8:11], s%d offen sc1" % (vr(AO, 4), S_PCUR))
    st(4)
    dump("4"); logit(10, 11)
    next_slots(A)
    zero_ao()
    A("s_barrier")
    A("s_branch CH_W4_LOOP")
    flush()

    A.label("CH_W5")
    KT, VT, X, T01, TM, T1, VM, P, PM, ONE, LA, OA, OS, TMP = 64, 72, 80, 84, 88, 92, 96, 100, 104, 108, 112, 136, 144, 148
    RB = 152
    Z = RB + 8; ZM = Z + 4
    vm_setup()
    A("v_lshlrev_b32 v56, 5, v11\nv_lshl_add_u32 v56, v10, 4, v56")
    A("s_lshl_b32 s%d, s%d, 18\ns_add_u32 s%d, s%d, %d" % (S_KOFF, S_T2, S_KOFF, S_KOFF, KV))
    A("v_bfe_u32 v62, v0, 4, 1\nv_lshlrev_b32 v62, 7, v62\nv_and_b32 v63, 7, v0\nv_lshl_add_u32 v62, v63, 4, v62\nv_add_u32 v62, 0x400, v62")
    A("s_mul_i32 s%d, s%d, 1280\ns_add_u32 s%d, s%d, %d\nv_add_u32 v63, s%d, v62" % (S_T0, S_T2, S_T0, S_T0, E_SX, S_T0))
    for t in range(1, 4):
        A("s_add_u32 s%d, s%d, %d\ns_and_b32 s%d, s%d, 3\ns_and_b32 s%d, s%d, 0xfc\ns_add_u32 s%d, s%d, s%d\ns_mul_i32 s%d, s%d, 1280\ns_add_u32 s%d, s%d, %d" % (S_T0, S_T2, t, S_T0, S_T0, S_T1, S_T2, S_T0, S_T0, S_T1, S_T0, S_T0, S_T0, S_T0, E_SX))
        A("v_add_u32 v%d, s%d, v2\nv_add_u32 v%d, s%d, v62" % (183 + t, S_T0, 186 + t, S_T0))
    A("s_mov_b32 s%d, 0x%x" % (S_SC, f32bits(128 ** -0.5 * math.log2(math.e))))
    for i in range(4): A("v_mov_b32 v%d, 0x3f803f80" % (ONE + i))
    for i in range(2): A("v_mov_b32 v%d, 0" % (PM + i))
    for i in range(24): A("v_mov_b32 v%d, 0" % (LA + i))
    def prefetch():
        for i in range(4):
            A("buffer_load_dwordx4 %s, v56, s[8:11], s%d offen offset:%d sc1" % (vr(KT + 4 * i, 4), S_KOFF, (i >> 1) * 2048 + (i & 1) * 64))
        A("s_add_u32 s%d, s%d, 4096" % (S_KOFF, S_KOFF))
    def red8(base, dst):
        for w in range(4):
            for a in range(2):
                A("ds_read_b128 %s, v2 offset:%d" % (vr(RB + w * 8 + a * 4, 4), base + w * 2048 + a * 1024))
    def sum8(dst):
        A("s_waitcnt lgkmcnt(4)")
        pk_add(A, RB, RB, RB + 8, 8)
        A("s_waitcnt lgkmcnt(2)")
        pk_add(A, RB, RB, RB + 16, 8)
        A("s_waitcnt lgkmcnt(0)")
        pk_add(A, RB, RB, RB + 24, 8)
        for i in range(4): A("v_cvt_pk_bf16_f32 v%d, v%d, v%d" % (dst + i, RB + 2 * i, RB + 2 * i + 1))
    if gate:
        A("s_mov_b32 s%d, %d" % (S_T0, FLAGS + F_KV * 128))
        kv_gate("CH_W5_G", S_T0, kv0)
    prefetch()
    A("s_setprio 2")
    sst()
    A("s_barrier")
    A("s_waitcnt vmcnt(0)")
    A.label("CH_W5_LOOP")
    A("s_barrier")
    st(0)
    ft(0)
    red8(RED_QK, X); ft(1); sum8(X); ft(2)
    A("v_mfma_f32_16x16x32_bf16 %s, %s, %s, 0" % (vr(T01, 4), vr(KT, 4), vr(X, 4)))
    A("v_mfma_f32_16x16x32_bf16 %s, %s, %s, 0" % (vr(T1, 4), vr(KT + 4, 4), vr(X, 4)))
    A("v_mfma_f32_16x16x32_bf16 %s, %s, %s, 0" % (vr(TM, 4), vr(X, 4), vr(X, 4)))
    A("s_mov_b64 exec, s[%d:%d]" % (S_MLO, S_MLO + 1))
    A("buffer_store_dwordx4 %s, v9, s[8:11], s%d offen %s" % (vr(T01, 4), S_CUR, intra))
    A("buffer_store_dwordx4 %s, v9, s[8:11], s%d offen offset:128 %s" % (vr(T1, 4), S_CUR, intra))
    A("s_mov_b64 exec, s[%d:%d]" % (S_MM, S_MM + 1))
    A("buffer_store_dwordx4 %s, v63, s[8:11], s%d offen %s" % (vr(TM, 4), S_CUR, intra))
    A("s_mov_b64 exec, -1")
    st(1); ft(3)
    def sx_issue():
        for t in range(3): A("buffer_load_dwordx4 %s, v%d, s[8:11], s%d offen sc1" % (vr(LA + 8 * t, 4), 184 + t, S_CUR))
        A("s_mov_b64 exec, s[%d:%d]" % (S_MM, S_MM + 1))
        for t in range(3): A("buffer_load_dwordx4 %s, v%d, s[8:11], s%d offen sc1" % (vr(LA + 8 * t + 4, 4), 187 + t, S_CUR))
        A("s_mov_b64 exec, -1")
    for i in range(4): A("v_mov_b32_dpp v%d, v%d row_ror:8 row_mask:0xf bank_mask:0xc" % (T01 + i, T1 + i))
    for i in range(4): A("v_cndmask_b32 v%d, 0, v%d, s[%d:%d]" % (TM + i, TM + i, S_MM, S_MM + 1))
    backoff("s", 3)
    sx_issue()
    A("s_barrier")
    red8(RED_V, VM)
    sum8(VM)
    A("s_mov_b32 s%d, 0" % S_TO)
    A("s_cmp_eq_u32 s%d, %d\ns_cbranch_scc1 CH_W5_END" % (S_STEP, nstep - 1))
    T = Asm(); A0 = A.lines; A.lines = T.lines
    A.label("CH_W5_END")
    vm_put(X, VM)
    vm_one(S_STEP, RB)
    A("s_waitcnt vmcnt(0)")
    if gate: progress(F_CPL)
    A("s_branch %s" % done)
    A.label("CH_SP_X")
    A("s_add_u32 s%d, s%d, 1\ns_and_b32 s%d, s%d, 15\ns_cbranch_scc1 CH_SP" % (S_TO, S_TO, S_T0, S_TO))
    A("s_cmp_gt_u32 s%d, %d\ns_cbranch_scc1 %s" % (S_TO, TIMEOUT, ab))
    check(A, range(LA, LA + 24), 5, "CH_SP")
    A("s_branch CH_SP_OK")
    A.label("CH_SP")
    sx_issue()
    A("s_branch CH_SP_W")
    tails.extend(T.lines); A.lines = A0
    A.label("CH_SP_W")
    A("s_waitcnt vmcnt(4)")
    pk_add(A, Z, T01, LA, 4)
    pk_add(A, Z, Z, LA + 8, 4)
    A("s_waitcnt vmcnt(2)")
    pk_add(A, Z, Z, LA + 16, 4)
    pk_add(A, Z + 4, TM, LA + 4, 4)
    A("s_waitcnt vmcnt(0)")
    pk_add(A, RB, LA + 12, LA + 20, 4)
    A("v_pk_add_f32 %s, %s, %s" % (vr(RB + 4, 2), vr(Z, 2), vr(Z + 2, 2)))
    pk_add(A, Z + 4, Z + 4, RB, 4)
    A("v_max3_f32 v%d, v%d, v%d, v%d" % (TMP, Z, Z + 1, Z + 2))
    A("v_pk_add_f32 %s, %s, %s" % (vr(RB + 4, 2), vr(RB + 4, 2), vr(Z + 4, 2)))
    A("v_max_f32 v%d, v%d, v%d" % (TMP, TMP, Z + 3))
    A("v_pk_add_f32 %s, %s, %s" % (vr(RB + 4, 2), vr(RB + 4, 2), vr(Z + 6, 2)))
    A("s_mov_b64 exec, s[%d:%d]" % (S_MM, S_MM + 1))
    A("v_max3_f32 v%d, v%d, v%d, v%d\nv_max3_f32 v%d, v%d, v%d, v%d" % (TMP, TMP, Z + 4, Z + 5, TMP, TMP, Z + 6, Z + 7))
    A("s_mov_b64 exec, -1")
    A("v_cmp_u_f32 vcc, v%d, v%d" % (RB + 4, RB + 5))
    A("v_max_f32_dpp v%d, v%d, v%d row_ror:8 row_mask:0xf bank_mask:0xf" % (TMP, TMP, TMP))
    A("s_cbranch_vccnz CH_SP_X")
    A.label("CH_SP_OK")
    ft(4)
    st(4); cnt()
    A("v_mov_b32 v%d, v%d\nv_permlane16_swap_b32 v%d, v%d\nv_max_f32 v%d, v%d, v%d" % (TMP + 1, TMP, TMP, TMP + 1, TMP, TMP, TMP + 1))
    A("v_mov_b32 v%d, v%d\nv_permlane32_swap_b32 v%d, v%d\nv_max_f32 v%d, v%d, v%d" % (TMP + 1, TMP, TMP, TMP + 1, TMP, TMP, TMP + 1))
    A("v_mul_f32 v%d, s%d, v%d" % (TMP, S_SC, TMP))
    for i in range(4): A("v_fma_f32 v%d, v%d, s%d, -v%d" % (ZM + i, ZM + i, S_SC, TMP))
    for i in range(4): A("v_fma_f32 v%d, v%d, s%d, -v%d" % (Z + i, Z + i, S_SC, TMP))
    for i in range(4): A("v_exp_f32 v%d, v%d" % (ZM + i, ZM + i))
    for i in range(2): A("v_exp_f32 v%d, v%d" % (Z + i, Z + i))
    A("s_mov_b64 exec, s[%d:%d]" % (S_MM, S_MM + 1))
    A("v_cvt_pk_bf16_f32 v%d, v%d, v%d\nv_cvt_pk_bf16_f32 v%d, v%d, v%d" % (PM, ZM, ZM + 1, PM + 1, ZM + 2, ZM + 3))
    A("s_mov_b64 exec, -1")
    for i in range(2, 4): A("v_exp_f32 v%d, v%d" % (Z + i, Z + i))
    A("v_mfma_f32_16x16x16_bf16 %s, %s, %s, 0" % (vr(OS, 4), vr(ONE, 2), vr(PM, 2)))
    A("v_cvt_pk_bf16_f32 v%d, v%d, v%d\nv_cvt_pk_bf16_f32 v%d, v%d, v%d" % (P, Z, Z + 1, P + 1, Z + 2, Z + 3))
    A("v_mfma_f32_16x16x16_bf16 %s, %s, %s, 0" % (vr(OA, 4), vr(VM, 2), vr(PM, 2)))
    A("v_mfma_f32_16x16x16_bf16 %s, %s, %s, 0" % (vr(OA + 4, 4), vr(VM + 2, 2), vr(PM, 2)))
    A("v_mov_b32_dpp v%d, v%d row_ror:8 row_mask:0xf bank_mask:0xf\nv_mov_b32_dpp v%d, v%d row_ror:8 row_mask:0xf bank_mask:0xf" % (P + 2, P, P + 3, P + 1))
    A("v_mfma_f32_16x16x32_bf16 %s, %s, %s, %s" % (vr(OS, 4), vr(ONE, 4), vr(P, 4), vr(OS, 4)))
    A("v_mfma_f32_16x16x32_bf16 %s, %s, %s, %s" % (vr(OA, 4), vr(VT, 4), vr(P, 4), vr(OA, 4)))
    A("v_mfma_f32_16x16x32_bf16 %s, %s, %s, %s" % (vr(OA + 4, 4), vr(VT + 4, 4), vr(P, 4), vr(OA + 4, 4)))
    ft(5)
    A("s_add_u32 s%d, s%d, %d" % (S_T0, S_CUR, E_OX))
    A("v_rcp_f32 v%d, v%d" % (TMP, OS))
    for i in range(0, 8, 2): A("v_pk_mul_f32 %s, %s, %s op_sel_hi:[1,0]" % (vr(OA + i, 2), vr(OA + i, 2), vr(TMP, 2)))
    for i in range(4): A("v_cvt_pk_bf16_f32 v%d, v%d, v%d" % (T1 + i, OA + 2 * i, OA + 2 * i + 1))
    for i in range(4): A("v_min_u32 v%d, -2, v%d" % (T1 + i, T1 + i))
    A("s_mov_b64 exec, s[%d:%d]" % (S_MLO, S_MLO + 1))
    A("buffer_store_dwordx4 %s, v6, s[8:11], s%d offen %s" % (vr(T1, 4), S_T0, intra))
    A("s_mov_b64 exec, -1")
    st(5); ft(6)
    A("s_barrier")
    wo_phase("5")
    st(6)
    if "nopf" not in OPT: prefetch()
    vm_put(X, VM)
    if stamps:
        st(2); A("s_waitcnt vmcnt(0)"); st(3)
    dump("5"); logit(10, 11)
    zero_ao()
    next_slots(A)
    A("s_barrier")
    A("s_waitcnt vmcnt(0)")
    A("s_branch CH_W5_LOOP")
    flush()
```

```python
from asmlib import *

G_SA, G_SW, G_SC = 12, 16, 20
G_AOFF, G_WOFF = 24, 25
G_COFF, G_LR, G_RS, G_CS = 26, 27, 28, 29
G_LDA, G_LDW = 30, 31
G_ASTEP = 30
G_WAVE = 34
G_T0, G_T1, G_RA, G_RW, G_WA, G_WW, G_CNT, G_WSTEP, G_MA, G_MW = 45, 46, 47, 48, 49, 50, 51, 52, 53, 54
TN, BK = 128, 64
W_SLOT = BK * TN * 2

class Gemm:
    def __init__(self, A, MT=4, NSL=3, aflag="sc1"):
        self.A = A; self.MT = MT; self.NSL = NSL; self.aflag = aflag
        self.A_SLOT = 64 * MT * BK * 2
        self.W_BASE = NSL * self.A_SLOT
        self.LDS = NSL * (self.A_SLOT + W_SLOT)
        self.ND = MT + 2
        self.NS = 2 * MT
        self.ACC = 64; self.F = [128, 160]
        self.VA, self.VW, self.BA, self.BW, self.CA, self.CW, self.T = 2, 6, 8, 10, 14, 16, 20
        self.VWK = 24
        self.VE = 26

    def setup_static(self):
        A, T, MT = self.A, self.T, self.MT
        A("s_and_b32 s%d, s%d, 1\ns_lshl_b32 s%d, s%d, 2" % (G_T0, G_WAVE, G_T0, G_T0))
        A("v_lshrrev_b32 v%d, 4, v0\nv_or_b32 v%d, s%d, v%d" % (T, T + 1, G_T0, T))
        A("v_bfe_u32 v%d, v0, 1, 3\nv_xor_b32 v%d, v%d, v%d" % (T + 2, T + 2, T + 2, T + 1))
        A("v_and_b32 v%d, 1, v0\nv_lshl_or_b32 v%d, v%d, 1, v%d\nv_lshlrev_b32 v%d, 4, v%d" % (T + 3, T + 2, T + 2, T + 3, self.VWK + 1, T + 2))
        A("s_lshl_b32 s%d, s%d, 3\nv_add_u32 v%d, s%d, v%d" % (G_T0, G_WAVE, self.VWK, G_T0, T))
        A("s_mul_i32 s%d, s%d, %d" % (G_MA, G_WAVE, 1024 * MT))
        A("s_lshl_b32 s%d, s%d, 11\ns_add_u32 s%d, s%d, %d" % (G_MW, G_WAVE, G_MW, G_MW, self.W_BASE))
        BA, BW = self.BA, self.BW
        A("v_and_b32 v%d, 15, v0\nv_lshrrev_b32 v%d, 4, v0" % (T, T + 1))
        A("v_bfe_u32 v%d, v0, 1, 3\nv_xor_b32 v%d, v%d, v%d" % (T + 2, T + 2, T + 2, T + 1))
        A("v_lshlrev_b32 v%d, 7, v%d\nv_lshl_add_u32 v%d, v%d, 4, v%d" % (T, T, BA, T + 2, T))
        A("s_lshr_b32 s%d, s%d, 1\ns_mul_i32 s%d, s%d, %d" % (G_T0, G_WAVE, G_T0, G_T0, 2048 * MT))
        A("v_add_u32 v%d, s%d, v%d\nv_xor_b32 v%d, 64, v%d" % (BA, G_T0, BA, BA + 1, BA))
        A("v_bfe_u32 v%d, v0, 2, 2" % T)
        A("v_lshl_add_u32 v%d, v%d, 3, v%d\nv_lshlrev_b32 v%d, 8, v%d" % (T + 2, T + 1, T, T + 2, T + 2))
        A("v_and_b32 v%d, 3, v0\nv_lshl_add_u32 v%d, v%d, 3, v%d" % (T + 3, T + 2, T + 3, T + 2))
        A("v_add_u32 v%d, %d, v%d" % (T + 2, self.W_BASE, T + 2))
        A("v_bfe_u32 v%d, v0, 4, 1\nv_lshl_or_b32 v%d, v%d, 2, v%d" % (T + 3, T, T + 3, T))
        A("s_and_b32 s%d, s%d, 1\ns_lshl_b32 s%d, s%d, 2" % (G_T0, G_WAVE, G_T0, G_T0))
        for t in range(4):
            A("s_or_b32 s%d, s%d, %d" % (G_T1, G_T0, t))
            A("v_xor_b32 v%d, s%d, v%d\nv_lshl_add_u32 v%d, v%d, 5, v%d" % (T + 3, G_T1, T, BW + t, T + 3, T + 2))
        VE = self.VE
        A("v_and_b32 v%d, 15, v0\nv_bfe_u32 v%d, v0, 4, 1\nv_lshrrev_b32 v%d, 5, v0" % (VE, VE + 1, T))
        A("v_lshl_add_u32 v%d, v%d, 1, v%d" % (VE + 1, VE + 1, T))

    def setup_lda(self):
        A, T, MT = self.A, self.T, self.MT
        A("v_lshrrev_b32 v%d, 3, v0" % T)
        A("s_mul_i32 s%d, s%d, %d\nv_add_u32 v%d, s%d, v%d" % (G_T0, G_WAVE, 8 * MT, T, G_T0, T))
        for j in range(MT):
            A("v_add_u32 v%d, %d, v%d" % (T + 1, 8 * j, T))
            A("v_bfe_u32 v%d, v%d, 1, 3" % (T + 2, T + 1))
            A("v_and_b32 v%d, 7, v0\nv_xor_b32 v%d, v%d, v%d" % (T + 3, T + 2, T + 2, T + 3))
            A("v_mul_lo_u32 v%d, v%d, s%d" % (T + 1, T + 1, G_LDA))
            A("v_lshl_add_u32 v%d, v%d, 4, v%d" % (self.VA + j, T + 2, T + 1))
            if j: A("v_subrev_u32 v%d, %d, v%d" % (self.VA + j, 1024 * j, self.VA + j))
        A("s_mov_b32 s%d, 128" % G_ASTEP)

    def setup_tiled_a(self):
        A, T = self.A, self.T
        A("v_and_b32 v%d, 15, v0\nv_lshrrev_b32 v%d, 4, v0\nv_lshlrev_b32 v%d, 9, v%d\nv_lshl_add_u32 v%d, v%d, 4, v%d" % (T, T + 1, T + 1, T + 1, T, T, T + 1))
        if self.MT == 4:
            A("s_lshl_b32 s%d, s%d, 18\nv_add_u32 v%d, s%d, v%d" % (G_T0, G_WAVE, T, G_T0, T))
            for j in range(4):
                A("v_add_u32 v%d, %d, v%d" % (self.VA + j, 4096 + (j & 1) * 2048 + (j >> 1) * 256 - 1024 * j, T))
        else:
            A("s_lshr_b32 s%d, s%d, 2\ns_lshl_b32 s%d, s%d, 18\ns_and_b32 s%d, s%d, 1\ns_lshl_b32 s%d, s%d, 11\ns_add_u32 s%d, s%d, s%d" % (G_T0, G_WAVE, G_T0, G_T0, G_T1, G_WAVE, G_T1, G_T1, G_T0, G_T0, G_T1))
            A("s_and_b32 s%d, s%d, 2\ns_lshl_b32 s%d, s%d, 7\ns_add_u32 s%d, s%d, s%d\ns_add_u32 s%d, s%d, 4096\nv_add_u32 v%d, s%d, v%d" % (G_T1, G_WAVE, G_T1, G_T1, G_T0, G_T0, G_T1, G_T0, G_T0, self.VA, G_T0, T))
        A("s_lshr_b32 s%d, s%d, 1\ns_mul_i32 s%d, s%d, %d\nv_lshlrev_b32 v%d, 4, v0\nv_add_u32 v%d, s%d, v%d\nv_add_u32 v%d, 0x400, v%d" % (G_T0, G_WAVE, G_T0, G_T0, 2048 * self.MT, self.BA, self.BA, G_T0, self.BA, self.BA + 1, self.BA))
        A("s_mov_b32 s%d, 4096" % G_ASTEP)

    def setup_ldw(self):
        A, VW = self.A, self.VW
        A("v_mul_lo_u32 v%d, v%d, s%d" % (VW, self.VWK, G_LDW))
        A("s_lshl_b32 s%d, s%d, 2\ns_sub_u32 s%d, s%d, 1024\ns_lshl_b32 s%d, s%d, 6" % (G_T0, G_LDW, G_T0, G_T0, G_WSTEP, G_LDW))
        A("v_add_u32 v%d, v%d, v%d\nv_add_u32 v%d, s%d, v%d" % (VW, VW, self.VWK + 1, VW + 1, G_T0, VW))

    def dma(self):
        A = self.A
        A("s_add_u32 m0, s%d, s%d" % (G_MA, G_WA))
        for j in range(self.MT):
            A("buffer_load_dwordx4 v%d, s[%d:%d], s%d offen offset:%d %s lds" % (self.VA + j, G_SA, G_SA + 3, G_AOFF, 1024 * j, self.aflag))
        A("s_add_u32 m0, s%d, s%d" % (G_MW, G_WW))
        for j in range(2):
            A("buffer_load_dwordx4 v%d, s[%d:%d], s%d offen offset:%d lds" % (self.VW + j, G_SW, G_SW + 3, G_WOFF, 1024 * j))
        A("s_add_u32 s%d, s%d, s%d\ns_add_u32 s%d, s%d, s%d" % (G_AOFF, G_AOFF, G_ASTEP, G_WOFF, G_WOFF, G_WSTEP))
        A("s_add_u32 s%d, s%d, %d\ns_add_u32 s%d, s%d, %d" % (G_WA, G_WA, self.A_SLOT, G_WW, G_WW, W_SLOT))
        A("s_cmp_eq_u32 s%d, %d\ns_cselect_b32 s%d, 0, s%d\ns_cselect_b32 s%d, 0, s%d" % (G_WA, self.NSL * self.A_SLOT, G_WA, G_WA, G_WW, G_WW))

    def set_addr(self):
        A = self.A
        for i in range(2): A("v_add_u32 v%d, s%d, v%d" % (self.CA + i, G_RA, self.BA + i))
        for t in range(4): A("v_add_u32 v%d, s%d, v%d" % (self.CW + t, G_RW, self.BW + t))
        A("s_add_u32 s%d, s%d, %d\ns_add_u32 s%d, s%d, %d" % (G_RA, G_RA, self.A_SLOT, G_RW, G_RW, W_SLOT))
        A("s_cmp_eq_u32 s%d, %d\ns_cselect_b32 s%d, 0, s%d\ns_cselect_b32 s%d, 0, s%d" % (G_RA, self.NSL * self.A_SLOT, G_RA, G_RA, G_RW, G_RW))

    def reads(self, f, ks):
        L = []; F = self.F
        for m in range(4):
            if m < self.MT: L.append("ds_read_b128 %s, v%d offset:%d" % (vr(F[f] + 4 * m, 4), self.CA + ks, 2048 * m))
            for hf in range(2):
                L.append("ds_read_b64_tr_b16 %s, v%d offset:%d" % (vr(F[f] + 16 + 4 * m + 2 * hf, 2), self.CW + m, (32 * ks + 4 * hf) * 256))
        return L

    def mfmas(self, f, mode, zero=False):
        L = []; F = self.F
        for m in range(self.MT):
            for n in range(4):
                a, b = vr(F[f] + 4 * m, 4), vr(F[f] + 16 + 4 * n, 4)
                acc = vr(self.ACC + 16 * m + 4 * n, 4)
                if mode == "row": a, b = b, a
                L.append("v_mfma_f32_16x16x32_bf16 %s, %s, %s, %s" % (acc, a, b, "0" if zero else acc))
        return L

    def inter(self, ms, others):
        A = self.A; o = list(others)
        per = max(1, -(-len(o) // max(1, len(ms))))
        for m in ms:
            A(m)
            for k in range(per):
                if o: A(o.pop(0))
        for x in o: A(x)

    def cold(self, full_wait=True):
        A = self.A
        A("s_mov_b32 s%d, 0\ns_mov_b32 s%d, 0\ns_mov_b32 s%d, 0\ns_mov_b32 s%d, 0" % (G_WA, G_WW, G_RA, G_RW))
        for i in range(self.NSL): self.dma()
        A("s_waitcnt vmcnt(%d)\ns_barrier" % (0 if full_wait else (self.NSL - 1) * self.ND))
        self.set_addr()
        for r in self.reads(0, 0): A(r)

    def step(self, mode, do_dma, vm, more=True, zero=False, after_barrier=None):
        A = self.A
        A("s_waitcnt lgkmcnt(0)")
        self.inter(self.mfmas(0, mode, zero), self.reads(1, 1))
        if more:
            A("s_waitcnt vmcnt(%d) lgkmcnt(0)\ns_barrier" % vm)
            self.set_addr()
            ms = self.mfmas(1, mode)
            k = len(ms) * 3 // 4
            self.inter(ms[:k], self.reads(0, 0))
            if after_barrier: after_barrier()
            if do_dma: self.dma()
            self.inter(ms[k:], [])
        else:
            A("s_waitcnt lgkmcnt(0)")
            self.inter(self.mfmas(1, mode), [])

    def epilogue(self, mode, store_flags):
        A, T, MT, ACC = self.A, self.T, self.MT, self.ACC
        P = self.F[1]
        A("s_lshr_b32 s%d, s%d, 1\ns_and_b32 s%d, s%d, 1\ns_lshl_b32 s%d, s%d, 1" % (G_T0, G_WAVE, G_T1, G_WAVE, G_T1, G_T1))
        A("v_mul_lo_u32 v%d, v%d, s%d" % (T, self.VE, G_LR))
        if mode == "row":
            NO, NP = MT, 2
            if MT == 1:
                A("s_and_b32 s%d, s%d, 1\ns_mul_i32 s%d, s%d, s%d\ns_lshl_b32 s%d, s%d, 4\ns_add_u32 s%d, s%d, s%d\ns_lshr_b32 s%d, s%d, 1" % (G_CNT, G_T0, G_CNT, G_CNT, G_LR, G_CNT, G_CNT, G_COFF, G_COFF, G_CNT, G_T0, G_T0))
            else:
                A("s_mul_i32 s%d, s%d, %d" % (G_T0, G_T0, MT // 2))
            A("s_mul_i32 s%d, s%d, s%d\ns_mul_i32 s%d, s%d, s%d" % (G_T0, G_T0, G_RS, G_T1, G_T1, G_CS))
        else:
            NO, NP = 4, MT // 2
            A("s_mul_i32 s%d, s%d, %d" % (G_T0, G_T0, MT // 2))
            A("s_mul_i32 s%d, s%d, s%d\ns_mul_i32 s%d, s%d, s%d" % (G_T0, G_T0, G_CS, G_T1, G_T1, G_RS))
        A("s_add_u32 s%d, s%d, s%d\ns_add_u32 s%d, s%d, s%d" % (G_COFF, G_COFF, G_T0, G_COFF, G_COFF, G_T1))
        A("s_cmp_eq_u32 s%d, 16\ns_cselect_b32 s%d, 9, 4\nv_lshl_add_u32 v%d, v%d, s%d, v%d" % (G_LR, G_T0, T, self.VE + 1, G_T0, T))
        A("s_lshl_b32 s%d, s%d, 4\nv_add_u32 v%d, s%d, v%d" % (G_T0, G_LR, T + 1, G_T0, T))
        n = 0
        for o in range(NO):
            for p in range(NP):
                if mode == "row": t0, t1 = ACC + 16 * o + 8 * p, ACC + 16 * o + 8 * p + 4
                else: t0, t1 = ACC + 16 * (2 * p) + 4 * o, ACC + 16 * (2 * p + 1) + 4 * o
                d = P + 4 * n; n += 1
                A("v_cvt_pk_bf16_f32 v%d, v%d, v%d\nv_cvt_pk_bf16_f32 v%d, v%d, v%d" % (d, t0, t0 + 1, d + 1, t0 + 2, t0 + 3))
                A("v_cvt_pk_bf16_f32 v%d, v%d, v%d\nv_cvt_pk_bf16_f32 v%d, v%d, v%d" % (d + 2, t1, t1 + 1, d + 3, t1 + 2, t1 + 3))
        n = 0
        for o in range(NO):
            if o == 2: A("s_add_u32 s%d, s%d, s%d" % (G_COFF, G_COFF, G_RS))
            if o % 2 == 0 and NP > 1: A("s_add_u32 s%d, s%d, s%d" % (G_T1, G_COFF, G_CS))
            for p in range(NP):
                d = P + 4 * n; n += 1
                A("v_permlane16_swap_b32 v%d, v%d\nv_permlane16_swap_b32 v%d, v%d" % (d, d + 2, d + 1, d + 3))
                A("buffer_store_dwordx4 %s, v%d, s[%d:%d], s%d offen %s" % (vr(d, 4), T + (o & 1), G_SC, G_SC + 3, G_T1 if p else G_COFF, store_flags))

    def epilogue_lds(self):
        A, T, ACC = self.A, self.T, self.ACC
        P = self.F[1]
        A("s_lshl_b32 s%d, s%d, 13\nv_lshlrev_b32 v%d, 4, v0\nv_add_u32 v%d, s%d, v%d" % (G_T0, G_WAVE, T, T, G_T0, T))
        for n in range(8):
            t0 = ACC + 8 * n; d = P + 4 * n
            for i in range(4): A("v_cvt_pk_bf16_f32 v%d, v%d, v%d" % (d + i, t0 + 2 * i, t0 + 2 * i + 1))
        for n in range(8):
            d = P + 4 * n
            A("v_permlane16_swap_b32 v%d, v%d\nv_permlane16_swap_b32 v%d, v%d" % (d, d + 2, d + 1, d + 3))
            A("ds_write_b128 v%d, %s offset:%d" % (T, vr(d, 4), 1024 * n))

    def simple(self, tag, mode, nk, store_flags=""):
        A = self.A; ND, NSL = self.ND, self.NSL
        self.cold(full_wait=False)
        vm = (NSL - 2) * ND
        self.step(mode, True, vm, zero=True)
        A("s_mov_b32 s%d, %d" % (G_CNT, nk - NSL - 1))
        A.label("G%s_LOOP" % tag)
        self.step(mode, True, vm)
        A("s_sub_u32 s%d, s%d, 1\ns_cmp_lg_u32 s%d, 0\ns_cbranch_scc1 G%s_LOOP" % (G_CNT, G_CNT, G_CNT, tag))
        for i in range(NSL - 1): self.step(mode, False, (NSL - 2 - i) * ND)
        self.step(mode, False, 0, more=False)
        self.epilogue(mode, store_flags)
```

```python
KV   = 0x0000000
PT   = 0x2000000
OT   = 0x3000000
KVM  = 0x4000000
BQ   = 0x4800000
BK   = 0x4C00000
BV   = 0x5000000
BO   = 0x5400000
EXCH = 0x5800000
SLOT = 0x80000
E_MEM = 0
E_OX  = 0x10000
E_SX  = 0x20000
PARTB = 0x8000000
PROBE = 0xA000000
FLAGS = 0x5E00000
F_KV, F_B1, F_B2, F_CP, F_CPL, F_CT, F_CO = 0, 8, 16, 24, 28, 32, 64
WS_BYTES = 0x10000000
```

```python
import os
def env(k, d): return float(os.environ.get(k, d))
T0, TS = env("T0", 21.0), env("TS", 2.75)
DG, DB2, DQA, DA3 = env("DG", 14.3), env("DB2", 20.0), env("DQA", 3.5), env("DA3", 46.0)
NA3 = int(env("NA3", 5))
CT0 = int(env("CT0", 56))
DA3S = env("DA3S", 21.0)
SMALL0 = int(env("SMALL0", 0))
def table(verbose=False):
    KV = lambda r: [(0, r * 16 + n) for n in range(16)]
    B1 = [(1, i) for i in range(48)]
    B2 = [(2, qb * 8 + h) for qb in range(8) for h in range(8)]
    rows = []
    for xb in range(4):
        QA = lambda r: [(3, r * 32 + 8 * xb + h) for h in range(8)]
        A3 = lambda r: [(5, r * 8 + 2 * xb + i) for i in range(2)] if r < NA3 else [(6, (4 * r + k) * 8 + 2 * xb + i) for k in range(4) for i in range(2) if 8 * r + 2 * k < CT0]
        rb = lambda j: j[1] >> 3 if j[0] == 5 else j[1] >> 5
        B3 = [(4, 8 * r + 2 * xb + i) for r in range(8) for i in range(2)]
        bg = ([] if SMALL0 else KV(0)) + KV(1) + KV(2) + KV(3) + B1 + KV(4) + KV(5) + B2[:32] + KV(6) + B2[32:] + KV(7) + B3
        qa = [j for r in range(8) for j in QA(r)]
        a3 = [j for r in range(8) for j in A3(r)]
        free = [10.5 if SMALL0 else 3.0] * 32
        lists = [[] for _ in range(32)]
        qdone = [0] * 8; qleft = [8] * 8
        avail = lambda r: T0 + TS * (8 * r + (10 if r < 7 else 8))
        while bg or qa or a3:
            w = min(range(32), key=lambda i: (round(free[i], 1), i))
            now = free[w]
            if a3 and qleft[rb(a3[0])] == 0 and (qdone[rb(a3[0])] <= now + 1 or not (bg or qa)): t, p = a3.pop(0)
            elif qa and (avail(qa[0][1] >> 5) <= now + DG + 1 or not bg): t, p = qa.pop(0)
            elif bg: t, p = bg.pop(0)
            else: t, p = a3.pop(0)
            if t == 2: free[w] += DB2
            elif t == 3:
                r = p >> 5
                free[w] = max(free[w] + DG, avail(r)) + DQA
                qdone[r] = max(qdone[r], free[w]); qleft[r] -= 1
            elif t == 5: free[w] = max(free[w], qdone[p >> 3]) + DA3
            elif t == 6: free[w] = max(free[w], qdone[p >> 5]) + DA3S
            else: free[w] += DG
            lists[w].append(t << 8 | p)
        if verbose: print(xb, [int(f) for f in free], [int(q) for q in qdone])
        for l in lists:
            assert len(l) < 14
            for i, a in enumerate(l):
                if a >> 8 in (3, 5, 6):
                    r = (a & 255) >> (3 if a >> 8 == 5 else 5)
                    assert all(not (b >> 8 == 0 and (b & 255) >> 4 <= r + 1) for b in l[i:])
            rows.append(l + [0x700] * (16 - len(l)))
    return rows
def segs(verbose=False):
    lists = [[] for _ in range(8)]
    return [l + [64] * (32 - len(l)) for l in lists]
if __name__ == "__main__":
    for r in table(True)[:32]: print(" ".join("%03x" % x for x in r))
```

```python
import sys
from asmlib import *
from layout import *
from chain import *
from gemm2 import *
from attn import *
import sched

HDR = open("concat_heads__memory_aug_recurrent_mem_tr__mha_block__prompt.s.ref").read().split("; Override launch geometry")[0] if len(sys.argv) > 2 and sys.argv[2] == "hdr" else ""
STAMP = "bst" in OPT
A = Asm()
if HDR: A.raw(HDR.rstrip("\n"))
G = Gemm(A, 4, 3, aflag="" if "aplain" in OPT else "sc1")
G2 = Gemm(A, 2, 4)
G1 = Gemm(A, 1, 6)
assert max(G2.LDS, G1.LDS) <= G.LDS
KN = "concat_heads__memory_aug_recurrent_mem_tr__mha_block__prompt_kernel"
A.raw("; @launch grid=(256,1,1) block=(512,1,1) lds=%d" % G.LDS)
A.raw('.amdgcn_target "amdgcn-amd-amdhsa--gfx950"\n.text')
LOADP = "s_load_dwordx16 s[60:75], s[0:1], 0\ns_load_dwordx8 s[76:83], s[0:1], 64\ns_load_dwordx2 s[84:85], s[0:1], 96"

def bstamp():
    if not STAMP: return
    L = A.newlabel("BST")
    A("s_cmp_lg_u32 s34, 0\ns_cbranch_scc1 %s" % L)
    A("s_memrealtime s[40:41]\ns_lshl_b32 s42, s%d, 5\ns_add_u32 s42, s42, s%d\ns_lshl_b32 s42, s42, 6\ns_lshl_b32 s43, s%d, 2\ns_add_u32 s42, s42, s43\ns_add_u32 s42, s42, 0x6100004\ns_waitcnt lgkmcnt(0)\nv_mov_b32 v31, s40\ns_mov_b64 exec, 1" % (S_X, S_C, 35))
    A("buffer_store_dword v31, off, s[8:11], s42")
    A("s_memtime s[40:41]\ns_add_u32 s42, s42, 0x10000\ns_waitcnt lgkmcnt(0)\nv_mov_b32 v31, s40\nbuffer_store_dword v31, off, s[8:11], s42\ns_mov_b64 exec, -1")
    A.label(L)

def elog(code):
    if "elog" not in OPT: return
    L = A.newlabel("EL")
    A("s_cmp_lg_u32 s34, 0\ns_cbranch_scc1 %s" % L)
    A("s_memrealtime s[40:41]\ns_lshl_b32 s42, s%d, 5\ns_add_u32 s42, s42, s%d\ns_lshl_b32 s42, s42, 9\ns_add_u32 s42, s42, s2\ns_add_u32 s42, s42, 0x6400000\ns_add_u32 s2, s2, 8\ns_waitcnt lgkmcnt(0)" % (S_X, S_C))
    A("v_mov_b32 v30, s40\nv_mov_b32 v31, %d\ns_mov_b64 exec, 1\nbuffer_store_dwordx2 v[30:31], off, s[8:11], s42\ns_mov_b64 exec, -1" % code)
    A.label(L)

A.raw(kernel_header(KN))
A("s_cmp_ge_u32 s2, 256\ns_cbranch_scc1 C_DONE")
A(LOADP)
A("v_lshrrev_b32 v1, 6, v0\nv_readfirstlane_b32 s34, v1")
A("s_waitcnt lgkmcnt(0)")
mk_srd(A, S_WS, ptr(12), WS_BYTES)
mk_srd(A, 16, ptr(11), 256)
A("s_cmp_eq_u32 s34, 1\ns_cbranch_scc1 R_PROBE")
A("s_cmp_lg_u32 s34, 0\ns_cbranch_scc1 R_WAIT")
A("s_getreg_b32 s40, hwreg(HW_REG_XCC_ID)\ns_and_b32 s40, s40, 7")
PERM = "73625140"
for o in OPT:
    if o.startswith("perm"): PERM = o[4:]
A("s_lshl_b32 s41, s40, 2\ns_lshr_b32 s40, 0x%s, s41\ns_and_b32 s40, s40, 7" % PERM)
A("s_lshl_b32 s41, s40, 2")
A("v_mov_b32 v2, s41\nv_mov_b32 v3, 1\nv_lshlrev_b32 v4, 2, v0\nv_mov_b32 v5, 0")
A("s_lshl_b32 s43, s2, 7\ns_add_u32 s43, s43, %d" % FLAGS)
A("s_mov_b64 exec, 1")
A("buffer_store_dword v5, off, s[8:11], s43 sc1\ns_waitcnt vmcnt(0)")
A("buffer_atomic_add v3, v2, s[16:19], 0 offen sc0\ns_waitcnt vmcnt(0)")
A("v_readfirstlane_b32 s42, v3")
A("s_mov_b64 exec, 0xff")
poll_head(A, "R_POLL", "C_DONE")
A("buffer_load_dword v5, v4, s[16:19], 0 offen sc1\ns_waitcnt vmcnt(0)")
A("s_mov_b32 s50, 0\ns_mov_b32 s51, 0\ns_mov_b32 s52, 0")
for x in range(8):
    A("v_readlane_b32 s53, v5, %d" % x)
    A("s_add_u32 s50, s50, s53\ns_cmp_lg_u32 s53, 32\ns_cselect_b32 s52, 1, s52")
    A("s_cmp_gt_u32 s40, %d\ns_cselect_b32 s53, s53, 0\ns_add_u32 s51, s51, s53" % x)
A("s_cmp_lg_u32 s50, 256\ns_cbranch_scc1 R_POLL")
A("s_add_u32 s51, s51, s42\ns_lshl_b32 s52, s52, 8\ns_or_b32 s51, s51, s52")
A("v_mov_b32 v2, 0\nv_mov_b32 v3, s51\nds_write_b32 v2, v3\ns_mov_b64 exec, -1\ns_waitcnt lgkmcnt(0)\ns_branch R_WAIT")
A.label("R_PROBE")
A("v_mov_b32 v2, 0")
emit_probe(A, 29)
A("v_mov_b32 v3, s29\nds_write_b32 v2, v3 offset:4\ns_waitcnt lgkmcnt(0)")
A.label("R_WAIT")
A("s_barrier")
A("v_mov_b32 v2, 0\nds_read_b64 v[4:5], v2\ns_waitcnt lgkmcnt(0)\nv_readfirstlane_b32 s51, v4\nv_readfirstlane_b32 s29, v5\ns_barrier")
A("s_bfe_u32 s%d, s51, 0x30005\ns_and_b32 s%d, s51, 31" % (S_X, S_C))
A("s_cmp_ge_u32 s%d, 4\ns_cbranch_scc1 C_BULK" % S_X)
A("s_and_b32 s29, s29, 1\ns_mul_i32 s30, s%d, 6\ns_add_u32 s30, s30, 8\ns_lshl_b32 s29, s29, s30\ns_add_u32 s29, s29, 1" % S_X)
def ready(A):
    A("v_mov_b32 v24, 64\nv_mov_b32 v25, s29")
    A("s_mov_b64 exec, 1")
    A("buffer_atomic_add v25, v24, s[16:19], 0 offen")
    poll_head(A, "CH_RDY", "C_DONE")
    A("s_sleep 8\nbuffer_load_dword v25, v24, s[16:19], 0 offen sc1\ns_waitcnt vmcnt(0)")
    A("v_and_b32 v26, 0xff, v25\nv_cmp_ne_u32 vcc, 128, v26\ns_cbranch_vccnz CH_RDY")
    A("v_readfirstlane_b32 s29, v25\ns_lshr_b32 s29, s29, s30\ns_and_b32 s29, s29, 63\ns_cmp_gt_u32 s29, 16\ns_cselect_b32 s29, %s" % ("0, 0x2000" if "pinv" in OPT else "0x2000, 0"))
    A("s_mov_b64 exec, -1")
    A("v_mov_b32 v25, s29")
if STAMP: A("s_memrealtime s[56:57]\ns_memtime s[58:59]\ns_waitcnt lgkmcnt(0)")
if "nochain" in OPT: A("s_branch C_FIN")
A("s_bitcmp1_b32 s51, 8\ns_cbranch_scc1 C_SLOW")
emit_chain(A, "C_FIN", intra="", ready_wait=ready, pfx="CF_", gate="nobulk" not in OPT, stamps=(int(os.environ.get("CST", "20")) if "cst" in OPT else 0), abort="C_DONE", kv0=(128 if sched.SMALL0 else 64))
A.label("C_SLOW")
emit_chain(A, "C_FIN", intra="sc1", ready_wait=ready, pfx="CS_", gate=True, abort="C_DONE", kv0=(128 if sched.SMALL0 else 64))
A.label("C_FIN")
if STAMP:
    A("s_memrealtime s[90:91]\ns_lshl_b32 s40, s%d, 5\ns_add_u32 s40, s40, s%d\ns_lshl_b32 s40, s40, 6\ns_add_u32 s40, s40, 0x6100000\ns_waitcnt lgkmcnt(0)\nv_mov_b32 v2, s90\ns_mov_b64 exec, 1" % (S_X, S_C))
    A("buffer_store_dword v2, off, s[8:11], s40")
    A("s_memtime s[92:93]\ns_waitcnt lgkmcnt(0)\ns_sub_u32 s92, s92, s58\ns_sub_u32 s90, s90, s56\nv_mov_b32 v4, s92\nv_mov_b32 v5, s90")
    A("buffer_store_dwordx2 v[4:5], off, s[8:11], s40 offset:8\ns_waitcnt vmcnt(0)\ns_mov_b64 exec, -1")
A("s_setprio 0")
def cst():
    if STAMP:
        A("s_mov_b32 s35, 13"); bstamp()
emit_ctail(A, sched.CT0, "C_DONE", cst)
A("s_branch A3_DONE")

A.label("C_BULK")
if "nobulk" in OPT: A("s_endpgm")
SLOT_, CTYPE, CSIG, PSIG, RET = 35, 36, 37, 38, 39
N_WTGT, N_OUT, N_HEAD, N_QB, XB = 55, 56, 57, 58, 59
N_TYPE, N_ASZ, N_PA, N_PW, N_WSZ, N_AOFF, N_WOFF, N_LDW, N_COFF, N_LR, N_RS, N_CS, N_SIG, N_WAIT = 86, 87, 88, 90, 92, 93, 94, 95, 96, 97, 98, 99, 100, 101
T0, T1, T2, T3 = 40, 41, 42, 43
N_SCL, CSCL, CHEAD, CSEG = 4, 5, 3, 7
CB = S_C
A("v_and_b32 v0, 63, v0")
if "elog" in OPT: A("s_mov_b32 s2, 0")
A("s_sub_u32 s%d, s%d, 4\ns_mov_b32 s%d, -1\ns_mov_b32 s%d, 0\ns_mov_b32 s%d, 0\ns_mov_b32 s%d, 0\ns_mov_b32 s%d, 0" % (XB, S_X, SLOT_, RET, CTYPE, CSIG, PSIG))
A("s_mov_b32 s%d, 2048" % G_LDA)
A("s_getpc_b64 s[0:1]")
A.label("B_PC")
A("s_add_u32 s0, s0, JOBS-B_PC\ns_addc_u32 s1, s1, 0")
A("s_lshl_b32 s40, s%d, 5\ns_add_u32 s40, s40, s%d\ns_lshl_b32 s40, s40, 6\ns_add_u32 s0, s0, s40\ns_addc_u32 s1, s1, 0\ns_load_dword s6, s[0:1], 0" % (XB, CB))
A("s_mov_b32 s%d, 0\ns_mov_b32 s%d, 0\ns_mov_b32 s%d, 0\ns_mov_b32 s%d, 0\ns_mov_b32 s%d, 0\ns_mov_b32 s%d, 0\ns_mov_b32 s%d, 0" % (N_HEAD, N_QB, N_COFF, N_LR, N_RS, N_AOFF, N_WOFF))
mk_srd(A, G_SA, ptr(0), 0x400000); mk_srd(A, G_SW, ptr(3), 0x800000); mk_srd(A, G_SC, ptr(12), WS_BYTES)
def setp(dst, pi): A("s_mov_b64 s[%d:%d], s[%d:%d]" % (dst, dst + 1, ptr(pi), ptr(pi) + 1))
def flag(i): return FLAGS + 128 * i
bstamp()
A("s_mov_b32 s%d, 0" % SLOT_)
if sched.SMALL0:
    A("s_and_b32 s%d, s%d, 1\ns_lshl_b32 s%d, s%d, 4\ns_and_b32 s%d, s%d, 15\ns_add_u32 s%d, s%d, s%d\ns_lshr_b32 s%d, s%d, 4" % (T1, XB, T1, T1, T2, CB, T1, T1, T2, T0, CB))
    A("s_lshl_b32 s%d, s%d, 18\ns_lshl_b32 s%d, s%d, 8\ns_mov_b32 s%d, 8192\ns_mov_b32 s%d, 16" % (G_AOFF, T0, G_WOFF, T1, G_LDW, G_LR))
    A("s_lshl_b32 s%d, s%d, 20\ns_lshl_b32 s%d, s%d, 14\ns_add_u32 s%d, s%d, s%d" % (G_COFF, T1, T2, T0, G_COFF, G_COFF, T2))
    G2.setup_static(); G2.setup_lda(); G2.setup_ldw()
    A("v_mov_b32 v28, -1\nv_mov_b32 v29, -1\nv_mov_b32 v30, -1\nv_mov_b32 v31, -1\nv_lshlrev_b32 v1, 4, v0")
    A("s_lshl_b32 s40, s%d, 5\ns_add_u32 s40, s40, s%d\ns_lshl_b32 s40, s40, 3\ns_add_u32 s40, s40, s%d\ns_lshl_b32 s40, s40, 11\ns_add_u32 s40, s40, %d" % (XB, CB, G_WAVE, PARTB))
    for i in range(2): A("buffer_store_dwordx4 v[28:31], v1, s[8:11], s40 offen offset:%d sc1" % (1024 * i))
    A("s_cmp_ge_u32 s%d, 2\ns_cbranch_scc1 F_V" % XB)
    A("s_mov_b32 s%d, 4096\ns_mov_b32 s%d, 0x40000\ns_add_u32 s%d, s%d, %d" % (G_RS, G_CS, G_COFF, G_COFF, KV))
    G2.simple("FK", "row", 16, "sc1")
    A("s_branch F_DONE")
    A.label("F_V")
    mk_srd(A, G_SW, ptr(4), 0x800000)
    A("s_mov_b32 s%d, 0x40000\ns_mov_b32 s%d, 4096\ns_add_u32 s%d, s%d, %d" % (G_RS, G_CS, G_COFF, G_COFF, KV + 2048))
    G2.simple("FV", "tr", 16, "sc1")
    A.label("F_DONE")
    A("s_waitcnt vmcnt(0)\ns_barrier\ns_cmp_lg_u32 s%d, 0\ns_cbranch_scc1 B_DECODE" % G_WAVE)
    A("s_mov_b32 s40, %d\nv_mov_b32 v1, 1\ns_mov_b64 exec, 1\nbuffer_atomic_add v1, off, s[8:11], s40\ns_mov_b64 exec, -1" % flag(F_KV))
A.label("B_DECODE")
bstamp()
A("s_add_u32 s%d, s%d, 1" % (SLOT_, SLOT_))
A("s_mov_b32 s%d, 0\ns_mov_b32 s%d, 0\ns_mov_b32 s%d, 0\ns_mov_b32 s%d, 0\ns_mov_b32 s%d, 0" % (N_TYPE, N_SIG, N_WAIT, N_OUT, N_WTGT))
setp(N_PA, 0); setp(N_PW, 2)
A("s_mov_b32 s%d, 0" % N_SCL)
A("s_mov_b32 s%d, 0x400000\ns_mov_b32 s%d, 0x800000\ns_mov_b32 s%d, 8192\ns_mov_b32 s%d, 64" % (N_ASZ, N_WSZ, N_LDW, N_CS))
A("s_waitcnt lgkmcnt(0)\ns_lshr_b32 s%d, s6, 8\ns_and_b32 s%d, s6, 0xff" % (T1, T0))
A("s_add_u32 s0, s0, 4\ns_addc_u32 s1, s1, 0\ns_load_dword s6, s[0:1], 0")
for i, nm in enumerate(["KV", "B1", "B2", "Q", "B3", "A3", "A3S"]):
    A("s_cmp_eq_u32 s%d, %d\ns_cbranch_scc1 D_%s" % (T1, i, nm))
A("s_mov_b32 s%d, 3\ns_branch B_DECODED" % N_TYPE)
A.label("D_KV")
A("s_and_b32 s%d, s%d, 1\ns_lshl_b32 s%d, s%d, 4\ns_and_b32 s%d, s%d, 15\ns_add_u32 s%d, s%d, s%d" % (T1, XB, T1, T1, T2, T0, T1, T1, T2))
A("s_lshr_b32 s%d, s%d, 4" % (T0, T0))
A("s_lshl_b32 s%d, s%d, 19\ns_lshl_b32 s%d, s%d, 8" % (N_AOFF, T0, N_WOFF, T1))
A("s_lshl_b32 s%d, s%d, 20\ns_lshl_b32 s%d, s%d, 15\ns_add_u32 s%d, s%d, s%d" % (N_COFF, T1, T2, T0, N_COFF, N_COFF, T2))
A("s_lshl_b32 s%d, s%d, 7\ns_add_u32 s%d, s%d, %d\ns_mov_b32 s%d, 16" % (N_SIG, T0, N_SIG, N_SIG, flag(F_KV), N_LR))
A("s_lshl_b32 s%d, s%d, 22\ns_lshr_b32 s%d, s%d, 1\ns_lshl_b32 s%d, s%d, 5\ns_add_u32 s%d, s%d, s%d\ns_lshl_b32 s%d, s%d, 15\ns_add_u32 s%d, s%d, s%d\ns_add_u32 s%d, s%d, %d" % (N_HEAD, T0, T2, XB, T2, T2, T2, T2, T1, T2, T2, N_HEAD, N_HEAD, T2, N_HEAD, N_HEAD, PARTB))
A("s_mov_b32 s%d, 4" % N_SCL)
A("s_cmp_ge_u32 s%d, 2\ns_cbranch_scc1 D_KV_V" % XB)
setp(N_PW, 3)
A("s_mov_b32 s%d, 4096\ns_mov_b32 s%d, 0x40000\ns_add_u32 s%d, s%d, %d\ns_branch B_DECODED" % (N_RS, N_CS, N_COFF, N_COFF, KV))
A.label("D_KV_V")
setp(N_PW, 4)
A("s_mov_b32 s%d, 0x40000\ns_mov_b32 s%d, 4096\ns_add_u32 s%d, s%d, %d\ns_mov_b32 s%d, 1\ns_branch B_DECODED" % (N_RS, N_CS, N_COFF, N_COFF, KV + 2048, N_TYPE))
A.label("D_B1")
setp(N_PA, 7); setp(N_PW, 8)
A("s_mov_b32 s%d, 0x600000\ns_mov_b32 s%d, 6144\ns_mov_b32 s%d, 16\ns_mov_b32 s%d, 2048\ns_mov_b32 s%d, 0x20000" % (N_WSZ, N_LDW, N_LR, N_RS, N_CS))
A("s_and_b32 s%d, s%d, 7\ns_lshl_b32 s%d, s%d, 19" % (T1, T0, N_AOFF, T1))
A("s_bfe_u32 s%d, s%d, 0x10003\ns_lshl_b32 s%d, s%d, 1\ns_add_u32 s%d, s%d, s%d" % (T2, T0, T3, XB, T2, T2, T3))
A("s_lshl_b32 s%d, s%d, 7\ns_add_u32 s%d, s%d, %d" % (N_SIG, T2, N_SIG, N_SIG, flag(F_B1)))
A("s_lshr_b32 s%d, s%d, 4\ns_lshl_b32 s%d, s%d, 3\ns_add_u32 s%d, s%d, s%d\ns_lshl_b32 s%d, s%d, 8" % (T0, T0, T3, T0, T3, T3, T2, N_WOFF, T3))
A("s_lshl_b32 s%d, s%d, 19\ns_lshl_b32 s%d, s%d, 14\ns_add_u32 s%d, s%d, s%d\ns_add_u32 s%d, s%d, %d" % (N_COFF, T3, T1, T1, N_COFF, N_COFF, T1, N_COFF, N_COFF, BQ))
A("s_cmp_eq_u32 s%d, 0\ns_cselect_b32 s%d, 1, 0" % (T0, N_SCL))
A("s_cmp_lg_u32 s%d, 2\ns_cbranch_scc1 B_DECODED" % T0)
A("s_mov_b32 s%d, 0x20000\ns_mov_b32 s%d, 2048\ns_mov_b32 s%d, 1\ns_branch B_DECODED" % (N_RS, N_CS, N_TYPE))
A.label("D_Q")
A("s_lshr_b32 s%d, s%d, 5\ns_and_b32 s%d, s%d, 31" % (N_QB, T0, N_HEAD, T0))
A("s_lshl_b32 s%d, s%d, 19\ns_lshl_b32 s%d, s%d, 8\ns_mov_b32 s%d, 2\ns_branch B_DECODED" % (N_AOFF, N_QB, N_WOFF, N_HEAD, N_SCL))
A.label("D_B3")
setp(N_PA, 12); setp(N_PW, 9)
A("s_mov_b32 s%d, 0x%x\ns_mov_b32 s%d, 0x200000\ns_mov_b32 s%d, 2048\ns_mov_b32 s%d, 4096\ns_mov_b32 s%d, 0x20000\ns_mov_b32 s%d, 1" % (N_ASZ, WS_BYTES, N_WSZ, N_LDW, N_LR, N_RS, N_OUT))
A("s_lshr_b32 s%d, s%d, 3\ns_and_b32 s%d, s%d, 7" % (T1, T0, T2, T0))
A("s_lshl_b32 s%d, s%d, 19\ns_add_u32 s%d, s%d, %d\ns_lshl_b32 s%d, s%d, 8" % (N_AOFF, T1, N_AOFF, N_AOFF, BO, N_WOFF, T2))
A("s_lshl_b32 s%d, s%d, 20\ns_add_u32 s%d, s%d, s%d\ns_add_u32 s%d, s%d, 2048" % (N_COFF, T1, N_COFF, N_COFF, N_WOFF, N_COFF, N_COFF))
A("s_lshl_b32 s%d, s%d, 7\ns_add_u32 s%d, s%d, %d\ns_mov_b32 s%d, 32\ns_branch B_DECODED" % (N_WAIT, T1, N_WAIT, N_WAIT, flag(F_B2), N_WTGT))
A.label("D_A3")
setp(N_PA, 12); setp(N_PW, 5)
A("s_mov_b32 s%d, 0x%x\ns_mov_b32 s%d, 2048\ns_mov_b32 s%d, 4096\ns_mov_b32 s%d, 0x20000\ns_mov_b32 s%d, 1\ns_mov_b32 s%d, 3" % (N_ASZ, WS_BYTES, N_LDW, N_LR, N_RS, N_OUT, N_SCL))
A("s_lshr_b32 s%d, s%d, 3\ns_and_b32 s%d, s%d, 7" % (T1, T0, T2, T0))
A("s_lshl_b32 s%d, s%d, 21\ns_add_u32 s%d, s%d, %d\ns_lshl_b32 s%d, s%d, 8" % (N_AOFF, T1, N_AOFF, N_AOFF, OT - 4096, N_WOFF, T2))
A("s_lshl_b32 s%d, s%d, 20\ns_add_u32 s%d, s%d, s%d" % (N_COFF, T1, N_COFF, N_COFF, N_WOFF))
A("s_lshl_b32 s%d, s%d, 10\ns_add_u32 s%d, s%d, %d\ns_mov_b32 s%d, 32\ns_branch B_DECODED" % (N_WAIT, T1, N_WAIT, N_WAIT, flag(F_CO), N_WTGT))
A.label("D_A3S")
setp(N_PA, 12); setp(N_PW, 5)
A("s_mov_b32 s%d, 0x%x\ns_mov_b32 s%d, 2048\ns_mov_b32 s%d, 4096\ns_mov_b32 s%d, 0x20000\ns_mov_b32 s%d, 1\ns_mov_b32 s%d, 5" % (N_ASZ, WS_BYTES, N_LDW, N_LR, N_RS, N_OUT, N_SCL))
A("s_lshr_b32 s%d, s%d, 3\ns_and_b32 s%d, s%d, 7" % (T1, T0, T2, T0))
A("s_lshl_b32 s%d, s%d, 19\ns_add_u32 s%d, s%d, %d\ns_lshl_b32 s%d, s%d, 8" % (N_AOFF, T1, N_AOFF, N_AOFF, OT - 4096, N_WOFF, T2))
A("s_lshl_b32 s%d, s%d, 18\ns_add_u32 s%d, s%d, s%d" % (N_COFF, T1, N_COFF, N_COFF, N_WOFF))
A("s_lshl_b32 s%d, s%d, 8\ns_add_u32 s%d, s%d, %d\ns_mov_b32 s%d, 32\ns_branch B_DECODED" % (N_WAIT, T1, N_WAIT, N_WAIT, flag(F_CO), N_WTGT))
A.label("D_B2")
A("s_lshl_b32 s%d, s%d, 3\ns_and_b32 s%d, s%d, 7\ns_add_u32 s%d, s%d, s%d" % (N_HEAD, XB, T1, T0, N_HEAD, N_HEAD, T1))
A("s_lshr_b32 s%d, s%d, 3" % (N_QB, T0))
A("s_lshr_b32 s%d, s%d, 2\ns_lshl_b32 s%d, s%d, 7\ns_add_u32 s%d, s%d, %d\ns_mov_b32 s%d, 24" % (N_WAIT, N_HEAD, N_WAIT, N_WAIT, N_WAIT, N_WAIT, flag(F_B1), N_WTGT))
A("s_lshl_b32 s%d, s%d, 7\ns_add_u32 s%d, s%d, %d\ns_mov_b32 s%d, 2" % (N_SIG, N_QB, N_SIG, N_SIG, flag(F_B2), N_TYPE))
A.label("B_DECODED")
if "samew" in OPT: A("s_mov_b32 s%d, 0" % N_WOFF)
if "samea" in OPT: A("s_mov_b32 s%d, 0" % N_AOFF)
A("s_cmp_eq_u32 s%d, 0\ns_cbranch_scc1 B_COLD" % RET)
A("s_cmp_eq_u32 s%d, 1\ns_cbranch_scc1 B_BODY_tr\ns_branch B_BODY_row" % CTYPE)

def signal(sreg, tag):
    A("s_cmp_lg_u32 s%d, 0\ns_cbranch_scc1 SG_%s\ns_cmp_eq_u32 s%d, 0\ns_cbranch_scc1 SG_%s" % (G_WAVE, tag, sreg, tag))
    A("v_mov_b32 v1, 1\ns_mov_b64 exec, 1\nbuffer_atomic_add v1, off, s[8:11], s%d\ns_mov_b64 exec, -1" % sreg)
    A.label("SG_" + tag)
def switch(G=G):
    A("s_mov_b32 s%d, s%d\ns_and_b32 s%d, s%d, 0xffff\ns_mov_b32 s%d, s%d" % (G_SA, N_PA, G_SA + 1, N_PA + 1, G_SA + 2, N_ASZ))
    A("s_mov_b32 s%d, s%d\ns_and_b32 s%d, s%d, 0xffff\ns_mov_b32 s%d, s%d" % (G_SW, N_PW, G_SW + 1, N_PW + 1, G_SW + 2, N_WSZ))
    A("s_mov_b32 s%d, s%d\ns_mov_b32 s%d, s%d\ns_mov_b32 s%d, s%d" % (G_AOFF, N_AOFF, G_WOFF, N_WOFF, G_LDW, N_LDW))
    G.setup_ldw()

def take_out():
    A("s_mov_b32 s%d, s%d\ns_mov_b32 s%d, s%d\ns_mov_b32 s%d, s%d\ns_mov_b32 s%d, s%d\ns_mov_b32 s%d, s%d\ns_mov_b32 s%d, s%d" % (G_COFF, N_COFF, G_LR, N_LR, G_RS, N_RS, G_CS, N_CS, CSIG, N_SIG, CTYPE, N_TYPE))
    A("s_cmp_eq_u32 s%d, 1\ns_cselect_b32 s%d, s%d, s%d\ns_cselect_b32 s%d, s%d, s%d\ns_and_b32 s%d, s%d, 0xffff" % (N_OUT, G_SC, ptr(10), ptr(12), G_SC + 1, ptr(10) + 1, ptr(12) + 1, G_SC + 1, G_SC + 1))
    A("s_cmp_eq_u32 s%d, 1\ns_cselect_b32 s%d, 0x800000, 0x%x" % (N_OUT, G_SC + 2, WS_BYTES) if False else "s_mov_b32 s%d, 0x%x\ns_cmp_eq_u32 s%d, 1\ns_cselect_b32 s%d, 0x800000, s%d" % (G_SC + 2, WS_BYTES, N_OUT, G_SC + 2, G_SC + 2))
A.label("B_COLD")
elog(1)
A("s_cmp_eq_u32 s%d, 3\ns_cbranch_scc1 A3_ENTRY" % N_TYPE)
A("s_cmp_eq_u32 s%d, 0\ns_cbranch_scc1 B_NOWAIT" % N_WAIT)
A("s_cmp_lg_u32 s%d, 0\ns_cbranch_scc1 B_WOK" % G_WAVE)
A("s_mov_b32 s44, 0")
A.label("B_WPOLL")
A("v_and_b32 v2, 7, v0\nv_lshlrev_b32 v2, 7, v2\ns_cmp_eq_u32 s%d, 3\ns_cselect_b32 s40, -1, 0\ns_cmp_eq_u32 s%d, 5\ns_cselect_b32 s40, 0x80, s40\nv_and_b32 v2, s40, v2" % (N_SCL, N_SCL))
A("buffer_load_dword v1, v2, s[8:11], s%d offen sc1" % N_WAIT)
A("s_add_u32 s44, s44, 1\ns_cmp_gt_u32 s44, %d\ns_cbranch_scc1 C_DONE" % TIMEOUT)
A("s_waitcnt vmcnt(0)\nv_cmp_ne_u32 vcc, s%d, v1\ns_cbranch_vccz B_WOK\ns_sleep 8\ns_branch B_WPOLL" % N_WTGT)
A.label("B_WOK")
A("s_barrier")
A.label("B_NOWAIT")
elog(2)
A("s_cmp_lg_u32 s%d, 2\ns_cbranch_scc1 B_CG" % N_TYPE)
emit_b2(A, "", N_HEAD, N_QB, G_WAVE, ldflag="sc1", stflag="sc1")
A("s_waitcnt vmcnt(0)\ns_barrier")
signal(N_SIG, "b2")
A("s_mov_b32 s%d, 0\ns_branch B_DECODE" % RET)
A.label("B_CG")
A("s_cmp_lg_u32 s%d, 5\ns_cbranch_scc1 B_CG4" % N_SCL)
G1.setup_static(); G1.setup_tiled_a(); switch(G1); take_out()
G1.simple("S", "row", 64, "sc1")
A("s_barrier\ns_mov_b32 s%d, 0\ns_branch B_DECODE" % RET)
A.label("B_CG4")
G.setup_static()
A("s_cmp_eq_u32 s%d, 3\ns_cbranch_scc1 B_CT" % N_SCL)
A("s_mov_b32 s%d, 2048" % G_LDA)
G.setup_lda()
A("s_branch B_CS")
A.label("B_CT")
G.setup_tiled_a()
A.label("B_CS")
switch()
G.cold(full_wait=True)
A("s_mov_b32 s%d, 0" % PSIG)
A.label("B_WARM")
elog(3)
A("s_mov_b32 s%d, s%d\ns_mov_b32 s%d, s%d\ns_lshl_b32 s%d, s%d, 3\ns_add_u32 s%d, s%d, s%d" % (CSCL, N_SCL, CHEAD, N_HEAD, CSEG, N_QB, CSEG, CSEG, G_WAVE))
take_out()
A("s_mov_b32 s%d, 1\ns_branch B_DECODE" % RET)
PH = 44
for mode in ("row", "tr"):
    A.label("B_BODY_" + mode)
    G.step(mode, True, 14, zero=True)
    G.step(mode, True, 14)
    def arm(mode=mode):
        signal(PSIG, "p" + mode)
        A("s_cmp_lg_u32 s%d, 4\ns_cbranch_scc1 B_NA%s" % (CSCL, mode))
        A("v_mov_b32 v28, -1\nv_mov_b32 v29, -1\nv_mov_b32 v30, -1\nv_mov_b32 v31, -1\nv_lshlrev_b32 v1, 4, v0")
        A("s_lshl_b32 s40, s%d, 12\ns_add_u32 s40, s40, s%d" % (G_WAVE, CHEAD))
        for i in range(4): A("buffer_store_dwordx4 v[28:31], v1, s[8:11], s40 offen offset:%d sc1" % (1024 * i))
        A.label("B_NA" + mode)
    G.step(mode, True, 6, after_barrier=arm)
    A("s_cmp_eq_u32 s%d, 3\ns_cselect_b32 s%d, 58, 10\ns_mov_b32 s%d, 0" % (CSCL, G_CNT, PH))
    A.label("B_LOOP_" + mode)
    G.step(mode, True, 6)
    A("s_sub_u32 s%d, s%d, 1\ns_cmp_lg_u32 s%d, 0\ns_cbranch_scc1 B_LOOP_%s" % (G_CNT, G_CNT, G_CNT, mode))
    A("s_cmp_eq_u32 s%d, 1\ns_cbranch_scc1 B_EPW_%s" % (PH, mode))
    if mode == "row": A("s_cmp_eq_u32 s%d, 2\ns_cbranch_scc1 B_QA\ns_cmp_eq_u32 s%d, 3\ns_cbranch_scc1 B_TAIL_row" % (CSCL, CSCL))
    A("s_cmp_ge_u32 s%d, 2\ns_cbranch_scc1 B_TAIL_%s\ns_cmp_lg_u32 s%d, 0\ns_cbranch_scc1 B_TAIL_%s" % (N_TYPE, mode, N_WAIT, mode))
    switch()
    A("s_mov_b32 s%d, 3\ns_mov_b32 s%d, 1\ns_branch B_LOOP_%s" % (G_CNT, PH, mode))
    A.label("B_TAIL_" + mode)
    G.step(mode, False, 6); G.step(mode, False, 0); G.step(mode, False, 0, more=False)
    A.label("B_EPW_" + mode)
    if mode == "row":
        A("s_cmp_lg_u32 s%d, 1\ns_cbranch_scc1 B_NOSC" % CSCL)
        A("v_mov_b32 v1, 0x%x" % f32bits(B2_QSCALE))
        for i in range(64): A("v_mul_f32 v%d, v%d, v1" % (G.ACC + i, G.ACC + i))
        A.label("B_NOSC")
    G.epilogue(mode, "" if "splain" in OPT else "sc1")
    A("s_mov_b32 s%d, s%d" % (PSIG, CSIG))
    A("s_cmp_eq_u32 s%d, %d\ns_cbranch_scc1 B_NOW_%s" % (CSIG, flag(F_KV), mode))
    A("s_cmp_eq_u32 s%d, 1\ns_cbranch_scc1 B_WARM" % PH)
    A.label("B_NOW_" + mode)
    A("s_waitcnt vmcnt(0)\ns_barrier")
    signal(CSIG, "c" + mode)
    A("s_mov_b32 s%d, 0" % PSIG)
    A("s_cmp_eq_u32 s%d, 1\ns_cbranch_scc1 B_WARM" % PH)
    A("s_branch B_COLD")
A.label("B_QA")
A("s_lshr_b32 s40, s%d, 3\ns_lshl_b32 s40, s40, 7\ns_add_u32 s40, s40, %d\ns_mov_b32 s41, 0" % (CSEG, flag(F_KV)))
A.label("B_QA_W")
A("buffer_load_dword v1, off, s[8:11], s40 sc1")
A("s_add_u32 s41, s41, 1\ns_cmp_gt_u32 s41, %d\ns_cbranch_scc1 C_DONE" % TIMEOUT)
A("s_cmp_lt_u32 s%d, 8\ns_cselect_b32 s42, %d, 64" % (CSEG, 128 if sched.SMALL0 else 64))
A("s_waitcnt vmcnt(0)\nv_cmp_eq_u32 vcc, s42, v1\ns_cbranch_vccnz B_QA_G\ns_sleep 8\ns_branch B_QA_W")
A.label("B_QA_G")
a2_kv_loads(A, CSEG, CHEAD)
G.step("row", False, 16); G.step("row", False, 16); G.step("row", False, 0, more=False)
A("s_barrier")
G.epilogue_lds()
elog(4)
A("s_waitcnt lgkmcnt(0)\ns_barrier")
emit_a2(A, "", CSEG, CHEAD, G_WAVE, "C_DONE")
A("s_barrier\ns_branch B_COLD")
A.label("A3_ENTRY")
if STAMP:
    A("s_mov_b32 s%d, 13" % SLOT_); bstamp()
emit_a3w(A, S_X, S_C, G_WAVE, "A3_DONE", "C_DONE")
A.label("A3_DONE")
if STAMP:
    A("s_mov_b32 s%d, 14" % SLOT_); bstamp()
A.label("C_DONE")
A("s_endpgm")

import sched
A.raw(".p2align 6\n.type JOBS,@object\nJOBS:")
for row in sched.table():
    A.raw(".long " + ", ".join("0x%x" % x for x in row))
A.raw(".size JOBS, %d" % (128 * 64))
A.raw(".type SEGS,@object\nSEGS:")
for row in sched.segs():
    A.raw(".long " + ", ".join("%d" % x for x in row))
A.raw(".size SEGS, %d" % (8 * 128))
A.raw(kernel_desc(KN))
open(sys.argv[1], "w").write(A.text())
```

```python
from asmlib import *
from layout import *
from chain import f32bits
import math

A2_K, A2_V = 192, 224

def a2_kv_loads(A, s_seg, s_head):
    A("v_bfe_u32 v28, v0, 2, 2\nv_lshlrev_b32 v28, 3, v28\nv_and_b32 v29, 3, v0\nv_add_u32 v28, v28, v29")
    A("v_lshrrev_b32 v29, 4, v0\nv_lshlrev_b32 v29, 9, v29\nv_lshl_add_u32 v28, v28, 4, v29")
    A("s_lshl_b32 s40, s%d, 20\ns_lshl_b32 s41, s%d, 12\ns_add_u32 s40, s40, s41\ns_add_u32 s40, s40, %d" % (s_head, s_seg, KV))
    for ks in range(4):
        for a in range(2):
            A("buffer_load_dwordx4 %s, v28, s[8:11], s40 offen offset:%d sc1" % (vr(A2_K + 16 * a + 4 * ks, 4), 64 * a))
        for a in range(2):
            A("buffer_load_dwordx4 %s, v28, s[8:11], s40 offen offset:%d sc1" % (vr(A2_V + 8 * (ks ^ 2) + 4 * a, 4), 2048 + 64 * a))
        if ks < 3: A("s_add_u32 s40, s40, 0x40000")

def emit_a2(A, tag, s_seg, s_head, s_wave, abort):
    T0, T1, SKM, SO, SC = 40, 41, 42, 43, 48
    K, V = A2_K, A2_V
    Q, KMf, VMf, S, O = 16, 48, 64, 80, 104
    P, PM, ONE, OS, TMP = 168, 176, 180, 184, 8
    A("v_and_b32 v1, 15, v0\nv_lshrrev_b32 v2, 4, v0\nv_lshlrev_b32 v3, 4, v2")
    A("v_bfe_u32 v4, v0, 2, 2\nv_lshlrev_b32 v4, 3, v4\nv_and_b32 v5, 3, v0\nv_add_u32 v4, v4, v5")
    A("v_lshlrev_b32 v5, 9, v2\nv_lshl_add_u32 v5, v1, 4, v5")
    A("v_and_b32 v7, 7, v0\nv_lshlrev_b32 v7, 4, v7\nv_lshl_add_u32 v7, v2, 7, v7")
    A("v_and_b32 v13, 1, v2\nv_lshlrev_b32 v13, 3, v13\nv_lshl_add_u32 v13, v4, 4, v13")
    A("v_lshrrev_b32 v6, 1, v2\nv_and_b32 v12, 1, v2\nv_lshl_or_b32 v6, v12, 1, v6\nv_lshl_add_u32 v6, v6, 4, v1\nv_lshlrev_b32 v6, 4, v6")
    A("s_lshr_b32 s%d, s%d, 1\ns_lshl_b32 s%d, s%d, 14\ns_and_b32 s%d, s%d, 1\ns_lshl_b32 s%d, s%d, 12\ns_add_u32 s%d, s%d, s%d\nv_add_u32 v6, s%d, v6" % (T0, s_wave, T0, T0, T1, s_wave, T1, T1, T0, T0, T1, T0))
    for qt in range(2):
        for ks in range(4):
            A("ds_read_b128 %s, v6 offset:%d" % (vr(Q + 16 * qt + 4 * ks, 4), (ks >> 1) * 8192 + qt * 2048 + (ks & 1) * 1024))
    A("s_lshl_b32 s%d, s%d, 18\ns_lshl_b32 s%d, s%d, 10\ns_add_u32 s%d, s%d, s%d\ns_add_u32 s%d, s%d, %d" % (SKM, s_head, T0, s_seg, SKM, SKM, T0, SKM, SKM, KVM))
    A("s_lshl_b32 s%d, s%d, 18\ns_lshl_b32 s%d, s%d, 13\ns_add_u32 s%d, s%d, s%d\ns_add_u32 s%d, s%d, %d" % (SO, s_seg, T0, s_head, SO, SO, T0, SO, SO, OT))
    A("s_mov_b32 s%d, 0x%x" % (SC, f32bits(128 ** -0.5 * math.log2(math.e))))
    for i in range(4): A("v_mov_b32 v%d, 0x3f803f80" % (ONE + i))
    A("v_lshlrev_b32 v14, 3, v2\nv_sub_u32 v14, v1, v14")
    A("v_mov_b32 v15, 0xff800000")
    A("s_waitcnt vmcnt(0) lgkmcnt(0)")
    for ks in range(4):
        for qt in range(2):
            for kt in range(2):
                d = vr(S + 12 * qt + 4 * kt, 4)
                A("v_mfma_f32_16x16x32_bf16 %s, %s, %s, %s" % (d, vr(K + 16 * kt + 4 * ks, 4), vr(Q + 16 * qt + 4 * ks, 4), "0" if ks == 0 else d))
    A("s_lshr_b32 s%d, s%d, 3\ns_lshl_b32 s%d, s%d, 7" % (T0, s_head, T0, T0))
    A("s_add_u32 s%d, s%d, 1\ns_lshl_b32 s%d, s%d, 5" % (T1, s_seg, T1, T1))
    A("s_cmp_ge_u32 s%d, 63\ns_cselect_b32 s%d, 32, s%d\ns_cselect_b32 s50, %d, 0\ns_add_u32 s%d, s%d, s50\ns_add_u32 s%d, s%d, %d" % (s_seg, T1, T1, (F_CPL - F_CP) * 128, T0, T0, T0, T0, FLAGS + F_CP * 128))
    A("s_mov_b32 s50, 0")
    A.label("A2%s_W" % tag)
    A("buffer_load_dword v12, off, s[8:11], s%d sc1" % T0)
    A("s_add_u32 s50, s50, 1\ns_cmp_gt_u32 s50, 400000\ns_cbranch_scc1 %s" % abort)
    A("s_waitcnt vmcnt(0)\nv_cmp_le_u32 vcc, s%d, v12\ns_cbranch_vccnz A2%s_GO\ns_sleep 6\ns_branch A2%s_W" % (T1, tag, tag))
    A.label("A2%s_GO" % tag)
    for ks in range(4):
        A("buffer_load_dwordx4 %s, v7, s[8:11], s%d offen sc1" % (vr(KMf + 4 * ks, 4), SKM))
        for a in range(2):
            A("buffer_load_dwordx2 %s, v13, s[8:11], s%d offen offset:%d sc1" % (vr(VMf + 4 * (ks ^ 2) + 2 * a, 2), SKM, 512 + 64 * a))
        if ks < 3: A("s_add_u32 s%d, s%d, 0x10000" % (SKM, SKM))
    for qt in range(2):
        s = S + 12 * qt
        for j in range(8):
            A("v_cmp_le_i32 vcc, %d, v14" % (j - 16 * qt))
            A("v_cndmask_b32 v%d, v15, v%d, vcc" % (s + j, s + j))
    A("s_waitcnt vmcnt(0)")
    for ks in range(4):
        for qt in range(2):
            d = vr(S + 12 * qt + 8, 4)
            A("v_mfma_f32_16x16x32_bf16 %s, %s, %s, %s" % (d, vr(KMf + 4 * ks, 4), vr(Q + 16 * qt + 4 * ks, 4), "0" if ks == 0 else d))
    A("s_mov_b32 s50, -1\ns_mov_b32 s51, 0")
    for qt in range(2):
        s = S + 12 * qt
        for j in range(4):
            A("v_cndmask_b32 v%d, v15, v%d, s[50:51]" % (s + 8 + j, s + 8 + j))
        m = TMP
        A("v_max3_f32 v%d, v%d, v%d, v%d" % (m, s, s + 1, s + 2))
        for j in range(3, 11, 2): A("v_max3_f32 v%d, v%d, v%d, v%d" % (m, m, s + j, s + j + 1))
        A("v_max_f32 v%d, v%d, v%d" % (m, m, s + 11))
        A("v_mov_b32 v%d, v%d\nv_permlane16_swap_b32 v%d, v%d\nv_max_f32 v%d, v%d, v%d" % (m + 1, m, m, m + 1, m, m, m + 1))
        A("v_mov_b32 v%d, v%d\nv_permlane32_swap_b32 v%d, v%d\nv_max_f32 v%d, v%d, v%d" % (m + 1, m, m, m + 1, m, m, m + 1))
        A("v_mul_f32 v%d, s%d, v%d" % (m, SC, m))
        for j in range(12): A("v_fma_f32 v%d, v%d, s%d, -v%d" % (s + j, s + j, SC, m))
        for j in range(12): A("v_exp_f32 v%d, v%d" % (s + j, s + j))
        for j in range(4): A("v_cvt_pk_bf16_f32 v%d, v%d, v%d" % (P + 4 * qt + j, s + 2 * j, s + 2 * j + 1))
        for j in range(2): A("v_cvt_pk_bf16_f32 v%d, v%d, v%d" % (PM + 2 * qt + j, s + 8 + 2 * j, s + 9 + 2 * j))
        A("v_mfma_f32_16x16x32_bf16 %s, %s, %s, 0" % (vr(OS + 4 * qt, 4), vr(ONE, 4), vr(P + 4 * qt, 4)))
        for et in range(8):
            A("v_mfma_f32_16x16x32_bf16 %s, %s, %s, 0" % (vr(O + 32 * qt + 4 * et, 4), vr(V + 4 * et, 4), vr(P + 4 * qt, 4)))
        A("v_mfma_f32_16x16x16_bf16 %s, %s, %s, %s" % (vr(OS + 4 * qt, 4), vr(ONE, 2), vr(PM + 2 * qt, 2), vr(OS + 4 * qt, 4)))
        for et in range(8):
            d = vr(O + 32 * qt + 4 * et, 4)
            A("v_mfma_f32_16x16x16_bf16 %s, %s, %s, %s" % (d, vr(VMf + 2 * et, 2), vr(PM + 2 * qt, 2), d))
    A("s_add_u32 s%d, s%d, 4096" % (T0, SO))
    for qt in range(2):
        o = O + 32 * qt
        A("v_rcp_f32 v%d, v%d" % (TMP, OS + 4 * qt))
        for j in range(32): A("v_mul_f32 v%d, v%d, v%d" % (o + j, o + j, TMP))
        for j in range(16): A("v_cvt_pk_bf16_f32 v%d, v%d, v%d" % (Q + 16 * qt + j, o + 2 * j, o + 2 * j + 1))
        for T in range(4):
            A("buffer_store_dwordx4 %s, v5, s[8:11], s%d offen offset:%d sc1" % (vr(Q + 16 * qt + 4 * T, 4), T0 if T >= 2 else SO, 2048 * (T & 1) + 256 * qt))
    A("s_lshl_b32 s%d, s%d, 7\ns_add_u32 s%d, s%d, %d" % (T0, s_seg, T0, T0, FLAGS + F_CO * 128))
    A("v_mov_b32 v1, 1\ns_waitcnt vmcnt(0)\ns_mov_b64 exec, 1\nbuffer_atomic_add v1, off, s[8:11], s%d\ns_mov_b64 exec, -1" % T0)

def emit_a3w(A, s_grp, s_cb, s_wave, done, abort):
    from chain import load_weights, mk_srd, ptr
    W, ACC, ST = 128, 16, 32
    SEG, SB, IDX, PAR, TO, SO0, SO1, MASK = 40, 41, 49, 50, 44, 47, 48, 52
    A("s_barrier")
    A("s_getpc_b64 s[0:1]")
    A.label("A3_PC")
    A("s_add_u32 s0, s0, SEGS-A3_PC\ns_addc_u32 s1, s1, 0")
    A("s_lshl_b32 s42, s%d, 7\nv_and_b32 v9, 31, v0\nv_lshlrev_b32 v9, 2, v9\nv_add_u32 v9, s42, v9" % s_grp)
    A("global_load_dword v9, v9, s[0:1]")
    A("s_waitcnt vmcnt(0)\nv_readfirstlane_b32 s42, v9\ns_cmp_ge_u32 s42, 64\ns_cbranch_scc1 %s" % done)
    A("s_lshl_b32 s%d, s%d, 20\ns_lshl_b32 s%d, s%d, 6\ns_add_u32 s%d, s%d, s%d\ns_add_u32 s%d, s%d, 0x80000" % (SO0, s_wave, SO1, s_cb, SO0, SO0, SO1, SO1, SO0))
    load_weights(A, W, 2, [(5, 0x800000, 2048, SO0), (5, 0x800000, 2048, SO1)], 4)
    mk_srd(A, 20, ptr(10), 0x800000)
    A("v_and_b32 v1, 15, v0\nv_lshrrev_b32 v2, 4, v0\nv_lshlrev_b32 v3, 9, v2\nv_lshl_add_u32 v3, v1, 4, v3")
    A("v_lshlrev_b32 v4, 4, v0\ns_lshl_b32 s42, s%d, 12\nv_add_u32 v5, s42, v4" % s_wave)
    A("s_lshl_b32 s42, s%d, 10\nv_add_u32 v6, s42, v4" % s_wave)
    A("s_lshr_b32 s42, s%d, 1\ns_lshl_b32 s42, s42, 16\ns_and_b32 s43, s%d, 1\ns_lshl_b32 s43, s43, 3\ns_add_u32 s42, s42, s43\ns_lshl_b32 s43, s%d, 6\ns_add_u32 s42, s42, s43" % (s_wave, s_wave, s_cb))
    A("v_lshlrev_b32 v7, 12, v1\nv_lshl_add_u32 v7, v2, 4, v7\nv_add_u32 v7, s42, v7")
    A("v_lshlrev_b32 v8, 7, v9\nv_add_u32 v8, %d, v8" % (FLAGS + F_CO * 128))
    A("s_lshl_b32 s51, s%d, 15\ns_add_u32 s51, s51, %d" % (s_wave, OT))
    A("s_mov_b32 s%d, 0" % IDX)
    A("s_barrier")
    def ld(j):
        for tt in range(2):
            A("buffer_load_dwordx4 %s, v3, s[8:11], s%d offen offset:%d sc1" % (vr(ST + (j % 8) * 8 + 4 * tt, 4), SB, (j & 1) * 2048 + tt * 256))
        if j & 1: A("s_add_u32 s%d, s%d, 4096" % (SB, SB))
    def mm(j):
        for tt in range(2):
            for a in range(2):
                d = vr(ACC + 8 * tt + 4 * a, 4)
                A("v_mfma_f32_16x16x32_bf16 %s, %s, %s, %s" % (d, vr(W + j * 8 + 4 * a, 4), vr(ST + (j % 8) * 8 + 4 * tt, 4), "0" if j == 0 else d))
    A.label("A3_COLD")
    A("v_readlane_b32 s%d, v9, s%d" % (SEG, IDX))
    A("s_cmp_ge_u32 s%d, 64\ns_cbranch_scc1 %s" % (SEG, done))
    A("s_mov_b32 s%d, 0" % TO)
    A.label("A3_W")
    A("buffer_load_dword v10, v8, s[8:11], 0 offen sc1")
    A("s_add_u32 s%d, s%d, 1\ns_cmp_gt_u32 s%d, 400000\ns_cbranch_scc1 %s" % (TO, TO, TO, abort))
    A("s_waitcnt vmcnt(0)\nv_cmp_eq_u32 s[%d:%d], 32, v10" % (MASK, MASK + 1))
    A("s_bitcmp1_b32 s%d, s%d\ns_cbranch_scc1 A3_RDY\ns_sleep 4\ns_branch A3_W" % (MASK, IDX))
    A.label("A3_RDY")
    A("s_lshl_b32 s%d, s%d, 18\ns_add_u32 s%d, s%d, s51" % (SB, SEG, SB, SB))
    for j in range(8): ld(j)
    A.label("A3_BODY")
    for j in range(8):
        A("s_waitcnt vmcnt(14)")
        mm(j); ld(j + 8)
    A("s_add_u32 s%d, s%d, 1\ns_bitcmp1_b32 s%d, s%d\ns_cselect_b32 s%d, 1, 0\ns_cbranch_scc0 A3_DRAIN" % (IDX, IDX, MASK, IDX, PAR))
    A("v_readlane_b32 s43, v9, s%d" % IDX)
    A("s_lshl_b32 s%d, s43, 18\ns_add_u32 s%d, s%d, s51" % (SB, SB, SB))
    for j in range(8, 16):
        A("s_waitcnt vmcnt(14)")
        mm(j); ld(j - 8)
    A("s_branch A3_RED")
    A.label("A3_DRAIN")
    for j in range(8, 16):
        A("s_waitcnt vmcnt(%d)" % (2 * (15 - j)))
        mm(j)
    A.label("A3_RED")
    for t in range(4): A("ds_write_b128 v5, %s offset:%d" % (vr(ACC + 4 * t, 4), 1024 * t))
    A("v_xor_b32 v5, 0x8000, v5")
    A("s_waitcnt lgkmcnt(0)\ns_barrier")
    A("s_cmp_ge_u32 s%d, 4\ns_cbranch_scc1 A3_NR" % s_wave)
    RD = 96
    for w in range(8): A("ds_read_b128 %s, v6 offset:%d" % (vr(RD + 4 * w, 4), 4096 * w))
    A("v_xor_b32 v6, 0x8000, v6")
    for w in range(1, 8):
        A("s_waitcnt lgkmcnt(%d)" % (7 - w))
        for i in range(4): A("v_add_f32 v%d, v%d, v%d" % (RD + i, RD + i, RD + 4 * w + i))
    A("v_cvt_pk_bf16_f32 v%d, v%d, v%d\nv_cvt_pk_bf16_f32 v%d, v%d, v%d" % (RD + 4, RD, RD + 1, RD + 5, RD + 2, RD + 3))
    A("s_lshl_b32 s42, s%d, 17" % SEG)
    A("buffer_store_dwordx2 %s, v7, s[20:23], s42 offen" % vr(RD + 4, 2))
    A.label("A3_NR")
    A("s_cmp_eq_u32 s%d, 0\ns_cbranch_scc1 A3_COLD" % PAR)
    A("s_mov_b32 s%d, s43\ns_branch A3_BODY" % SEG)

def emit_ctail(A, ct0, abort, stamp=None):
    from chain import mk_srd, ptr, S_X, S_C, S_WAVE
    n = 64 - ct0
    assert n % 4 == 0 and n <= 32
    if n == 0: return
    WO, ACC, ST = 192, 16, 32
    SEG, SB, TO, MASK = 40, 41, 44, 52
    A("s_waitcnt vmcnt(0) lgkmcnt(0)\ns_barrier")
    A("v_and_b32 v1, 15, v0\nv_lshrrev_b32 v2, 4, v0\nv_lshlrev_b32 v4, 4, v0")
    A("s_mov_b32 s%d, 0" % SEG)
    A("s_cmp_lt_u32 s%d, 4\ns_cbranch_scc1 CT_RED" % S_WAVE)
    A("v_lshlrev_b32 v3, 9, v2\nv_lshl_add_u32 v3, v1, 4, v3")
    A("s_sub_u32 s42, s%d, 4\ns_lshl_b32 s43, s42, 12\nv_add_u32 v5, s43, v4" % S_WAVE)
    A("s_lshl_b32 s42, s42, 14\ns_lshl_b32 s43, s%d, 16\ns_add_u32 s51, s42, s43\ns_add_u32 s51, s51, %d" % (S_X, OT + ct0 * 0x40000))
    A("v_lshlrev_b32 v8, 7, v0\nv_add_u32 v8, %d, v8" % (FLAGS + (F_CO + ct0) * 128))
    ACC = 160
    def ld(j):
        for tt in range(2):
            A("buffer_load_dwordx4 %s, v3, s[8:11], s%d offen offset:%d sc1" % (vr(ST + j * 8 + 4 * tt, 4), SB, (j & 1) * 2048 + tt * 256))
        if j == 7: A("s_add_u32 s%d, s%d, %d" % (SB, SB, 0x40000 - 12288))
        elif j & 1: A("s_add_u32 s%d, s%d, 4096" % (SB, SB))
    def mm(j):
        for tt in range(2):
            for a in range(2):
                d = vr(ACC + 16 * (j >> 3) + 8 * tt + 4 * a, 4)
                A("v_mfma_f32_16x16x32_bf16 %s, %s, %s, %s" % (d, vr(WO + (j & 7) * 8 + 4 * a, 4), vr(ST + j * 8 + 4 * tt, 4), "0" if j & 7 == 0 else d))
    def both():
        A("s_lshr_b64 s[42:43], s[%d:%d], s%d\ns_and_b32 s42, s42, 3\ns_cmp_eq_u32 s42, 3" % (MASK, MASK + 1, SEG))
    A.label("CT_COLD")
    A("s_mov_b32 s%d, 0" % TO)
    A.label("CT_W")
    A("buffer_load_dword v10, v8, s[8:11], 0 offen sc1")
    A("s_add_u32 s%d, s%d, 1\ns_cmp_gt_u32 s%d, 400000\ns_cbranch_scc1 %s" % (TO, TO, TO, abort))
    A("s_waitcnt vmcnt(0)\nv_cmp_eq_u32 s[%d:%d], 32, v10" % (MASK, MASK + 1))
    both()
    A("s_cbranch_scc0 CT_W")
    A("s_lshl_b32 s%d, s%d, 18\ns_add_u32 s%d, s%d, s51" % (SB, SEG, SB, SB))
    for j in range(16): ld(j)
    A.label("CT_ML")
    A("s_add_u32 s%d, s%d, 2" % (SEG, SEG))
    both()
    A("s_cselect_b32 s50, 1, 0\ns_cbranch_scc0 CT_DRAIN")
    A("s_lshl_b32 s%d, s%d, 18\ns_add_u32 s%d, s%d, s51" % (SB, SEG, SB, SB))
    for j in range(16):
        A("s_waitcnt vmcnt(30)")
        mm(j); ld(j)
    A("s_branch CT_PUT")
    A.label("CT_DRAIN")
    for j in range(16):
        A("s_waitcnt vmcnt(%d)" % (30 - 2 * j))
        mm(j)
    A.label("CT_PUT")
    for t in range(8): A("ds_write_b128 v5, %s offset:%d" % (vr(ACC + 4 * t, 4), 1024 * (t & 3) + 16384 * (t >> 2)))
    A("v_xor_b32 v5, 0x8000, v5")
    A("s_waitcnt lgkmcnt(0)\ns_barrier")
    A("s_cmp_eq_u32 s50, 1\ns_cbranch_scc1 CT_ML")
    A("s_cmp_lg_u32 s%d, %d\ns_cbranch_scc1 CT_COLD\ns_branch CT_SYNC" % (SEG, n))
    A.label("CT_RED")
    A("s_lshl_b32 s42, s%d, 10\nv_add_u32 v6, s42, v4" % S_WAVE)
    A("s_lshl_b32 s42, s%d, 14\ns_lshl_b32 s43, s%d, 12\ns_add_u32 s51, s42, s43\ns_add_u32 s51, s51, %d" % (S_C, S_WAVE, PT))
    A("s_lshl_b32 s42, s%d, 10\ns_add_u32 s49, s51, s42" % S_X)
    A("s_sub_u32 s48, s%d, s%d\ns_and_b32 s48, s48, 3" % (S_X, S_WAVE))
    OWN = 64
    for q in range(n // 4):
        for k in range(4):
            b = k
            if k % 2 == 0: A("s_barrier")
            for w in range(4): A("ds_read_b128 %s, v6 offset:%d" % (vr(ST + 4 * w, 4), 4096 * w + 16384 * b))
            A("s_waitcnt lgkmcnt(2)")
            for i in range(4): A("v_add_f32 v%d, v%d, v%d" % (ST + 16 + i, ST + i, ST + 4 + i))
            A("s_waitcnt lgkmcnt(0)")
            for i in range(4): A("v_add_f32 v%d, v%d, v%d" % (ST + 8 + i, ST + 8 + i, ST + 12 + i))
            L = A.newlabel("CT_O")
            A("s_cmp_eq_u32 s48, %d\ns_cbranch_scc1 %sa" % (k, L))
            for i in range(4): A("v_add_f32 v%d, v%d, v%d" % (ST + 20 + i, ST + 16 + i, ST + 8 + i))
            import os
            if "ctnost" not in os.environ.get("OPT", ""): A("buffer_store_dwordx4 %s, v4, s[8:11], s49 offen sc1" % vr(ST + 20, 4))
            A("s_branch %sb" % L)
            A.label(L + "a")
            for i in range(4): A("v_add_f32 v%d, v%d, v%d" % (OWN + 4 * q + i, ST + 16 + i, ST + 8 + i))
            A.label(L + "b")
            A("s_add_u32 s49, s49, 0x80000")
    A("s_waitcnt vmcnt(0)")
    A.label("CT_SYNC")
    A("s_barrier")
    if stamp: stamp()
    A("s_cmp_ge_u32 s%d, 4\ns_cbranch_scc1 CT_END" % S_WAVE)
    A("s_lshl_b32 s42, s%d, 7\ns_add_u32 s42, s42, %d" % (S_C, FLAGS + F_CT * 128))
    A("s_cmp_lg_u32 s%d, 0\ns_cbranch_scc1 CT_NS" % S_WAVE)
    A("v_mov_b32 v9, 1\ns_mov_b64 exec, 1\nbuffer_atomic_add v9, off, s[8:11], s42\ns_mov_b64 exec, -1")
    A.label("CT_NS")
    A("s_mov_b32 s%d, 0" % TO)
    A.label("CT_FW")
    A("buffer_load_dword v10, off, s[8:11], s42 sc1")
    A("s_add_u32 s%d, s%d, 1\ns_cmp_gt_u32 s%d, 400000\ns_cbranch_scc1 %s" % (TO, TO, TO, abort))
    A("s_waitcnt vmcnt(0)\nv_cmp_ne_u32 vcc, 4, v10\ns_cbranch_vccnz CT_FW")
    mk_srd(A, 20, ptr(10), 0x800000)
    for t in range(1, 4):
        A("s_add_u32 s42, s%d, %d\ns_and_b32 s42, s42, 3\ns_lshl_b32 s42, s42, 10\nv_add_u32 v%d, s42, v4" % (S_X, t, 10 + t))
    A("s_lshl_b32 s42, s48, 19\ns_add_u32 s51, s51, s42")
    GA = 128
    for q in range(n // 4):
        for t in range(3): A("buffer_load_dwordx4 %s, v%d, s[8:11], s51 offen sc1" % (vr(GA + 12 * q + 4 * t, 4), 11 + t))
        A("s_add_u32 s51, s51, 0x200000")
    A("s_lshr_b32 s42, s%d, 1\ns_lshl_b32 s42, s42, 16\ns_and_b32 s43, s%d, 1\ns_lshl_b32 s43, s43, 3\ns_add_u32 s42, s42, s43\ns_lshl_b32 s43, s%d, 6\ns_add_u32 s42, s42, s43" % (S_WAVE, S_WAVE, S_C))
    A("v_lshlrev_b32 v7, 12, v1\nv_lshl_add_u32 v7, v2, 4, v7\nv_add_u32 v7, s42, v7")
    A("s_add_u32 s42, s48, %d\ns_lshl_b32 s42, s42, 17" % ct0)
    for q in range(n // 4):
        A("s_waitcnt vmcnt(%d)" % (3 * (n // 4 - 1 - q) + q))
        for t in range(3):
            for i in range(4): A("v_add_f32 v%d, v%d, v%d" % (OWN + 4 * q + i, OWN + 4 * q + i, GA + 12 * q + 4 * t + i))
        A("v_cvt_pk_bf16_f32 v%d, v%d, v%d\nv_cvt_pk_bf16_f32 v%d, v%d, v%d" % (OWN + 4 * q, OWN + 4 * q, OWN + 4 * q + 1, OWN + 4 * q + 1, OWN + 4 * q + 2, OWN + 4 * q + 3))
        A("buffer_store_dwordx2 %s, v7, s[20:23], s42 offen\ns_add_u32 s42, s42, 0x80000" % vr(OWN + 4 * q, 2))
    A.label("CT_END")

B2_SLOT = 32768
B2_QSCALE = 32 ** -0.5 * math.log2(math.e)

def emit_b2(A, tag, s_head, s_qb, s_wave, ldflag="", stflag=""):
    T0, T1, SKO, SVO, SMODE, SCH, SWS, SRS, SMK = 40, 41, 42, 43, 44, 46, 47, 48, 49
    Q, O, KF, VF, P = 16, 24, 40, 56, 72
    SB = [96, 128]
    NM, LS, ONE = 160, 176, 192
    M, MN, T = 88, 92, 94
    VKD, KA, CK, CV = 2, 4, 8, 10
    A("s_mov_b32 s%d, 0" % SMODE)
    A.label("B2%s_START" % tag)
    A("v_lshlrev_b32 v%d, 4, v0" % VKD)
    A("s_lshl_b32 s%d, s%d, 17\ns_lshl_b32 s%d, s%d, 11\ns_add_u32 s%d, s%d, s%d\ns_add_u32 s%d, s%d, %d\ns_add_u32 s%d, s%d, %d" % (SKO, s_head, SMK, s_wave, SKO, SKO, SMK, SVO, SKO, BV, SKO, SKO, BK))
    A("s_mov_b32 s%d, 0" % SWS)
    A("s_lshl_b32 s%d, s%d, 14\ns_add_u32 s%d, s%d, s%d\ns_lshl_b32 s%d, s%d, 17\ns_add_u32 s%d, s%d, s%d\ns_add_u32 s%d, s%d, %d" % (T0, s_qb, T0, T0, SMK, T1, s_head, T0, T0, T1, T0, T0, BQ))
    A("buffer_load_dwordx4 %s, v%d, s[8:11], s%d offen %s" % (vr(Q, 4), VKD, T0, ldflag))
    A("buffer_load_dwordx4 %s, v%d, s[8:11], s%d offen offset:1024 %s" % (vr(Q + 4, 4), VKD, T0, ldflag))
    def dma():
        A("s_add_u32 m0, s%d, s%d" % (SMK, SWS))
        for j in range(2): A("buffer_load_dwordx4 v%d, s[8:11], s%d offen offset:%d %s lds" % (VKD, SKO, 1024 * j, ldflag))
        A("s_add_u32 m0, m0, 0x4000")
        for j in range(2): A("buffer_load_dwordx4 v%d, s[8:11], s%d offen offset:%d %s lds" % (VKD, SVO, 1024 * j, ldflag))
        A("s_add_u32 s%d, s%d, 0x4000\ns_add_u32 s%d, s%d, 0x4000" % (SKO, SKO, SVO, SVO))
        A("s_add_u32 s%d, s%d, %d\ns_and_b32 s%d, s%d, 0x1ffff" % (SWS, SWS, B2_SLOT, SWS, SWS))
    for i in range(3): dma()
    A("v_and_b32 v%d, 31, v0\nv_lshrrev_b32 v%d, 5, v0" % (T, T + 1))
    A("v_lshlrev_b32 v13, 11, v%d\nv_lshl_add_u32 v13, v%d, 4, v13" % (T, T + 1))
    A("v_and_b32 v14, 0x13, v%d\nv_bfe_u32 v15, v%d, 2, 1\nv_lshl_or_b32 v14, v15, 3, v14\nv_bfe_u32 v15, v%d, 3, 1\nv_lshl_or_b32 v14, v15, 2, v14" % (T, T, T))
    A("v_lshlrev_b32 v14, 4, v14\nv_lshl_add_u32 v%d, v%d, 9, v14" % (KA, T + 1))
    for i in range(16): A("v_mov_b32 v%d, 0\nv_mov_b32 v%d, 0" % (O + i, LS + i))
    for i in range(4): A("v_mov_b32 v%d, 0x3f803f80" % (ONE + i))
    A("v_mov_b32 v%d, 0xff800000" % M)
    A("s_mov_b32 s%d, 0\ns_mov_b32 s%d, 0" % (SRS, SCH))
    A("v_mov_b32 v%d, v%d\nv_mov_b32 v%d, v%d" % (CK, KA, CV, VKD))
    def kreads(off):
        return ["ds_read_b128 %s, v%d offset:%d" % (vr(KF + 8 * t + 4 * ks, 4), CK, off + 2048 * t + 1024 * ks) for t in range(2) for ks in range(2)]
    def vreads(off):
        return ["ds_read_b128 %s, v%d offset:%d" % (vr(VF + 4 * j, 4), CV, 0x4000 + off + 1024 * j) for j in range(4)]
    def qk(sb, c0):
        Lm = []
        for ks in range(2):
            for t in range(2):
                d = vr(SB[sb] + 16 * t, 16)
                Lm.append("v_mfma_f32_32x32x16_bf16 %s, %s, %s, %s" % (d, vr(KF + 8 * t + 4 * ks, 4), vr(Q + 4 * ks, 4), c0 if ks == 0 else d))
        return Lm
    def rowmax(s, first):
        A("v_max3_f32 v%d, v%d, v%d, v%d" % (MN, first, s, s + 1))
        for j in range(2, 32, 2): A("v_max3_f32 v%d, v%d, v%d, v%d" % (MN, MN, s + j, s + j + 1))
        A("v_mov_b32 v%d, v%d\nv_permlane32_swap_b32 v%d, v%d\nv_max_f32 v%d, v%d, v%d" % (T, MN, MN, T, MN, MN, T))
    pv = lambda u: "v_mfma_f32_32x32x16_bf16 %s, %s, %s, %s" % (vr(O, 16), vr(VF + 4 * u, 4), vr(P + 4 * u, 4), vr(O, 16))
    sm = lambda u: "v_mfma_f32_32x32x16_bf16 %s, %s, %s, %s" % (vr(LS, 16), vr(ONE, 4), vr(P + 4 * u, 4), vr(LS, 16))
    def next_slot():
        A("s_waitcnt vmcnt(4)\ns_barrier")
        A("s_add_u32 s%d, s%d, %d\ns_and_b32 s%d, s%d, 0x1ffff\nv_add_u32 v%d, s%d, v%d" % (SRS, SRS, B2_SLOT, SRS, SRS, CK, SRS, KA))
        dma()
    A("s_waitcnt vmcnt(8)\ns_barrier")
    for r in kreads(0): A(r)
    A("s_waitcnt lgkmcnt(0)")
    A("s_cmp_eq_u32 s%d, 1\ns_cbranch_scc1 B2%s_XL" % (SMODE, tag))
    for m in qk(0, "0"): A(m)
    rowmax(SB[0], SB[0])
    for i in range(16): A("v_sub_f32 v%d, 0, v%d" % (NM + i, MN))
    for i in range(4): A("v_mov_b32 v%d, 0" % (P + 12 + i))
    for r in vreads(0)[3:]: A(r)
    for m in qk(0, vr(NM, 16)): A(m)
    A("s_waitcnt lgkmcnt(0)")
    A.label("B2%s_CH" % tag)
    for it in range(4):
        sb = it & 1; s = SB[sb]
        if it == 3: next_slot()
        kr = kreads(4096 * (it + 1) if it < 3 else 0)
        vrd = vreads(4096 * it)
        q = qk(1 - sb, vr(NM, 16))
        for u in range(4):
            b = s + 8 * u
            for j in range(8):
                A("v_exp_f32 v%d, v%d" % (b + j, b + j))
                if u == 0:
                    if j == 0: A(kr[0]); A(kr[1])
                    if j == 1: A(pv(3))
                    if j == 2: A(kr[2]); A(kr[3])
                    if j == 3: A(vrd[0]); A(vrd[1])
                    if j == 4: A(sm(3))
                    if j == 5: A(vrd[2]); A(vrd[3])
                    if j == 7: A("s_waitcnt lgkmcnt(4)"); A(q[0])
                else:
                    if j == 1:
                        if u == 1: A("s_waitcnt lgkmcnt(0)")
                        A(pv(u - 1))
                    if j == 4: A(sm(u - 1))
                    if j == 7: A(q[u])
            for j in range(4): A("v_cvt_pk_bf16_f32 v%d, v%d, v%d" % (P + 4 * u + j, b + 2 * j, b + 2 * j + 1))
        if it == 3: A("v_add_u32 v%d, s%d, v%d" % (CV, SRS, VKD))
    A("s_add_u32 s%d, s%d, 1\ns_cmp_lt_u32 s%d, 8\ns_cbranch_scc1 B2%s_CH" % (SCH, SCH, SCH, tag))
    A(pv(3)); A(sm(3))
    A("v_mov_b32 v%d, 0x4e800000\nv_cmp_nlt_f32 vcc, v%d, v%d" % (T, LS, T))
    A("s_cmp_lg_u64 vcc, 0\ns_cselect_b32 s%d, 1, 0\ns_lshl_b32 s%d, s%d, 2\ns_add_u32 s%d, s%d, 0x20000" % (T0, T1, s_wave, T1, T1))
    A("v_mov_b32 v%d, s%d\nv_mov_b32 v%d, s%d\nds_write_b32 v%d, v%d\ns_waitcnt vmcnt(0) lgkmcnt(0)\ns_barrier" % (T, T1, T + 1, T0, T, T + 1))
    A("v_and_b32 v%d, 7, v0\nv_lshlrev_b32 v%d, 2, v%d\nv_add_u32 v%d, 0x20000, v%d\nds_read_b32 v%d, v%d\ns_waitcnt lgkmcnt(0)" % (T, T, T, T, T, T + 1, T))
    A("v_cmp_ne_u32 vcc, 0, v%d\ns_cbranch_vccz B2%s_FIN" % (T + 1, tag))
    A("s_mov_b32 s%d, 1\ns_branch B2%s_START" % (SMODE, tag))
    A.label("B2%s_XL" % tag)
    for it in range(4):
        for m in qk(0, "0"): A(m)
        for r in vreads(4096 * it): A(r)
        rowmax(SB[0], M)
        A("v_sub_f32 v%d, v%d, v%d\nv_exp_f32 v%d, v%d\nv_mov_b32 v%d, v%d" % (T, M, MN, T, T, M, MN))
        for j in range(16): A("v_mul_f32 v%d, v%d, v%d" % (O + j, O + j, T))
        A("v_mul_f32 v%d, v%d, v%d" % (LS, LS, T))
        for j in range(32): A("v_sub_f32 v%d, v%d, v%d" % (SB[0] + j, SB[0] + j, M))
        for j in range(32): A("v_exp_f32 v%d, v%d" % (SB[0] + j, SB[0] + j))
        for j in range(16): A("v_cvt_pk_bf16_f32 v%d, v%d, v%d" % (P + j, SB[0] + 2 * j, SB[0] + 2 * j + 1))
        A("s_waitcnt lgkmcnt(0)")
        for u in range(4): A(pv(u)); A(sm(u))
        if it == 3:
            next_slot()
            A("v_add_u32 v%d, s%d, v%d" % (CV, SRS, VKD))
        for r in kreads(4096 * (it + 1) if it < 3 else 0): A(r)
        A("s_waitcnt lgkmcnt(0)")
    A("s_add_u32 s%d, s%d, 1\ns_cmp_lt_u32 s%d, 8\ns_cbranch_scc1 B2%s_XL" % (SCH, SCH, SCH, tag))
    A.label("B2%s_FIN" % tag)
    A("v_rcp_f32 v%d, v%d" % (M, LS))
    for j in range(16): A("v_mul_f32 v%d, v%d, v%d" % (O + j, O + j, M))
    for j in range(8): A("v_cvt_pk_bf16_f32 v%d, v%d, v%d" % (P + j, O + 2 * j, O + 2 * j + 1))
    A("s_lshl_b32 s%d, s%d, 19\ns_lshl_b32 s%d, s%d, 16\ns_add_u32 s%d, s%d, s%d\ns_lshl_b32 s%d, s%d, 6\ns_add_u32 s%d, s%d, s%d\ns_add_u32 s%d, s%d, %d" % (T0, s_qb, T1, s_wave, T0, T0, T1, T1, s_head, T0, T0, T1, T0, T0, BO))
    for k in range(2):
        A("v_permlane32_swap_b32 v%d, v%d\nv_permlane32_swap_b32 v%d, v%d" % (P + 4 * k, P + 4 * k + 2, P + 4 * k + 1, P + 4 * k + 3))
        A("buffer_store_dwordx4 %s, v13, s[8:11], s%d offen offset:%d %s" % (vr(P + 4 * k, 4), T0, 32 * k, stflag))
```

```python
from asmlib import *
from layout import *
import math, struct, os
OPT = os.environ.get("OPT", "").split(",")

def f32bits(x):
    return struct.unpack("<I", struct.pack("<f", x))[0]

S_WS = 8
S_W = 12
S_PB = 22
S_X, S_C, S_WAVE, S_STEP, S_CUR, S_NXT, S_RST, S_DONE = 32, 33, 34, 35, 36, 37, 38, 39
S_MLO = 40
S_MM = 42
S_TO = 44
S_T0, S_T1, S_T2, S_T3 = 45, 46, 47, 48
S_SC = 49
S_KOFF, S_VOFF, S_KMOFF, S_VMOFF = 50, 51, 52, 53
S_RDY = 25
S_PCUR, S_PRST = 27, 28
S_PSEL = 26
S_DUM = 24
S_G2 = 54
S_PTR = 60
TIMEOUT = 200000

RED_QK, RED_V, RED_O = 0, 9216, 16384
QK_ROW = 144
PSEL_LDS = 131072
KVM_LDS = 20480

def ptr(i):
    return S_PTR + 2 * i

def mk_srd(A, d, p, nbytes):
    A("s_mov_b32 s%d, s%d\ns_and_b32 s%d, s%d, 0xffff\ns_mov_b32 s%d, 0x%x\ns_mov_b32 s%d, 0x20000" % (d, p, d + 1, p + 1, d + 2, nbytes, d + 3))

def check(A, regs_list, tmp, retry):
    r = list(regs_list)
    if len(r) >= 3:
        A("v_max3_u32 v%d, v%d, v%d, v%d" % (tmp, r[0], r[1], r[2])); r = r[3:]
    else:
        A("v_max_u32 v%d, v%d, v%d" % (tmp, r[0], r[1])); r = r[2:]
    while r:
        if len(r) >= 2:
            A("v_max3_u32 v%d, v%d, v%d, v%d" % (tmp, tmp, r[0], r[1])); r = r[2:]
        else:
            A("v_max_u32 v%d, v%d, v%d" % (tmp, tmp, r[0])); r = r[1:]
    A("v_cmp_eq_u32 vcc, -1, v%d" % tmp)
    A("s_cbranch_vccnz %s" % retry)

def poll_head(A, name, abort):
    A("s_mov_b32 s%d, 0" % S_TO)
    A.label(name)
    A("s_add_u32 s%d, s%d, 1\ns_cmp_gt_u32 s%d, %d\ns_cbranch_scc1 %s" % (S_TO, S_TO, S_TO, TIMEOUT, abort))

def seq_poll(A, name, abort, n, issue, regs_of, block, vtmp, first=None, dbg=False, tails=None, back=3):
    first = first or n
    def chk_ops(u):
        r = list(regs_of(u))
        return ["v_max3_u32 v%d, v%d, v%d, v%d" % (vtmp, r[0], r[1], r[2]), "v_max_u32 v%d, v%d, v%d" % (vtmp, vtmp, r[3]), "v_cmp_eq_u32 vcc, -1, v%d" % vtmp]
    tmo = "s_add_u32 s%d, s%d, 1\ns_cmp_gt_u32 s%d, %d\ns_cbranch_scc1 %s" % (S_TO, S_TO, S_TO, TIMEOUT, abort)
    A("s_mov_b32 s%d, 0" % S_TO)
    A.label(name + "_R0")
    for u in range(first): A(issue(u))
    A(tmo)
    A("s_waitcnt vmcnt(%d)" % (first - 1))
    for x in chk_ops(0): A(x)
    A("s_cbranch_vccnz %s_R0" % name)
    if dbg: A("s_memrealtime s[94:95]\ns_mov_b32 s98, s%d" % S_TO)
    for u in range(first, n): A(issue(u))
    for u in range(n):
        if u:
            A("s_cbranch_vccnz %s_R%d" % (name, u))
            A.label("%s_B%d" % (name, u))
        blk = block(u)
        if u < n - 1:
            extra = ["s_waitcnt vmcnt(%d)" % (n - 2 - u)] + chk_ops(u + 1)
            idx = [i for i, x in enumerate(blk) if x.startswith("v_mfma") or x.startswith("v_smfmac")]
            pos = idx[-back:]
            out = []
            for i, x in enumerate(blk):
                if i == pos[0]: out.append(extra[0])
                out.append(x)
                if i == pos[0]: out.append(extra[1])
                if i == pos[1]: out += extra[2:]
            blk = out
        for x in blk: A(x)
    T = Asm()
    for u in range(1, n):
        T.label("%s_R%d" % (name, u))
        for v in range(u, n): T(issue(v))
        T(tmo)
        T("s_waitcnt vmcnt(%d)" % (n - 1 - u))
        for x in chk_ops(u): T(x)
        T("s_cbranch_vccnz %s_R%d" % (name, u))
        T("s_branch %s_B%d" % (name, u))
    tails.extend(T.lines)

def load_weights(A, vbase, nmat, mats, vtmp, pace=False, issued=None, sparse=False):
    va, vw, vt = vtmp, vtmp + 1, vtmp + 2
    for b, (pi, nb, rs, soff) in enumerate(mats):
        if pace: A("s_barrier")
        mk_srd(A, S_W, ptr(pi), nb)
        A("v_lshrrev_b32 v%d, 2, v0" % va)
        A("s_mov_b32 s%d, %d" % (S_T0, rs))
        A("v_mul_lo_u32 v%d, v%d, s%d" % (va, va, S_T0))
        A("v_and_b32 v%d, 3, v0\nv_lshl_add_u32 v%d, v%d, 4, v%d" % (vt, va, vt, va))
        A("s_mov_b32 s%d, s%d" % (S_T1, soff))
        for i in range(16):
            A("buffer_load_dwordx4 %s, v%d, s[%d:%d], s%d offen" % (vr(vbase + b * 64 + i * 4, 4), va, S_W, S_W + 3, S_T1))
            if i < 15: A("s_add_u32 s%d, s%d, %d" % (S_T1, S_T1, 16 * rs))
    if issued: issued()
    A("s_lshl_b32 s%d, s%d, 14" % (S_T0, S_WAVE))
    A("v_lshlrev_b32 v%d, 4, v0\nv_add_u32 v%d, s%d, v%d" % (vw, vw, S_T0, vw))
    A("v_lshrrev_b32 v%d, 4, v0\nv_lshlrev_b32 v%d, 9, v%d" % (va, va, va))
    if sparse:
        A("v_bfe_u32 v%d, v0, 2, 1\nv_lshl_add_u32 v%d, v%d, 6, v%d\nv_bfe_u32 v%d, v0, 3, 1\nv_lshl_add_u32 v%d, v%d, 8, v%d" % (vt, va, vt, va, vt, va, vt, va))
    else:
        A("v_bfe_u32 v%d, v0, 2, 2\nv_lshl_add_u32 v%d, v%d, 6, v%d" % (vt, va, vt, va))
    A("v_and_b32 v%d, 3, v0\nv_lshl_add_u32 v%d, v%d, 4, v%d" % (vt, va, vt, va))
    A("v_add_u32 v%d, s%d, v%d" % (va, S_T0, va))
    for b in range(nmat):
        A("s_waitcnt vmcnt(%d)" % ((nmat - 1 - b) * 16))
        for i in range(16):
            A("ds_write_b128 v%d, %s offset:%d" % (vw, vr(vbase + b * 64 + i * 4, 4), i * 1024))
        A("s_waitcnt lgkmcnt(0)")
        for kk in range(8):
            for a in range(2):
                for hf in range(2):
                    if sparse: A("ds_read_b64_tr_b16 %s, v%d offset:%d" % (vr(vbase + b * 64 + (kk >> 1) * 16 + a * 8 + (kk & 1) * 4 + hf * 2, 2), va, kk * 2048 + hf * 128 + a * 8))
                    else: A("ds_read_b64_tr_b16 %s, v%d offset:%d" % (vr(vbase + b * 64 + kk * 8 + a * 4 + hf * 2, 2), va, kk * 2048 + hf * 256 + a * 8))
            if kk % 2 == 1: A("s_waitcnt lgkmcnt(0)")

def emit_probe(A, res):
    A("s_and_b32 s96, s%d, 7\ns_lshl_b32 s96, s96, 9\ns_lshr_b32 s97, s%d, 3\ns_lshl_b32 s97, s97, 14\ns_add_u32 s96, s96, s97\ns_add_u32 s96, s96, %d" % (S_T2, S_T2, PROBE))
    A("v_and_b32 v26, 3, v0\nv_lshlrev_b32 v26, 12, v26\nv_bfe_u32 v27, v0, 2, 2\nv_lshl_add_u32 v26, v27, 7, v26")
    A("s_mov_b64 exec, 0xffff")
    A("buffer_store_dword v26, v26, s[8:11], s96 offen sc1\ns_waitcnt vmcnt(0)")
    A("s_mov_b64 exec, -1")
    A("s_add_u32 s96, s%d, s96\ns_addc_u32 s97, s%d, 0" % (ptr(12), ptr(12) + 1))
    for o in (64, 4096 + 64, 8192 + 64, 12288 + 64): A("s_load_dword s92, s[96:97], 0x%x" % o)
    A("s_mov_b32 s94, -1\ns_mov_b32 s95, -1\ns_waitcnt lgkmcnt(0)")
    for ln in (128, 256):
        for h, o in ((0, 0), (1, 0), (1, 4096), (0, 4096)):
            A("s_memtime s[90:91]\ns_waitcnt lgkmcnt(0)")
            A("s_load_dword s92, s[96:97], 0x%x\ns_waitcnt lgkmcnt(0)" % (h * 8192 + o + ln))
            A("s_memtime s[92:93]\ns_waitcnt lgkmcnt(0)\ns_sub_u32 s92, s92, s90\ns_min_u32 s%d, s%d, s92" % (94 + h, 94 + h))
    A("s_cmp_lt_u32 s95, s94\ns_cselect_b32 s%d, 1, 0" % res)

def next_slots(A):
    A("s_mov_b32 s%d, s%d\ns_mov_b32 s%d, s%d" % (S_CUR, S_NXT, S_NXT, S_RST))
    A("s_add_u32 s%d, s%d, %d\ns_cmp_eq_u32 s%d, %d\ns_cselect_b32 s%d, %d, s%d" % (S_RST, S_RST, SLOT, S_RST, EXCH + 4 * SLOT, S_RST, EXCH, S_RST))
    A("s_add_u32 s%d, s%d, 1" % (S_STEP, S_STEP))
    part_slots(A)

def part_slots(A):
    A("s_lshr_b32 s%d, s%d, 3\ns_lshl_b32 s%d, s%d, 22\ns_and_b32 s%d, s%d, 7\ns_lshl_b32 s%d, s%d, 18\ns_add_u32 s%d, s%d, s%d" % (S_PCUR, S_STEP, S_PCUR, S_PCUR, S_PRST, S_STEP, S_PRST, S_PRST, S_PCUR, S_PCUR, S_PRST))

def part_off(A, dst, sx):
    A("s_lshl_b32 s%d, s%d, 10" % (dst, sx))
    A("s_lshr_b32 s%d, s%d, 1\ns_lshl_b32 s%d, s%d, 14\ns_add_u32 s%d, s%d, s%d" % (S_T1, S_C, S_T1, S_T1, dst, dst, S_T1))
    A("s_and_b32 s%d, s%d, 1\ns_lshl_b32 s%d, s%d, 12\ns_add_u32 s%d, s%d, s%d\ns_add_u32 s%d, s%d, %d" % (S_T1, S_C, S_T1, S_T1, dst, dst, S_T1, dst, dst, PARTB))

def pk_add(A, d, a, b, n):
    if "nopk" in OPT:
        for i in range(n): A("v_add_f32 v%d, v%d, v%d" % (d + i, a + i, b + i))
        return
    for i in range(0, n, 2):
        A("v_pk_add_f32 %s, %s, %s" % (vr(d + i, 2), vr(a + i, 2), vr(b + i, 2)))

def emit_chain(A0, done, intra="", nstep=64, ready_wait=None, stamps=False, pfx="CH_", gate=False, abort=None, kv0=64, check_role=None, early=None, claim=None):
    A = Asm()
    _emit_chain(A, done, intra, nstep, ready_wait, stamps, gate, abort, kv0, check_role, early, claim)
    for l in A.lines: A0.lines.append(l.replace("CH_", pfx))

def _emit_chain(A, done, intra="", nstep=64, ready_wait=None, stamps=False, gate=False, abort=None, kv0=64, check_role=None, early=None, claim=None):
    ab = abort or done
    tails = []
    def flush():
        A.lines.extend(tails); del tails[:]
    def optn(k, dflt):
        for o in OPT:
            if o.startswith(k): return int(o[len(k):])
        return dflt
    FINE = "fine" in OPT
    def st(i):
        if stamps and not FINE: A("s_memrealtime s[%d:%d]" % (86 + 2 * i, 87 + 2 * i))
    def ft(i):
        if stamps and FINE: A("s_memtime s[%d:%d]" % (86 + 2 * i, 87 + 2 * i))
    ACCM = "acc" in OPT
    def cnt():
        if stamps: A("s_mov_b32 s100, s%d" % S_TO)
        if ACCM:
            A("s_memrealtime s[96:97]\ns_lshl_b32 s98, s%d, 5\ns_add_u32 s98, s98, s%d\ns_lshl_b32 s98, s98, 3\ns_add_u32 s98, s98, s%d\ns_lshl_b32 s98, s98, 6\ns_add_u32 s98, s98, s%d\ns_lshl_b32 s98, s98, 3\ns_add_u32 s98, s98, 0x6200000\ns_mov_b32 s99, s%d" % (S_X, S_C, S_WAVE, S_STEP, S_TO))
    def logit(va, vb):
        if ACCM:
            A("s_waitcnt lgkmcnt(0)\nv_mov_b32 v%d, s96\nv_mov_b32 v%d, s99\ns_mov_b64 exec, 1\nbuffer_store_dwordx2 v[%d:%d], off, s[8:11], s98\ns_mov_b64 exec, -1" % (va, vb, va, vb))
    def dump(tag):
        if not stamps: return
        A("s_cmp_lg_u32 s%d, %d\ns_cbranch_scc1 CH_ND%s" % (S_STEP, stamps, tag))
        A("s_waitcnt lgkmcnt(0)")
        A("s_lshl_b32 s%d, s%d, 3\ns_add_u32 s%d, s%d, s%d" % (S_T0, S_C, S_T0, S_T0, S_X))
        A("s_lshl_b32 s%d, s45, 3\ns_add_u32 s%d, s%d, s%d\ns_lshl_b32 s%d, s%d, 6\ns_add_u32 s%d, s%d, 0x6000000" % (S_T0, S_T0, S_T0, S_WAVE, S_T0, S_T0, S_T0, S_T0))
        A("s_mov_b64 exec, 1")
        for i in range(8):
            A("v_mov_b32 v5, s%d\nbuffer_store_dword v5, v2, s[8:11], s%d offen offset:%d" % (86 + 2 * i, S_T0, 4 * i))
        A("s_mov_b64 exec, -1")
        A.label("CH_ND" + tag)
    def backoff(k, dflt):
        n = dflt
        for o in OPT:
            if o.startswith("d" + k): n = int(o[2:])
        if n: A("s_sleep %d" % n)
    def kv_gate(name, soff, tgt=64):
        A("s_mov_b32 s%d, 0" % S_TO)
        A.label(name)
        A("buffer_load_dword v5, off, s[8:11], s%d sc1" % soff)
        A("s_add_u32 s%d, s%d, 1\ns_cmp_gt_u32 s%d, %d\ns_cbranch_scc1 %s" % (S_TO, S_TO, S_TO, TIMEOUT, ab))
        A("s_waitcnt vmcnt(0)\nv_cmp_eq_u32 vcc, %d, v5\ns_cbranch_vccnz %s_OK\ns_sleep 8\ns_branch %s" % (tgt, name, name))
        A.label(name + "_OK")
    def progress(f):
        A("s_lshl_b32 s%d, s%d, 7\ns_add_u32 s%d, s%d, %d" % (S_T0, S_X, S_T0, S_T0, FLAGS + f * 128))
        A("s_mov_b32 s21, 1\ns_atomic_add s21, s[%d:%d], s%d" % (ptr(12), ptr(12) + 1, S_T0))
    def sst():
        if "sst" in OPT:
            A("s_memrealtime s[96:97]\ns_lshl_b32 s98, s%d, 3\ns_add_u32 s98, s98, s%d\ns_lshl_b32 s98, s98, 2\ns_add_u32 s98, s98, 0x6300000\ns_waitcnt lgkmcnt(0)\nv_mov_b32 v5, s96\ns_mov_b64 exec, 1\nbuffer_store_dword v5, off, s[8:11], s98\ns_mov_b64 exec, -1" % (S_T2, S_WAVE))
    PF = "wpf" in OPT
    last = lambda: A("s_cmp_eq_u32 s%d, %d\ns_cbranch_scc1 %s" % (S_STEP, nstep - 1, done))
    A("v_lshrrev_b32 v1, 6, v0\nv_and_b32 v0, 63, v0\nv_readfirstlane_b32 s%d, v1" % S_WAVE)
    masks = lambda: A("s_mov_b32 s%d, 0x00ff00ff\ns_mov_b32 s%d, 0x00ff00ff" % (S_MLO, S_MLO + 1))
    A("s_mov_b32 s%d, 0\ns_mov_b32 s%d, 0x00ff00ff" % (S_MM, S_MM + 1))
    A("s_mov_b32 s%d, 0\ns_mov_b32 s%d, -1" % (S_G2, S_G2 + 1))
    A("s_mov_b32 s%d, %d" % (S_DUM, EXCH + 4 * SLOT))
    A("s_mov_b32 s%d, 0\ns_mov_b32 s%d, %d\ns_mov_b32 s%d, %d\ns_mov_b32 s%d, %d" % (S_STEP, S_CUR, EXCH, S_NXT, EXCH + SLOT, S_RST, EXCH + 2 * SLOT))
    part_slots(A)
    A("v_bfe_u32 v1, v0, 3, 1\nv_lshlrev_b32 v1, 9, v1\nv_lshrrev_b32 v2, 4, v0\nv_lshl_add_u32 v1, v2, 7, v1\nv_and_b32 v2, 7, v0\nv_lshl_add_u32 v1, v2, 4, v1")
    A("v_lshlrev_b32 v2, 4, v0")
    A("s_lshl_b32 s%d, s%d, 5\ns_add_u32 s%d, s%d, s%d\ns_xor_b32 s%d, s%d, 8" % (S_T2, S_X, S_T2, S_T2, S_C, S_T2, S_T2))
    A("s_cmp_ge_u32 s%d, 4\ns_cbranch_scc1 CH_WO" % S_WAVE)

    W = 64
    A("s_lshl_b32 s%d, s%d, 6" % (S_T3, S_T2))
    A("s_lshl_b32 s%d, s%d, 21\ns_add_u32 s%d, s%d, s%d" % (S_T0, S_WAVE, S_T3, S_T3, S_T0))
    A("s_xor_b32 s%d, s%d, 128" % (S_KOFF, S_T3))
    load_weights(A, W, 3, [(2, 0x800000, 8192, S_T3), (3, 0x800000, 8192, S_T3), (4, 0x800000, 8192, S_KOFF)], 4, pace=PF, sparse=True)
    masks_after = check_role(A, 0) if check_role else None
    masks()
    A("s_lshl_b32 s%d, s%d, 14\ns_lshl_b32 s%d, s%d, 12\ns_add_u32 s%d, s%d, s%d" % (S_T0, S_X, S_T1, S_WAVE, S_T0, S_T0, S_T1))
    A("v_add_u32 v3, s%d, v2" % S_T0)
    A("s_lshl_b32 s%d, s%d, 10\nv_add_u32 v4, s%d, v2" % (S_T0, S_WAVE, S_T0))
    A("v_lshrrev_b32 v6, 4, v0\nv_mul_u32_u24 v6, %d, v6\nv_bfe_u32 v7, v0, 2, 2\nv_lshl_add_u32 v6, v7, 5, v6\nv_and_b32 v7, 3, v0\nv_lshl_add_u32 v6, v7, 2, v6" % (4 * QK_ROW))
    A("s_mul_i32 s%d, s%d, %d\nv_add_u32 v6, s%d, v6" % (S_T0, S_WAVE, 16 * QK_ROW, S_T0))
    A("v_mov_b32 v7, 0xeeee\nv_mov_b32 v1, 0x4444\nv_cndmask_b32 v7, v7, v1, s[%d:%d]" % (S_MLO, S_MLO + 1))
    R, AQ, AK, AV = 8, 40, 48, 56
    for i in range(24): A("v_mov_b32 v%d, 0" % (AQ + i))
    sst()
    A("s_barrier")
    sm = lambda acc, u, mat, a: "v_smfmac_f32_16x16x64_bf16 %s, %s, %s, v7" % (vr(acc + 4 * a, 4), vr(R + 4 * u, 4), vr(W + 64 * mat + 16 * u + 8 * a, 8))
    A.label("CH_Q_LOOP")
    st(0)
    backoff("m", 0)
    q_blk = lambda u: [sm(AQ, u, 0, 0), sm(AK, u, 1, 0), sm(AQ, u, 0, 1), sm(AK, u, 1, 1)]
    seq_poll(A, "CH_QP", ab, 4,
             lambda u: "buffer_load_dwordx4 %s, v3, s[8:11], s%d offen offset:%d sc1" % (vr(R + 4 * u, 4), S_CUR, u * 1024),
             lambda u: range(R + 4 * u, R + 4 * u + 4), q_blk, 5, first=optn("fq", 4), back=optn("bq", 3), dbg=bool(stamps) and not FINE, tails=tails)
    st(1); cnt(); ft(0)
    for a in range(2):
        for r in range(4): A("v_permlane32_swap_b32 v%d, v%d" % (AQ + 4 * a + r, AK + 4 * a + r))
    for r in range(4):
        for a in range(2): A("v_add_f32 v%d, v%d, v%d" % (AQ + 4 * a + r, AQ + 4 * a + r, AK + 4 * a + r))
        A("ds_write2_b32 v6, v%d, v%d offset0:%d offset1:%d" % (AQ + r, AQ + 4 + r, r * QK_ROW // 4, r * QK_ROW // 4 + 4))
    st(2); ft(1)
    for a in range(2): A(sm(AV, 0, 2, a))
    A("s_waitcnt lgkmcnt(0)")
    ft(2)
    A("s_barrier")
    st(3); ft(3)
    for u in range(1, 4):
        for a in range(2): A(sm(AV, u, 2, a))
    for r in range(4): A("v_permlane32_swap_b32 v%d, v%d" % (AV + r, AV + 4 + r))
    for r in range(4): A("v_add_f32 v%d, v%d, v%d" % (AV + r, AV + r, AV + 4 + r))
    A("ds_write_b128 v4, %s offset:%d" % (vr(AV, 4), RED_V))
    A("s_waitcnt lgkmcnt(0)\ns_barrier")
    dump("Q"); logit(8, 9)
    last()
    for i in range(24): A("v_mov_b32 v%d, 0" % (AQ + i))
    next_slots(A)
    A("s_barrier\ns_barrier\ns_barrier")
    A("s_branch CH_Q_LOOP")
    flush()

    A.label("CH_WO")
    WO = 192
    if early: early(A)
    if claim: claim(A, 0, "CH_")
    if PF:
        A("s_sub_u32 s%d, s%d, 4\ns_lshl_b32 s%d, s%d, 2\ns_add_u32 s%d, s%d, s%d" % (S_T0, S_WAVE, S_T1, S_C, S_T0, S_T0, S_T1))
        A("s_lshl_b32 s%d, s%d, 16\ns_lshl_b32 s%d, s%d, 11\ns_add_u32 s%d, s%d, s%d" % (S_T3, S_T0, S_T1, S_X, S_T3, S_T3, S_T1))
        A("s_lshl_b32 s%d, s%d, 14\ns_lshl_b32 s%d, s%d, 21\ns_add_u32 s%d, s%d, s%d" % (S_KOFF, S_T0, S_T1, S_X, S_KOFF, S_KOFF, S_T1))
        def pull(pi, soff, rs, vb):
            mk_srd(A, S_W, ptr(pi), 0x800000)
            A("s_mov_b32 s%d, s%d" % (S_T1, soff))
            for r in range(8):
                for h in range(2): A("buffer_load_dwordx4 %s, v2, s[%d:%d], s%d offen offset:%d" % (vr(vb + 8 * r + 4 * h, 4), S_W, S_W + 3, S_T1, 1024 * h))
                A("s_add_u32 s%d, s%d, %d" % (S_T1, S_T1, rs))
        pull(2, S_T3, 8192, 64); pull(3, S_T3, 8192, 128)
        A("s_waitcnt vmcnt(16)\ns_barrier")
        pull(4, S_T3, 8192, 64)
        A("s_waitcnt vmcnt(16)\ns_barrier")
        pull(5, S_KOFF, 2048, 128)
        A("s_waitcnt vmcnt(16)\ns_barrier\ns_waitcnt vmcnt(0)")
    A("s_lshl_b32 s%d, s%d, 21\ns_sub_u32 s%d, s%d, 4\ns_lshl_b32 s%d, s%d, 19\ns_add_u32 s%d, s%d, s%d" % (S_T3, S_X, S_T0, S_WAVE, S_T0, S_T0, S_T3, S_T3, S_T0))
    A("s_lshl_b32 s%d, s%d, 6\ns_add_u32 s%d, s%d, s%d" % (S_T0, S_C, S_T3, S_T3, S_T0))
    load_weights(A, WO, 1, [(5, 0x800000, 2048, S_T3)], 4)
    if check_role: check_role(A, 4)
    masks()
    wo = lambda kk, a: vr(WO + kk * 8 + a * 4, 4)
    A("s_lshl_b32 s%d, s%d, 14\ns_sub_u32 s%d, s%d, 4\ns_lshl_b32 s%d, s%d, 12\ns_add_u32 s%d, s%d, s%d\ns_add_u32 s%d, s%d, %d" % (S_T0, S_X, S_T1, S_WAVE, S_T1, S_T1, S_T0, S_T0, S_T1, S_T0, S_T0, E_OX))
    A("v_add_u32 v3, s%d, v1" % S_T0)
    A("s_sub_u32 s%d, s%d, 4\ns_lshl_b32 s%d, s%d, 10\nv_add_u32 v4, s%d, v2" % (S_T0, S_WAVE, S_T0, S_T0, S_T0))
    A("v_lshrrev_b32 v6, 4, v0\nv_lshlrev_b32 v6, 7, v6\nv_and_b32 v7, 7, v0\nv_lshl_add_u32 v6, v7, 4, v6")
    A("v_lshrrev_b32 v7, 5, v0\nv_lshlrev_b32 v7, 8, v7\nv_and_b32 v8, 15, v0\nv_lshl_add_u32 v7, v8, 4, v7\nv_bfe_u32 v8, v0, 4, 1\nv_lshl_add_u32 v7, v8, 3, v7")
    A("s_xor_b32 s%d, s%d, 2\ns_lshl_b32 s%d, s%d, 9\nv_add_u32 v6, s%d, v6" % (S_T0, S_T2, S_T0, S_T0, S_T0))
    A("s_xor_b32 s%d, s%d, 8\ns_lshl_b32 s%d, s%d, 9\nv_add_u32 v7, s%d, v7" % (S_T0, S_T2, S_T0, S_T0, S_T0))
    part_off(A, S_T0, S_X)
    A("v_add_u32 v8, s%d, v2" % S_T0)
    A("s_mul_i32 s%d, s%d, 1280\ns_add_u32 s%d, s%d, %d\nv_add_u32 v9, s%d, v2" % (S_T0, S_T2, S_T0, S_T0, E_SX, S_T0))
    for i in range(4): A("v_mov_b32 v%d, -1" % (12 + i))
    def resets(soff, poff):
        A("buffer_store_dwordx4 v[12:15], v9, s[8:11], %s offen %s" % (soff, intra))
        if poff: A("buffer_store_dwordx4 v[12:15], v8, s[8:11], %s offen sc1" % poff)
        A("buffer_store_dwordx2 v[12:13], v7, s[8:11], %s offen offset:%d %s" % (soff, E_MEM, intra))
        A("s_add_u32 s%d, %s, %d" % (S_T0, soff, E_OX))
        A("buffer_store_dwordx2 v[12:13], v7, s[8:11], s%d offen %s" % (S_T0, intra))
        A("s_mov_b64 exec, 0xffff")
        A("buffer_store_dwordx4 v[12:15], v9, s[8:11], %s offen offset:1024 %s" % (soff, intra))
        A("s_mov_b64 exec, -1")
    R, RR, AO = 16, 32, 48
    def vm_setup():
        A("v_bfe_u32 v10, v0, 2, 2\nv_lshlrev_b32 v10, 3, v10\nv_and_b32 v11, 3, v0\nv_add_u32 v10, v10, v11")
        A("v_lshrrev_b32 v11, 4, v0\nv_lshlrev_b32 v11, 4, v11")
        A("s_lshl_b32 s%d, s%d, 16\ns_add_u32 s%d, s%d, %d" % (S_KMOFF, S_T2, S_KMOFF, S_KMOFF, KVM))
        A("v_and_b32 v60, 7, v0\nv_lshlrev_b32 v60, 4, v60\nv_lshl_add_u32 v60, v11, 3, v60")
        A("v_lshlrev_b32 v61, 4, v10\nv_bfe_u32 v62, v0, 4, 1\nv_lshl_add_u32 v61, v62, 3, v61")
    def vm_put(X, VM):
        A("s_not_b64 exec, s[%d:%d]" % (S_MLO, S_MLO + 1))
        A("ds_write_b128 v60, %s offset:%d" % (vr(X, 4), KVM_LDS))
        A("s_mov_b64 exec, s[%d:%d]" % (S_G2, S_G2 + 1))
        A("ds_write_b64 v61, %s offset:%d\nds_write_b64 v61, %s offset:%d" % (vr(VM, 2), KVM_LDS + 512, vr(VM + 2, 2), KVM_LDS + 576))
        A("s_mov_b64 exec, -1")
    def zero_ao():
        for i in range(8): A("v_mov_b32 v%d, 0" % (AO + i))
    def wo_phase(tag):
        if tag != "5": st(0)
        backoff("o", 2)
        def blk(u):
            L = ["v_mfma_f32_16x16x32_bf16 %s, %s, %s, %s" % (vr(AO, 4), wo(2 * u, 0), vr(R + 4 * u, 4), vr(AO, 4))]
            for i in range(4): L.append("v_mov_b32_dpp v%d, v%d row_ror:8 row_mask:0xf bank_mask:0xf" % (RR + i, R + 4 * u + i))
            L.append("v_mfma_f32_16x16x32_bf16 %s, %s, %s, %s" % (vr(AO + 4, 4), wo(2 * u + 1, 1), vr(R + 4 * u, 4), vr(AO + 4, 4)))
            L.append("v_mfma_f32_16x16x32_bf16 %s, %s, %s, %s" % (vr(AO, 4), wo(2 * u + 1, 0), vr(RR, 4), vr(AO, 4)))
            L.append("v_mfma_f32_16x16x32_bf16 %s, %s, %s, %s" % (vr(AO + 4, 4), wo(2 * u, 1), vr(RR, 4), vr(AO + 4, 4)))
            return L
        seq_poll(A, "CH_OP" + tag, ab, 4,
                 lambda u: "buffer_load_dwordx4 %s, v3, s[8:11], s%d offen offset:%d sc1" % (vr(R + 4 * u, 4), S_CUR, u * 1024),
                 lambda u: range(R + 4 * u, R + 4 * u + 4), blk, 5, first=optn("fo", 4), dbg=bool(stamps) and tag == "7" and not FINE, tails=tails)
        if tag != "5": st(1)
        if tag in "47": cnt()
        for i in range(4):
            A("v_cndmask_b32 v%d, v%d, v%d, s[%d:%d]" % (AO + i, AO + 4 + i, AO + i, S_MLO, S_MLO + 1))
        A("ds_write_b128 v4, %s offset:%d" % (vr(AO, 4), RED_O))
        if tag != "5": st(2)
        A("s_waitcnt lgkmcnt(0)\ns_barrier")
        if tag != "5": st(3)
    def red_o(me):
        o = [w for w in range(4) if w != me]
        for n, w in enumerate(o):
            A("ds_read_b128 %s, v2 offset:%d" % (vr(RR + 4 * n, 4), RED_O + w * 1024))
        A("s_waitcnt lgkmcnt(1)")
        pk_add(A, AO, AO, RR, 4)
        A("s_waitcnt lgkmcnt(0)")
        pk_add(A, RR + 4, RR + 4, RR + 8, 4)
        pk_add(A, AO, AO, RR + 4, 4)
    zero_ao()
    A("s_cmp_eq_u32 s%d, 4\ns_cbranch_scc1 CH_W4" % S_WAVE)
    A("s_cmp_eq_u32 s%d, 5\ns_cbranch_scc1 CH_W5" % S_WAVE)
    A("s_cmp_eq_u32 s%d, 6\ns_cbranch_scc1 CH_W6" % S_WAVE)

    WAH = optn("wa", 2)
    def warm_init(kind):
        o = {"k": 0, "v0": 1408, "v1": 2816}[kind]
        A("s_lshl_b32 s%d, s%d, 18\ns_add_u32 s%d, s%d, %d" % (S_T0, S_T2, S_T0, S_T0, KV + 4096 * WAH + o))
        A("s_add_u32 s%d, s%d, s%d\ns_addc_u32 s%d, s%d, 0" % (S_PB, ptr(12), S_T0, S_PB + 1, ptr(12) + 1))
    def warm(kind, half):
        if "nowarm" in OPT: return
        A("s_cmp_ge_u32 s%d, %d\ns_cbranch_scc1 CH_NW%s%d" % (S_STEP, nstep - WAH, kind, half))
        n = 10 if kind == "v1" else 11
        for r in range(half * n, half * n + n):
            A("s_load_dword s20, s[%d:%d], 0x%x" % (S_PB, S_PB + 1, r * 64))
        if half: A("s_add_u32 s%d, s%d, 4096\ns_addc_u32 s%d, s%d, 0" % (S_PB, S_PB, S_PB + 1, S_PB + 1))
        A.label("CH_NW%s%d" % (kind, half))
    warm_init("k")
    sst()
    A("s_barrier")
    A.label("CH_W7_LOOP")
    if "tl" in OPT:
        A("s_memrealtime s[96:97]\ns_lshl_b32 s98, s%d, 2\ns_add_u32 s98, s98, 0x8000\ns_waitcnt lgkmcnt(0)\nv_mov_b32 v10, s98\nv_mov_b32 v11, s96\nds_write_b32 v10, v11" % S_STEP)
        A("s_cmp_lg_u32 s%d, 63\ns_cbranch_scc1 CH_TLN" % S_STEP)
        A("v_lshlrev_b32 v10, 2, v0\ns_waitcnt lgkmcnt(0)\nds_read_b32 v11, v10 offset:0x8000\ns_lshl_b32 s98, s%d, 8\ns_add_u32 s98, s98, 0x6200000\ns_waitcnt lgkmcnt(0)" % S_T2)
        A("buffer_store_dword v11, v10, s[8:11], s98 offen")
        A.label("CH_TLN")
    if gate:
        A("s_add_u32 s%d, s%d, %d\ns_lshl_b32 s%d, s%d, 4\ns_and_b32 s%d, s%d, 0x380\ns_add_u32 s%d, s%d, %d" % (S_T0, S_STEP, WAH + 1, S_T0, S_T0, S_T0, S_T0, S_T0, S_T0, FLAGS + F_KV * 128))
        A("s_load_dword s31, s[%d:%d], s%d" % (ptr(12), ptr(12) + 1, S_T0))
    warm("k", 0)
    A("s_barrier")
    A("s_barrier")
    resets("s%d" % S_RST, None)
    last()
    warm("k", 1)
    A("s_barrier")
    wo_phase("7")
    if gate:
        A("s_add_u32 s%d, s%d, %d\ns_and_b32 s%d, s%d, 0x47\ns_cbranch_scc1 CH_W7_NG" % (S_T0, S_STEP, WAH + 1, S_T1, S_T0))
        A("s_cmp_eq_u32 s31, 64\ns_cbranch_scc1 CH_W7_NG")
        A("s_lshl_b32 s%d, s%d, 4\ns_add_u32 s%d, s%d, %d" % (S_T0, S_T0, S_T0, S_T0, FLAGS + F_KV * 128))
        kv_gate("CH_W7_G", S_T0)
        A.label("CH_W7_NG")

    dump("7"); logit(10, 11)
    zero_ao()
    next_slots(A)
    A("s_barrier")
    A("s_branch CH_W7_LOOP")
    flush()

    A.label("CH_W6")
    for t in range(1, 4):
        A("s_add_u32 s%d, s%d, %d\ns_and_b32 s%d, s%d, 3" % (S_T0, S_X, t, S_T0, S_T0))
        part_off(A, S_T0, S_T0)
        A("v_add_u32 v%d, s%d, v2" % (59 + t, S_T0))
    warm_init("v1")
    sst()
    A("s_barrier")
    A("v_mov_b32 v24, %d\nds_read_b32 v25, v24\ns_waitcnt lgkmcnt(0)" % PSEL_LDS)
    for t in range(3): A("v_add_u32 v%d, v%d, v25" % (60 + t, 60 + t))
    A.label("CH_W6_LOOP")
    warm("v1", 0)
    A("s_barrier\ns_barrier")
    last()
    warm("v1", 1)
    A("s_barrier")
    wo_phase("6")
    red_o(2)
    backoff("p", 10)
    st(4)
    A("s_mov_b32 s%d, 0" % S_TO)
    A.label("CH_PP")
    for u in range(3): A("buffer_load_dwordx4 %s, v%d, s[8:11], s%d offen sc1" % (vr(R + 4 * u, 4), 60 + u, S_PCUR))
    A("s_waitcnt vmcnt(2)")
    pk_add(A, RR + 4, AO, R, 4)
    A("s_waitcnt vmcnt(1)")
    pk_add(A, RR + 4, RR + 4, R + 4, 4)
    A("s_waitcnt vmcnt(0)")
    pk_add(A, RR + 4, RR + 4, R + 8, 4)
    A("v_pk_add_f32 %s, %s, %s" % (vr(RR + 2, 2), vr(RR + 4, 2), vr(RR + 6, 2)))
    A("v_cvt_pk_bf16_f32 v%d, v%d, v%d" % (RR, RR + 4, RR + 5))
    A("v_cmp_u_f32 vcc, v%d, v%d" % (RR + 2, RR + 3))
    A("v_cvt_pk_bf16_f32 v%d, v%d, v%d" % (RR + 1, RR + 6, RR + 7))
    A("s_cbranch_vccnz CH_PP_X")
    T = Asm(); A0 = A.lines; A.lines = T.lines
    A.label("CH_PP_X")
    A("s_add_u32 s%d, s%d, 1\ns_and_b32 s%d, s%d, 15\ns_cbranch_scc1 CH_PP" % (S_TO, S_TO, S_T0, S_TO))
    A("s_cmp_gt_u32 s%d, %d\ns_cbranch_scc1 %s" % (S_TO, TIMEOUT, ab))
    check(A, range(R, R + 12), 5, "CH_PP")
    A("s_branch CH_PP_OK")
    tails.extend(T.lines); A.lines = A0
    A.label("CH_PP_OK")
    st(5); cnt()
    A("v_min_u32 v%d, -2, v%d\nv_min_u32 v%d, -2, v%d" % (RR, RR, RR + 1, RR + 1))
    A("buffer_store_dwordx2 %s, v7, s[8:11], s%d offen offset:%d %s" % (vr(RR, 2), S_NXT, E_MEM, intra))
    A("s_barrier")
    st(6)
    dump("6"); logit(10, 11)
    zero_ao()
    next_slots(A)
    A("s_branch CH_W6_LOOP")
    flush()

    A.label("CH_W4")
    for sl in range(4):
        A("s_mov_b32 s%d, %d" % (S_T1, EXCH + sl * SLOT))
        resets("s%d" % S_T1, None)
    mk_srd(A, S_W, ptr(1), 16384)
    A("v_and_b32 v10, 7, v0\nv_lshlrev_b32 v10, 11, v10\nv_lshrrev_b32 v11, 4, v0\nv_lshl_add_u32 v10, v11, 4, v10\nv_bfe_u32 v11, v0, 3, 1\nv_lshl_add_u32 v10, v11, 3, v10")
    A("s_lshl_b32 s%d, s%d, 6" % (S_T0, S_C))
    A("buffer_load_dwordx2 v[16:17], v10, s[%d:%d], s%d offen" % (S_W, S_W + 3, S_T0))
    A("s_waitcnt vmcnt(0)")
    if ready_wait: ready_wait(A)
    A("v_mov_b32 v24, %d\nds_write_b32 v24, v25\nv_xor_b32 v26, 0x2000, v25\nv_add_u32 v56, v8, v26\nv_add_u32 v8, v8, v25\ns_waitcnt lgkmcnt(0)" % PSEL_LDS)
    for i in range(2): A("v_min_u32 v%d, -2, v%d" % (16 + i, 16 + i))
    A("buffer_store_dwordx2 v[16:17], v7, s[8:11], s%d offen offset:%d %s" % (S_CUR, E_MEM, intra))
    vm_setup()
    A("s_setprio 2")
    warm_init("v0")
    sst()
    A("s_barrier")
    A.label("CH_W4_LOOP")
    if gate:
        A("s_cmp_eq_u32 s%d, 0\ns_cbranch_scc1 CH_W4_NV\ns_waitcnt vmcnt(0)" % S_STEP)
        progress(F_CP)
        A.label("CH_W4_NV")
    warm("v0", 0)
    A("s_barrier\ns_barrier")
    last()
    warm("v0", 1)
    A("s_barrier")
    A("ds_read_b128 v[64:67], v2 offset:%d" % KVM_LDS)
    wo_phase("4")
    red_o(0)
    A("buffer_store_dwordx4 %s, v56, s[8:11], s%d offen sc1" % (vr(AO, 4), S_PCUR))
    A("buffer_store_dwordx4 %s, v8, s[8:11], s%d offen sc1" % (vr(AO, 4), S_PCUR))
    A("buffer_store_dwordx4 v[64:67], v2, s[8:11], s%d offen sc1\ns_add_u32 s%d, s%d, 1024" % (S_KMOFF, S_KMOFF, S_KMOFF))
    st(4)
    dump("4"); logit(10, 11)
    next_slots(A)
    zero_ao()
    A("s_barrier")
    A("s_branch CH_W4_LOOP")
    flush()

    A.label("CH_W5")
    KT, VT, X, T01, TM, T1, VM, P, PM, ONE, LA, OA, OS, TMP = 64, 72, 80, 84, 88, 92, 96, 100, 104, 108, 112, 136, 144, 148
    RB = 152
    Z = RB + 8; ZM = Z + 4
    vm_setup()
    A("v_lshlrev_b32 v56, 5, v11\nv_lshl_add_u32 v56, v10, 4, v56")
    A("s_lshl_b32 s%d, s%d, 18\ns_add_u32 s%d, s%d, %d" % (S_KOFF, S_T2, S_KOFF, S_KOFF, KV))
    A("v_bfe_u32 v62, v0, 4, 1\nv_lshlrev_b32 v62, 7, v62\nv_and_b32 v63, 7, v0\nv_lshl_add_u32 v62, v63, 4, v62\nv_add_u32 v62, 0x400, v62")
    A("s_mul_i32 s%d, s%d, 1280\ns_add_u32 s%d, s%d, %d\nv_add_u32 v63, s%d, v62" % (S_T0, S_T2, S_T0, S_T0, E_SX, S_T0))
    for t in range(1, 4):
        A("s_add_u32 s%d, s%d, %d\ns_and_b32 s%d, s%d, 3\ns_and_b32 s%d, s%d, 0xfc\ns_add_u32 s%d, s%d, s%d\ns_mul_i32 s%d, s%d, 1280\ns_add_u32 s%d, s%d, %d" % (S_T0, S_T2, t, S_T0, S_T0, S_T1, S_T2, S_T0, S_T0, S_T1, S_T0, S_T0, S_T0, S_T0, E_SX))
        A("v_add_u32 v%d, s%d, v2\nv_add_u32 v%d, s%d, v62" % (183 + t, S_T0, 186 + t, S_T0))
    A("s_mov_b32 s%d, 0x%x" % (S_SC, f32bits(128 ** -0.5 * math.log2(math.e))))
    for i in range(4): A("v_mov_b32 v%d, 0x3f803f80" % (ONE + i))
    for i in range(2): A("v_mov_b32 v%d, 0" % (PM + i))
    for i in range(24): A("v_mov_b32 v%d, 0" % (LA + i))
    def prefetch():
        for i in range(4):
            A("buffer_load_dwordx4 %s, v56, s[8:11], s%d offen offset:%d sc1" % (vr(KT + 4 * i, 4), S_KOFF, (i >> 1) * 2048 + (i & 1) * 64))
        A("s_add_u32 s%d, s%d, 4096" % (S_KOFF, S_KOFF))
    A("v_and_b32 v57, 15, v0\nv_mul_u32_u24 v57, %d, v57\nv_lshl_add_u32 v57, v11, 1, v57" % QK_ROW)
    A("v_and_b32 v58, 0x1f0, v2\nv_or_b32 v59, 0x200, v58")
    def red8(base, dst):
        for w in range(4):
            for a in range(2):
                if base == RED_QK: A("ds_read_b128 %s, v57 offset:%d" % (vr(RB + w * 8 + a * 4, 4), base + w * 16 * QK_ROW + a * 16))
                else: A("ds_read_b128 %s, v%d offset:%d" % (vr(RB + w * 8 + a * 4, 4), 58 + a, base + w * 1024))
    def sum8(dst):
        A("s_waitcnt lgkmcnt(4)")
        pk_add(A, RB, RB, RB + 8, 8)
        A("s_waitcnt lgkmcnt(2)")
        pk_add(A, RB, RB, RB + 16, 8)
        A("s_waitcnt lgkmcnt(0)")
        pk_add(A, RB, RB, RB + 24, 8)
        for i in range(4): A("v_cvt_pk_bf16_f32 v%d, v%d, v%d" % (dst + i, RB + 2 * i, RB + 2 * i + 1))
    if gate:
        A("s_mov_b32 s%d, %d" % (S_T0, FLAGS + F_KV * 128))
        kv_gate("CH_W5_G", S_T0, kv0)
    prefetch()
    A("s_setprio 2")
    sst()
    A("s_barrier")
    A("s_waitcnt vmcnt(0)")
    A.label("CH_W5_LOOP")
    A("s_barrier")
    st(0)
    ft(0)
    red8(RED_QK, X); ft(1); sum8(X); ft(2)
    A("v_mfma_f32_16x16x32_bf16 %s, %s, %s, 0" % (vr(T01, 4), vr(KT, 4), vr(X, 4)))
    A("v_mfma_f32_16x16x32_bf16 %s, %s, %s, 0" % (vr(T1, 4), vr(KT + 4, 4), vr(X, 4)))
    A("v_mfma_f32_16x16x32_bf16 %s, %s, %s, 0" % (vr(TM, 4), vr(X, 4), vr(X, 4)))
    A("s_mov_b64 exec, s[%d:%d]" % (S_MLO, S_MLO + 1))
    A("buffer_store_dwordx4 %s, v9, s[8:11], s%d offen %s" % (vr(T01, 4), S_CUR, intra))
    A("buffer_store_dwordx4 %s, v9, s[8:11], s%d offen offset:128 %s" % (vr(T1, 4), S_CUR, intra))
    A("s_mov_b64 exec, s[%d:%d]" % (S_MM, S_MM + 1))
    A("buffer_store_dwordx4 %s, v63, s[8:11], s%d offen %s" % (vr(TM, 4), S_CUR, intra))
    A("s_mov_b64 exec, -1")
    st(1); ft(3)
    def sx_issue():
        for t in range(3): A("buffer_load_dwordx4 %s, v%d, s[8:11], s%d offen sc1" % (vr(LA + 8 * t, 4), 184 + t, S_CUR))
        A("s_mov_b64 exec, s[%d:%d]" % (S_MM, S_MM + 1))
        for t in range(3): A("buffer_load_dwordx4 %s, v%d, s[8:11], s%d offen sc1" % (vr(LA + 8 * t + 4, 4), 187 + t, S_CUR))
        A("s_mov_b64 exec, -1")
    for i in range(4): A("v_mov_b32_dpp v%d, v%d row_ror:8 row_mask:0xf bank_mask:0xc" % (T01 + i, T1 + i))
    for i in range(4): A("v_cndmask_b32 v%d, 0, v%d, s[%d:%d]" % (TM + i, TM + i, S_MM, S_MM + 1))
    backoff("s", 3)
    sx_issue()
    A("s_barrier")
    red8(RED_V, VM)
    sum8(VM)
    vm_put(X, VM)
    A("s_mov_b32 s%d, 0" % S_TO)
    A("s_cmp_eq_u32 s%d, %d\ns_cbranch_scc1 CH_W5_END" % (S_STEP, nstep - 1))
    T = Asm(); A0 = A.lines; A.lines = T.lines
    A.label("CH_W5_END")
    A("s_waitcnt lgkmcnt(0)\nds_read_b128 %s, v2 offset:%d\ns_add_u32 s%d, s%d, %d\ns_waitcnt lgkmcnt(0)" % (vr(RB, 4), KVM_LDS, S_KMOFF, S_KMOFF, (nstep - 1) * 1024))
    A("buffer_store_dwordx4 %s, v2, s[8:11], s%d offen sc1" % (vr(RB, 4), S_KMOFF))
    A("s_waitcnt vmcnt(0)")
    if gate: progress(F_CPL)
    A("s_branch %s" % done)
    A.label("CH_SP_X")
    A("s_add_u32 s%d, s%d, 1\ns_and_b32 s%d, s%d, 15\ns_cbranch_scc1 CH_SP" % (S_TO, S_TO, S_T0, S_TO))
    A("s_cmp_gt_u32 s%d, %d\ns_cbranch_scc1 %s" % (S_TO, TIMEOUT, ab))
    check(A, range(LA, LA + 24), 5, "CH_SP")
    A("s_branch CH_SP_OK")
    A.label("CH_SP")
    sx_issue()
    A("s_branch CH_SP_W")
    tails.extend(T.lines); A.lines = A0
    A.label("CH_SP_W")
    A("s_waitcnt vmcnt(4)")
    pk_add(A, Z, T01, LA, 4)
    pk_add(A, Z, Z, LA + 8, 4)
    A("s_waitcnt vmcnt(2)")
    pk_add(A, Z, Z, LA + 16, 4)
    pk_add(A, Z + 4, TM, LA + 4, 4)
    A("s_waitcnt vmcnt(0)")
    pk_add(A, RB, LA + 12, LA + 20, 4)
    A("v_pk_add_f32 %s, %s, %s" % (vr(RB + 4, 2), vr(Z, 2), vr(Z + 2, 2)))
    pk_add(A, Z + 4, Z + 4, RB, 4)
    A("v_max3_f32 v%d, v%d, v%d, v%d" % (TMP, Z, Z + 1, Z + 2))
    A("v_pk_add_f32 %s, %s, %s" % (vr(RB + 4, 2), vr(RB + 4, 2), vr(Z + 4, 2)))
    A("v_max_f32 v%d, v%d, v%d" % (TMP, TMP, Z + 3))
    A("v_pk_add_f32 %s, %s, %s" % (vr(RB + 4, 2), vr(RB + 4, 2), vr(Z + 6, 2)))
    A("s_mov_b64 exec, s[%d:%d]" % (S_MM, S_MM + 1))
    A("v_max3_f32 v%d, v%d, v%d, v%d\nv_max3_f32 v%d, v%d, v%d, v%d" % (TMP, TMP, Z + 4, Z + 5, TMP, TMP, Z + 6, Z + 7))
    A("s_mov_b64 exec, -1")
    A("v_cmp_u_f32 vcc, v%d, v%d" % (RB + 4, RB + 5))
    A("v_max_f32_dpp v%d, v%d, v%d row_ror:8 row_mask:0xf bank_mask:0xf" % (TMP, TMP, TMP))
    A("s_cbranch_vccnz CH_SP_X")
    A.label("CH_SP_OK")
    ft(4)
    st(4); cnt()
    A("v_mov_b32 v%d, v%d\nv_permlane16_swap_b32 v%d, v%d\nv_max_f32 v%d, v%d, v%d" % (TMP + 1, TMP, TMP, TMP + 1, TMP, TMP, TMP + 1))
    A("v_mov_b32 v%d, v%d\nv_permlane32_swap_b32 v%d, v%d\nv_max_f32 v%d, v%d, v%d" % (TMP + 1, TMP, TMP, TMP + 1, TMP, TMP, TMP + 1))
    A("v_mul_f32 v%d, s%d, v%d" % (TMP, S_SC, TMP))
    for i in range(4): A("v_fma_f32 v%d, v%d, s%d, -v%d" % (ZM + i, ZM + i, S_SC, TMP))
    for i in range(4): A("v_fma_f32 v%d, v%d, s%d, -v%d" % (Z + i, Z + i, S_SC, TMP))
    for i in range(4): A("v_exp_f32 v%d, v%d" % (ZM + i, ZM + i))
    for i in range(2): A("v_exp_f32 v%d, v%d" % (Z + i, Z + i))
    A("s_mov_b64 exec, s[%d:%d]" % (S_MM, S_MM + 1))
    A("v_cvt_pk_bf16_f32 v%d, v%d, v%d\nv_cvt_pk_bf16_f32 v%d, v%d, v%d" % (PM, ZM, ZM + 1, PM + 1, ZM + 2, ZM + 3))
    A("s_mov_b64 exec, -1")
    for i in range(2, 4): A("v_exp_f32 v%d, v%d" % (Z + i, Z + i))
    A("v_mfma_f32_16x16x16_bf16 %s, %s, %s, 0" % (vr(OS, 4), vr(ONE, 2), vr(PM, 2)))
    A("v_cvt_pk_bf16_f32 v%d, v%d, v%d\nv_cvt_pk_bf16_f32 v%d, v%d, v%d" % (P, Z, Z + 1, P + 1, Z + 2, Z + 3))
    A("v_mfma_f32_16x16x16_bf16 %s, %s, %s, 0" % (vr(OA, 4), vr(VM, 2), vr(PM, 2)))
    A("v_mfma_f32_16x16x16_bf16 %s, %s, %s, 0" % (vr(OA + 4, 4), vr(VM + 2, 2), vr(PM, 2)))
    A("v_mov_b32_dpp v%d, v%d row_ror:8 row_mask:0xf bank_mask:0xf\nv_mov_b32_dpp v%d, v%d row_ror:8 row_mask:0xf bank_mask:0xf" % (P + 2, P, P + 3, P + 1))
    A("v_mfma_f32_16x16x32_bf16 %s, %s, %s, %s" % (vr(OS, 4), vr(ONE, 4), vr(P, 4), vr(OS, 4)))
    A("v_mfma_f32_16x16x32_bf16 %s, %s, %s, %s" % (vr(OA, 4), vr(VT, 4), vr(P, 4), vr(OA, 4)))
    A("v_mfma_f32_16x16x32_bf16 %s, %s, %s, %s" % (vr(OA + 4, 4), vr(VT + 4, 4), vr(P, 4), vr(OA + 4, 4)))
    ft(5)
    A("s_add_u32 s%d, s%d, %d" % (S_T0, S_CUR, E_OX))
    A("v_rcp_f32 v%d, v%d" % (TMP, OS))
    for i in range(0, 8, 2): A("v_pk_mul_f32 %s, %s, %s op_sel_hi:[1,0]" % (vr(OA + i, 2), vr(OA + i, 2), vr(TMP, 2)))
    for i in range(4): A("v_cvt_pk_bf16_f32 v%d, v%d, v%d" % (T1 + i, OA + 2 * i, OA + 2 * i + 1))
    for i in range(4): A("v_min_u32 v%d, -2, v%d" % (T1 + i, T1 + i))
    A("s_mov_b64 exec, s[%d:%d]" % (S_MLO, S_MLO + 1))
    A("buffer_store_dwordx4 %s, v6, s[8:11], s%d offen %s" % (vr(T1, 4), S_T0, intra))
    A("s_mov_b64 exec, -1")
    st(5); ft(6)
    A("s_waitcnt lgkmcnt(0)\ns_barrier")
    wo_phase("5")
    st(6)
    if "nopf" not in OPT: prefetch()
    if stamps:
        st(2); A("s_waitcnt vmcnt(0)"); st(3)
    dump("5"); logit(10, 11)
    zero_ao()
    next_slots(A)
    A("s_barrier")
    A("s_waitcnt vmcnt(0)")
    A("s_branch CH_W5_LOOP")
    flush()
```

```python
from asmlib import *

G_SA, G_SW, G_SC = 12, 16, 20
G_AOFF, G_WOFF = 24, 25
G_COFF, G_LR, G_RS, G_CS = 26, 27, 28, 29
G_LDA, G_LDW = 30, 31
G_ASTEP = 30
G_WAVE = 34
G_T0, G_T1, G_RA, G_RW, G_WA, G_WW, G_CNT, G_WSTEP, G_MA, G_MW = 45, 46, 47, 48, 49, 50, 51, 52, 53, 54
TN, BK = 128, 64
W_SLOT = BK * TN * 2

class Gemm:
    def __init__(self, A, MT=4, NSL=3, aflag="sc1"):
        self.A = A; self.MT = MT; self.NSL = NSL; self.aflag = aflag
        self.A_SLOT = 64 * MT * BK * 2
        self.W_BASE = NSL * self.A_SLOT
        self.LDS = NSL * (self.A_SLOT + W_SLOT)
        self.ND = MT + 2
        self.NS = 2 * MT
        self.ACC = 64; self.F = [128, 160]
        self.VA, self.VW, self.BA, self.BW, self.CA, self.CW, self.T = 2, 6, 8, 10, 14, 16, 20
        self.VWK = 24
        self.VE = 26

    def setup_static(self):
        A, T, MT = self.A, self.T, self.MT
        A("s_and_b32 s%d, s%d, 1\ns_lshl_b32 s%d, s%d, 2" % (G_T0, G_WAVE, G_T0, G_T0))
        A("v_lshrrev_b32 v%d, 4, v0\nv_or_b32 v%d, s%d, v%d" % (T, T + 1, G_T0, T))
        A("v_bfe_u32 v%d, v0, 1, 3\nv_xor_b32 v%d, v%d, v%d" % (T + 2, T + 2, T + 2, T + 1))
        A("v_and_b32 v%d, 1, v0\nv_lshl_or_b32 v%d, v%d, 1, v%d\nv_lshlrev_b32 v%d, 4, v%d" % (T + 3, T + 2, T + 2, T + 3, self.VWK + 1, T + 2))
        A("s_lshl_b32 s%d, s%d, 3\nv_add_u32 v%d, s%d, v%d" % (G_T0, G_WAVE, self.VWK, G_T0, T))
        A("s_mul_i32 s%d, s%d, %d" % (G_MA, G_WAVE, 1024 * MT))
        A("s_lshl_b32 s%d, s%d, 11\ns_add_u32 s%d, s%d, %d" % (G_MW, G_WAVE, G_MW, G_MW, self.W_BASE))
        BA, BW = self.BA, self.BW
        A("v_and_b32 v%d, 15, v0\nv_lshrrev_b32 v%d, 4, v0" % (T, T + 1))
        A("v_bfe_u32 v%d, v0, 1, 3\nv_xor_b32 v%d, v%d, v%d" % (T + 2, T + 2, T + 2, T + 1))
        A("v_lshlrev_b32 v%d, 7, v%d\nv_lshl_add_u32 v%d, v%d, 4, v%d" % (T, T, BA, T + 2, T))
        A("s_lshr_b32 s%d, s%d, 1\ns_mul_i32 s%d, s%d, %d" % (G_T0, G_WAVE, G_T0, G_T0, 2048 * MT))
        A("v_add_u32 v%d, s%d, v%d\nv_xor_b32 v%d, 64, v%d" % (BA, G_T0, BA, BA + 1, BA))
        A("v_bfe_u32 v%d, v0, 2, 2" % T)
        A("v_lshl_add_u32 v%d, v%d, 3, v%d\nv_lshlrev_b32 v%d, 8, v%d" % (T + 2, T + 1, T, T + 2, T + 2))
        A("v_and_b32 v%d, 3, v0\nv_lshl_add_u32 v%d, v%d, 3, v%d" % (T + 3, T + 2, T + 3, T + 2))
        A("v_add_u32 v%d, %d, v%d" % (T + 2, self.W_BASE, T + 2))
        A("v_bfe_u32 v%d, v0, 4, 1\nv_lshl_or_b32 v%d, v%d, 2, v%d" % (T + 3, T, T + 3, T))
        A("s_and_b32 s%d, s%d, 1\ns_lshl_b32 s%d, s%d, 2" % (G_T0, G_WAVE, G_T0, G_T0))
        for t in range(4):
            A("s_or_b32 s%d, s%d, %d" % (G_T1, G_T0, t))
            A("v_xor_b32 v%d, s%d, v%d\nv_lshl_add_u32 v%d, v%d, 5, v%d" % (T + 3, G_T1, T, BW + t, T + 3, T + 2))
        VE = self.VE
        A("v_and_b32 v%d, 15, v0\nv_bfe_u32 v%d, v0, 4, 1\nv_lshrrev_b32 v%d, 5, v0" % (VE, VE + 1, T))
        A("v_lshl_add_u32 v%d, v%d, 1, v%d" % (VE + 1, VE + 1, T))

    def setup_lda(self):
        A, T, MT = self.A, self.T, self.MT
        A("v_lshrrev_b32 v%d, 3, v0" % T)
        A("s_mul_i32 s%d, s%d, %d\nv_add_u32 v%d, s%d, v%d" % (G_T0, G_WAVE, 8 * MT, T, G_T0, T))
        for j in range(MT):
            A("v_add_u32 v%d, %d, v%d" % (T + 1, 8 * j, T))
            A("v_bfe_u32 v%d, v%d, 1, 3" % (T + 2, T + 1))
            A("v_and_b32 v%d, 7, v0\nv_xor_b32 v%d, v%d, v%d" % (T + 3, T + 2, T + 2, T + 3))
            A("v_mul_lo_u32 v%d, v%d, s%d" % (T + 1, T + 1, G_LDA))
            A("v_lshl_add_u32 v%d, v%d, 4, v%d" % (self.VA + j, T + 2, T + 1))
            if j: A("v_subrev_u32 v%d, %d, v%d" % (self.VA + j, 1024 * j, self.VA + j))
        A("s_mov_b32 s%d, 128" % G_ASTEP)

    def setup_tiled_a(self):
        A, T = self.A, self.T
        A("v_and_b32 v%d, 15, v0\nv_lshrrev_b32 v%d, 4, v0\nv_lshlrev_b32 v%d, 9, v%d\nv_lshl_add_u32 v%d, v%d, 4, v%d" % (T, T + 1, T + 1, T + 1, T, T, T + 1))
        if self.MT == 4:
            A("s_lshl_b32 s%d, s%d, 18\nv_add_u32 v%d, s%d, v%d" % (G_T0, G_WAVE, T, G_T0, T))
            for j in range(4):
                A("v_add_u32 v%d, %d, v%d" % (self.VA + j, 4096 + (j & 1) * 2048 + (j >> 1) * 256 - 1024 * j, T))
        else:
            A("s_lshr_b32 s%d, s%d, 2\ns_lshl_b32 s%d, s%d, 18\ns_and_b32 s%d, s%d, 1\ns_lshl_b32 s%d, s%d, 11\ns_add_u32 s%d, s%d, s%d" % (G_T0, G_WAVE, G_T0, G_T0, G_T1, G_WAVE, G_T1, G_T1, G_T0, G_T0, G_T1))
            A("s_and_b32 s%d, s%d, 2\ns_lshl_b32 s%d, s%d, 7\ns_add_u32 s%d, s%d, s%d\ns_add_u32 s%d, s%d, 4096\nv_add_u32 v%d, s%d, v%d" % (G_T1, G_WAVE, G_T1, G_T1, G_T0, G_T0, G_T1, G_T0, G_T0, self.VA, G_T0, T))
        A("s_lshr_b32 s%d, s%d, 1\ns_mul_i32 s%d, s%d, %d\nv_lshlrev_b32 v%d, 4, v0\nv_add_u32 v%d, s%d, v%d\nv_add_u32 v%d, 0x400, v%d" % (G_T0, G_WAVE, G_T0, G_T0, 2048 * self.MT, self.BA, self.BA, G_T0, self.BA, self.BA + 1, self.BA))
        A("s_mov_b32 s%d, 4096" % G_ASTEP)

    def setup_ldw(self):
        A, VW = self.A, self.VW
        A("v_mul_lo_u32 v%d, v%d, s%d" % (VW, self.VWK, G_LDW))
        A("s_lshl_b32 s%d, s%d, 2\ns_sub_u32 s%d, s%d, 1024\ns_lshl_b32 s%d, s%d, 6" % (G_T0, G_LDW, G_T0, G_T0, G_WSTEP, G_LDW))
        A("v_add_u32 v%d, v%d, v%d\nv_add_u32 v%d, s%d, v%d" % (VW, VW, self.VWK + 1, VW + 1, G_T0, VW))

    def dma(self):
        A = self.A
        A("s_add_u32 m0, s%d, s%d" % (G_MA, G_WA))
        for j in range(self.MT):
            A("buffer_load_dwordx4 v%d, s[%d:%d], s%d offen offset:%d %s lds" % (self.VA + j, G_SA, G_SA + 3, G_AOFF, 1024 * j, self.aflag))
        A("s_add_u32 m0, s%d, s%d" % (G_MW, G_WW))
        for j in range(2):
            A("buffer_load_dwordx4 v%d, s[%d:%d], s%d offen offset:%d lds" % (self.VW + j, G_SW, G_SW + 3, G_WOFF, 1024 * j))
        A("s_add_u32 s%d, s%d, s%d\ns_add_u32 s%d, s%d, s%d" % (G_AOFF, G_AOFF, G_ASTEP, G_WOFF, G_WOFF, G_WSTEP))
        A("s_add_u32 s%d, s%d, %d\ns_add_u32 s%d, s%d, %d" % (G_WA, G_WA, self.A_SLOT, G_WW, G_WW, W_SLOT))
        A("s_cmp_eq_u32 s%d, %d\ns_cselect_b32 s%d, 0, s%d\ns_cselect_b32 s%d, 0, s%d" % (G_WA, self.NSL * self.A_SLOT, G_WA, G_WA, G_WW, G_WW))

    def set_addr(self):
        A = self.A
        for i in range(2): A("v_add_u32 v%d, s%d, v%d" % (self.CA + i, G_RA, self.BA + i))
        for t in range(4): A("v_add_u32 v%d, s%d, v%d" % (self.CW + t, G_RW, self.BW + t))
        A("s_add_u32 s%d, s%d, %d\ns_add_u32 s%d, s%d, %d" % (G_RA, G_RA, self.A_SLOT, G_RW, G_RW, W_SLOT))
        A("s_cmp_eq_u32 s%d, %d\ns_cselect_b32 s%d, 0, s%d\ns_cselect_b32 s%d, 0, s%d" % (G_RA, self.NSL * self.A_SLOT, G_RA, G_RA, G_RW, G_RW))

    def reads(self, f, ks):
        L = []; F = self.F
        for m in range(4):
            if m < self.MT: L.append("ds_read_b128 %s, v%d offset:%d" % (vr(F[f] + 4 * m, 4), self.CA + ks, 2048 * m))
            for hf in range(2):
                L.append("ds_read_b64_tr_b16 %s, v%d offset:%d" % (vr(F[f] + 16 + 4 * m + 2 * hf, 2), self.CW + m, (32 * ks + 4 * hf) * 256))
        return L

    def mfmas(self, f, mode, zero=False):
        L = []; F = self.F
        for m in range(self.MT):
            for n in range(4):
                a, b = vr(F[f] + 4 * m, 4), vr(F[f] + 16 + 4 * n, 4)
                acc = vr(self.ACC + 16 * m + 4 * n, 4)
                if mode == "row": a, b = b, a
                L.append("v_mfma_f32_16x16x32_bf16 %s, %s, %s, %s" % (acc, a, b, "0" if zero else acc))
        return L

    def inter(self, ms, others):
        A = self.A; o = list(others)
        per = max(1, -(-len(o) // max(1, len(ms))))
        for m in ms:
            A(m)
            for k in range(per):
                if o: A(o.pop(0))
        for x in o: A(x)

    def cold(self, full_wait=True, before_wait=None, after_barrier=None):
        A = self.A
        A("s_mov_b32 s%d, 0\ns_mov_b32 s%d, 0\ns_mov_b32 s%d, 0\ns_mov_b32 s%d, 0" % (G_WA, G_WW, G_RA, G_RW))
        for i in range(self.NSL): self.dma()
        if before_wait: before_wait()
        A("s_waitcnt vmcnt(%d)\ns_barrier" % (0 if full_wait else (self.NSL - 1) * self.ND))
        if after_barrier: after_barrier()
        self.set_addr()
        for r in self.reads(0, 0): A(r)

    def step(self, mode, do_dma, vm, more=True, zero=False, after_barrier=None, pre_wait=None):
        A = self.A
        A("s_waitcnt lgkmcnt(0)")
        self.inter(self.mfmas(0, mode, zero), self.reads(1, 1))
        if more:
            if pre_wait: pre_wait()
            A("s_waitcnt vmcnt(%d) lgkmcnt(0)\ns_barrier" % vm)
            self.set_addr()
            ms = self.mfmas(1, mode)
            k = len(ms) * 3 // 4
            self.inter(ms[:k], self.reads(0, 0))
            if after_barrier: after_barrier()
            if do_dma: self.dma()
            self.inter(ms[k:], [])
        else:
            A("s_waitcnt lgkmcnt(0)")
            self.inter(self.mfmas(1, mode), [])

    def epilogue(self, mode, store_flags, flip=None):
        A, T, MT, ACC = self.A, self.T, self.MT, self.ACC
        P = self.F[1]
        A("s_lshr_b32 s%d, s%d, 1\ns_and_b32 s%d, s%d, 1\ns_lshl_b32 s%d, s%d, 1" % (G_T0, G_WAVE, G_T1, G_WAVE, G_T1, G_T1))
        if flip: flip(G_T1)
        A("v_mul_lo_u32 v%d, v%d, s%d" % (T, self.VE, G_LR))
        if mode == "row":
            NO, NP = MT, 2
            if MT == 1:
                A("s_and_b32 s%d, s%d, 1\ns_mul_i32 s%d, s%d, s%d\ns_lshl_b32 s%d, s%d, 4\ns_add_u32 s%d, s%d, s%d\ns_lshr_b32 s%d, s%d, 1" % (G_CNT, G_T0, G_CNT, G_CNT, G_LR, G_CNT, G_CNT, G_COFF, G_COFF, G_CNT, G_T0, G_T0))
            else:
                A("s_mul_i32 s%d, s%d, %d" % (G_T0, G_T0, MT // 2))
            A("s_mul_i32 s%d, s%d, s%d\ns_mul_i32 s%d, s%d, s%d" % (G_T0, G_T0, G_RS, G_T1, G_T1, G_CS))
        else:
            NO, NP = 4, MT // 2
            A("s_mul_i32 s%d, s%d, %d" % (G_T0, G_T0, MT // 2))
            A("s_mul_i32 s%d, s%d, s%d\ns_mul_i32 s%d, s%d, s%d" % (G_T0, G_T0, G_CS, G_T1, G_T1, G_RS))
        A("s_add_u32 s%d, s%d, s%d\ns_add_u32 s%d, s%d, s%d" % (G_COFF, G_COFF, G_T0, G_COFF, G_COFF, G_T1))
        A("s_cmp_eq_u32 s%d, 16\ns_cselect_b32 s%d, 9, 4\nv_lshl_add_u32 v%d, v%d, s%d, v%d" % (G_LR, G_T0, T, self.VE + 1, G_T0, T))
        A("s_lshl_b32 s%d, s%d, 4\nv_add_u32 v%d, s%d, v%d" % (G_T0, G_LR, T + 1, G_T0, T))
        n = 0
        for o in range(NO):
            for p in range(NP):
                if mode == "row": t0, t1 = ACC + 16 * o + 8 * p, ACC + 16 * o + 8 * p + 4
                else: t0, t1 = ACC + 16 * (2 * p) + 4 * o, ACC + 16 * (2 * p + 1) + 4 * o
                d = P + 4 * n; n += 1
                A("v_cvt_pk_bf16_f32 v%d, v%d, v%d\nv_cvt_pk_bf16_f32 v%d, v%d, v%d" % (d, t0, t0 + 1, d + 1, t0 + 2, t0 + 3))
                A("v_cvt_pk_bf16_f32 v%d, v%d, v%d\nv_cvt_pk_bf16_f32 v%d, v%d, v%d" % (d + 2, t1, t1 + 1, d + 3, t1 + 2, t1 + 3))
        n = 0
        for o in range(NO):
            if o == 2: A("s_add_u32 s%d, s%d, s%d" % (G_COFF, G_COFF, G_RS))
            if o % 2 == 0 and NP > 1: A("s_add_u32 s%d, s%d, s%d" % (G_T1, G_COFF, G_CS))
            for p in range(NP):
                d = P + 4 * n; n += 1
                A("v_permlane16_swap_b32 v%d, v%d\nv_permlane16_swap_b32 v%d, v%d" % (d, d + 2, d + 1, d + 3))
                A("buffer_store_dwordx4 %s, v%d, s[%d:%d], s%d offen %s" % (vr(d, 4), T + (o & 1), G_SC, G_SC + 3, G_T1 if p else G_COFF, store_flags))

    def epilogue_lds(self):
        A, T, ACC = self.A, self.T, self.ACC
        P = self.F[1]
        A("s_lshl_b32 s%d, s%d, 13\nv_lshlrev_b32 v%d, 4, v0\nv_add_u32 v%d, s%d, v%d" % (G_T0, G_WAVE, T, T, G_T0, T))
        for n in range(8):
            t0 = ACC + 8 * n; d = P + 4 * n
            for i in range(4): A("v_cvt_pk_bf16_f32 v%d, v%d, v%d" % (d + i, t0 + 2 * i, t0 + 2 * i + 1))
        for n in range(8):
            d = P + 4 * n
            A("v_permlane16_swap_b32 v%d, v%d\nv_permlane16_swap_b32 v%d, v%d" % (d, d + 2, d + 1, d + 3))
            A("ds_write_b128 v%d, %s offset:%d" % (T, vr(d, 4), 1024 * n))

    def simple(self, tag, mode, nk, store_flags=""):
        A = self.A; ND, NSL = self.ND, self.NSL
        self.cold(full_wait=False)
        vm = (NSL - 2) * ND
        self.step(mode, True, vm, zero=True)
        A("s_mov_b32 s%d, %d" % (G_CNT, nk - NSL - 1))
        A.label("G%s_LOOP" % tag)
        self.step(mode, True, vm)
        A("s_sub_u32 s%d, s%d, 1\ns_cmp_lg_u32 s%d, 0\ns_cbranch_scc1 G%s_LOOP" % (G_CNT, G_CNT, G_CNT, tag))
        for i in range(NSL - 1): self.step(mode, False, (NSL - 2 - i) * ND)
        self.step(mode, False, 0, more=False)
        self.epilogue(mode, store_flags)
```

```python
import os
def env(k, d): return float(os.environ.get(k, d))
T0, TS = env("T0", 22.0), env("TS", 2.56)
DG, DB2, DQA, DA3, DA3S = env("DG", 14.4), env("DB2", 19.7), env("DQA", 3.2), env("DA3", 44.0), env("DA3S", 21.0)
NA3 = int(env("NA3", 5))
CT0 = int(env("CT0", 56))
SMALL0 = 0
STOP = [float(x) for x in os.environ.get("STOP", "160,175").split(",") if x]
EARLY = int(env("EARLY", 7))
INFO = {}
NB = int(env('NB', 16))
NB6 = int(env('NB6', 0))
def table(verbose=False):
    KV = lambda r: [(0, r * 16 + n) for n in range(16)]
    B1 = [(1, i) for i in range(48)]
    B2 = [(2, qb * 8 + h) for qb in range(8) for h in range(8)]
    rows = []
    for xb in range(4):
        QA = lambda r: [(3, r * 32 + 8 * xb + h) for h in range(8)]
        A3 = lambda r: [(5, r * 8 + 2 * xb + i) for i in range(2)] if r < NA3 else []
        B3 = [(4, 8 * r + 2 * xb + i) for r in range(8) for i in range(2)]
        bg = KV(0) + KV(1) + KV(2) + KV(3) + B1 + KV(4) + KV(5) + B2[:NB6] + KV(6) + B2[NB6:NB] + KV(7) + B2[NB:] + B3
        qa = [j for r in range(8) for j in QA(r)]
        a3 = [j for r in range(8) for j in A3(r)]
        free = [3.5] * 32
        stop = [1e9] * 32
        for g, t in enumerate(STOP):
            for i in range(8): stop[31 - 8 * g - i] = t
        out = [False] * 32
        lists = [[] for _ in range(32)]
        qdone = [0] * 8; qleft = [8] * 8; qg = [0] * 8; kvd = [0] * 8
        seg = lambda s: T0 + TS * min(s + 1.5, 63.5)
        while bg or qa or a3:
            w = min((i for i in range(32) if not out[i]), key=lambda i: (round(free[i], 1), i))
            now = free[w]
            def fin(j):
                t, p = j
                if t == 2: return now + DB2
                if t == 3: return max(now + DG, seg(8 * (p >> 5) + 7)) + DQA
                if t == 5: return max(now, qdone[p >> 3]) + DA3
                return now + DG
            cand = []
            if a3 and qleft[a3[0][1] >> 3] == 0 and (qdone[a3[0][1] >> 3] <= now + 1 or not (bg or qa)): cand.append(a3)
            if qa:
                r = qa[0][1] >> 5
                want = seg(8 * r + (1 if r >= EARLY else 7))
                if want <= now + DG - 1 or not bg: cand.append(qa)
            if bg: cand.append(bg)
            if not cand: cand.append(a3)
            cand = [q for q in cand if fin(q[0]) <= stop[w] + 4]
            if not cand:
                out[w] = True; continue
            j = cand[0].pop(0)
            free[w] = fin(j)
            if j[0] == 3:
                r = j[1] >> 5; qdone[r] = max(qdone[r], free[w]); qleft[r] -= 1; qg[r] = max(qg[r], now + DG)
            if j[0] == 0: kvd[j[1] >> 4] = max(kvd[j[1] >> 4], free[w])
            lists[w].append(j[0] << 8 | j[1])
        INFO.update(free=free, qg=qg, kvd=kvd)
        if verbose: print(xb, [int(f) for f in free], [int(q) for q in qdone])
        for w, l in enumerate(lists):
            assert len(l) < 14 and l[0] >> 8 == 0
            for i, a in enumerate(l):
                if a >> 8 in (3, 5):
                    r = (a & 255) >> (3 if a >> 8 == 5 else 5)
                    assert all(not (b >> 8 == 0 and (b & 255) >> 4 <= r + 1) for b in l[i:])
            g = (31 - w) // 8
            end = 0x700 | (g << 5 | 8 * xb + (31 - w) % 8) if g < len(STOP) else 0x7e0
            rows.append(l + [end] * (16 - len(l)))
    return rows
def segs(verbose=False):
    lists = [[] for _ in range(8)]
    if not INFO: table()
    free = [max(INFO['free'][24 - 8 * g:32 - 8 * g]) + 4 for g in range(len(STOP))]
    for sg in range(8 * NA3, CT0):
        g = min(range(len(STOP)), key=lambda i: free[i])
        free[g] = max(free[g], max(T0 + TS * (sg + 1.5), INFO['qg'][sg >> 3]) + 3) + 2.4
        lists[g].append(sg)
    INFO['wfree'] = free
    if verbose: print(lists[:len(STOP)], free)
    return [l + [64] * (32 - len(l)) for l in lists]
if __name__ == "__main__":
    for r in table(True)[:32]: print(" ".join("%03x" % x for x in r))
    segs(True)
```

```python
import sys
from asmlib import *
from layout import *
from chain import *
from gemm2 import *
from attn import *
import sched

HDR = open("concat_heads__memory_aug_recurrent_mem_tr__mha_block__prompt.s.ref").read().split("; Override launch geometry")[0] if len(sys.argv) > 2 and sys.argv[2] == "hdr" else ""
STAMP = "bst" in OPT
A = Asm()
if HDR: A.raw(HDR.rstrip("\n"))
G = Gemm(A, 4, 3, aflag="" if "aplain" in OPT else "sc1")
G2 = Gemm(A, 2, 4)
G1 = Gemm(A, 1, 6)
assert max(G2.LDS, G1.LDS) <= G.LDS
KN = "concat_heads__memory_aug_recurrent_mem_tr__mha_block__prompt_kernel"
A.raw("; @launch grid=(256,1,1) block=(512,1,1) lds=%d" % (G.LDS + 64))
A.raw('.amdgcn_target "amdgcn-amd-amdhsa--gfx950"\n.text')
LOADP = "s_load_dwordx16 s[60:75], s[0:1], 0\ns_load_dwordx8 s[76:83], s[0:1], 64\ns_load_dwordx2 s[84:85], s[0:1], 96"

def bstamp():
    if not STAMP: return
    L = A.newlabel("BST")
    A("s_cmp_lg_u32 s34, 0\ns_cbranch_scc1 %s" % L)
    A("s_memrealtime s[40:41]\ns_lshl_b32 s42, s%d, 5\ns_add_u32 s42, s42, s%d\ns_lshl_b32 s42, s42, 6\ns_lshl_b32 s43, s%d, 2\ns_add_u32 s42, s42, s43\ns_add_u32 s42, s42, 0x6100004\ns_waitcnt lgkmcnt(0)\nv_mov_b32 v31, s40\ns_mov_b64 exec, 1" % (S_X, S_C, 35))
    A("buffer_store_dword v31, off, s[8:11], s42")
    A("s_memtime s[40:41]\ns_add_u32 s42, s42, 0x10000\ns_waitcnt lgkmcnt(0)\nv_mov_b32 v31, s40\nbuffer_store_dword v31, off, s[8:11], s42\ns_mov_b64 exec, -1")
    A.label(L)

def elog(code):
    if "elog" not in OPT: return
    L = A.newlabel("EL")
    A("s_cmp_lg_u32 s34, 0\ns_cbranch_scc1 %s" % L)
    A("s_memrealtime s[40:41]\ns_lshl_b32 s42, s%d, 5\ns_add_u32 s42, s42, s%d\ns_lshl_b32 s42, s42, 9\ns_and_b32 s43, s2, 0xffff\ns_add_u32 s42, s42, s43\ns_add_u32 s42, s42, 0x6400000\ns_add_u32 s2, s2, 8\ns_waitcnt lgkmcnt(0)" % (S_X, S_C))
    A("v_mov_b32 v30, s40\nv_mov_b32 v31, %d\ns_mov_b64 exec, 1\nbuffer_store_dwordx2 v[30:31], off, s[8:11], s42\ns_mov_b64 exec, -1" % code)
    A.label(L)

A.raw(kernel_header(KN))
A("s_cmp_ge_u32 s2, 256\ns_cbranch_scc1 C_DONE")
if STAMP: A("s_memrealtime s[6:7]")
A(LOADP)
A("v_lshrrev_b32 v1, 6, v0\nv_readfirstlane_b32 s34, v1")
A("s_waitcnt lgkmcnt(0)")
mk_srd(A, S_WS, ptr(12), WS_BYTES)
PERM = "73625140"
for o in OPT:
    if o.startswith("perm"): PERM = o[4:]
VER_LDS = G.LDS
DBG = "s[%d:%d]" % (ptr(11), ptr(11) + 1)
def xcd(A, d, t):
    A("s_getreg_b32 s%d, hwreg(HW_REG_XCC_ID)\ns_and_b32 s%d, s%d, 7\ns_lshl_b32 s%d, s%d, 2\ns_lshr_b32 s%d, 0x%s, s%d\ns_and_b32 s%d, s%d, 7" % (d, d, d, t, d, d, PERM, t, d, d))
xcd(A, 40, 41)
A("s_lshr_b32 s41, s2, 3\ns_lshl_b32 s51, s40, 5\ns_add_u32 s51, s51, s41")
if "forcebad" in OPT: A("s_and_b32 s51, s51, 0xfe\ns_and_b32 s41, s41, 30")
if STAMP:
    A("s_lshl_b32 s42, s2, 2\ns_add_u32 s42, s42, 0x6500000\nv_mov_b32 v6, s6\nbuffer_store_dword v6, off, s[8:11], s42")
A("s_cmp_lg_u32 s34, 4\ns_cbranch_scc1 R_NOT4")
A("s_lshl_b32 s43, s2, 7\ns_add_u32 s43, s43, %d\nv_mov_b32 v40, 0\ns_mov_b64 exec, 1" % FLAGS)
A("buffer_store_dword v40, off, s[8:11], s43 sc1")
A("s_mov_b64 exec, -1")
A.label("R_NOT4")
A("s_barrier")
TK = ptr(6)
A("s_lshl_b32 s%d, 1, s41\ns_mov_b32 s%d, 0x100" % (TK, TK + 1))
def claim(A, n, tag):
    A("s_cmp_lg_u32 s34, 4\ns_cbranch_scc1 CL%s\ns_bitcmp1_b32 s2, 30\ns_cbranch_scc1 CL%s" % (tag, tag))
    xcd(A, 40, 41)
    A("s_lshl_b32 s40, s40, 3\ns_bitset1_b32 s2, 30\ns_waitcnt vmcnt(%d)\ns_atomic_add_x2 s[%d:%d], %s, s40 glc" % (n, TK, TK + 1, DBG))
    A.label("CL" + tag)
A("s_mov_b32 s2, 0")
def verify(A, T, tag):
    xc, tk, tot, pre, unb, bad, t, to = T
    A("s_bitcmp1_b32 s2, 31\ns_cbranch_scc1 V%s_DONE" % tag)
    xcd(A, xc, t)
    A("v_and_b32 v42, 15, v0\nv_lshlrev_b32 v42, 2, v42\ns_mov_b32 s%d, 0" % to)
    A.label("V%s_POLL" % tag)
    A("global_load_dword v43, v42, %s sc1" % DBG)
    A("s_add_u32 s%d, s%d, 1\ns_cmp_gt_u32 s%d, %d\ns_cbranch_scc1 C_DONE" % (to, to, to, TIMEOUT))
    A("s_mov_b32 s%d, 0\ns_mov_b32 s%d, 0\ns_mov_b32 s%d, 0\ns_mov_b32 s%d, 0\ns_waitcnt vmcnt(0)" % (tot, pre, unb, bad))
    for x in range(8):
        A("v_readlane_b32 s%d, v43, %d" % (t, 2 * x + 1))
        A("s_cmp_lg_u32 s%d, 0x2000\ns_cselect_b32 s%d, 1, s%d\ns_lshr_b32 s%d, s%d, 8" % (t, bad, bad, t, t))
        A("s_add_u32 s%d, s%d, s%d\ns_cmp_lg_u32 s%d, 32\ns_cselect_b32 s%d, 1, s%d" % (tot, tot, t, t, unb, unb))
        A("s_cmp_gt_u32 s%d, %d\ns_cselect_b32 s%d, s%d, 0\ns_add_u32 s%d, s%d, s%d" % (xc, x, t, t, pre, pre, t))
        A("v_readlane_b32 s%d, v43, %d" % (t, 2 * x))
        A("s_cmp_lg_u32 s%d, -1\ns_cselect_b32 s%d, 1, s%d" % (t, bad, bad))
    A("s_cmp_lg_u32 s%d, 256\ns_cbranch_scc1 V%s_POLL" % (tot, tag))
    A("s_waitcnt lgkmcnt(0)\ns_lshr_b32 s%d, s%d, 8" % (tk, TK + 1))
    A("s_add_u32 s%d, s%d, s%d\ns_lshl_b32 s%d, s%d, 8\ns_or_b32 s%d, s%d, s%d\ns_or_b32 s%d, s%d, 0x8000" % (pre, pre, tk, t, unb, pre, pre, t, pre, pre))
    A("s_or_b32 s%d, s%d, s%d\ns_cselect_b32 s%d, s%d, 0" % (bad, bad, unb, pre, pre))
    A("v_mov_b32 v42, %d\nv_mov_b32 v43, s%d\nds_write_b32 v42, v43\ns_waitcnt lgkmcnt(0)" % (VER_LDS, pre))
    A.label("V%s_DONE" % tag)
def verdict(A, va, vb, tag):
    A("s_bitcmp1_b32 s2, 31\ns_cbranch_scc1 VD%s_OK" % tag)
    A("v_mov_b32 v%d, %d\nds_read_b32 v%d, v%d\ns_bitset1_b32 s2, 31\ns_waitcnt lgkmcnt(0)\nv_readfirstlane_b32 s40, v%d" % (va, VER_LDS, vb, va, vb))
    A("s_cmp_lg_u32 s40, 0\ns_cbranch_scc1 R_RESTART")
    A.label("VD%s_OK" % tag)
A("s_branch R_GO")
A.label("R_RESTART")
A("s_mov_b32 s51, s40\ns_lshl_b32 s40, s34, 6\nv_and_b32 v0, 63, v0\nv_add_u32 v0, s40, v0\ns_waitcnt vmcnt(0) lgkmcnt(0)\ns_barrier")
A.label("R_GO")
A("s_bfe_u32 s%d, s51, 0x30005\ns_and_b32 s%d, s51, 31" % (S_X, S_C))
A("s_cmp_ge_u32 s%d, 4\ns_cbranch_scc1 C_BULK" % S_X)
def ready(A):
    A("v_mov_b32 v24, %d\nds_read_b32 v25, v24 offset:4\ns_waitcnt lgkmcnt(0)\nv_readfirstlane_b32 s29, v25" % VER_LDS)
    A("s_mul_i32 s30, s%d, 6\ns_add_u32 s30, s30, 8\ns_lshl_b32 s29, s29, s30\ns_add_u32 s29, s29, 1" % S_X)
    A("v_mov_b32 v24, 64\nv_mov_b32 v25, s29")
    A("s_mov_b64 exec, 1")
    A("global_atomic_add v24, v25, %s" % DBG)
    poll_head(A, "CH_RDY", "C_DONE")
    A("s_sleep 8\nglobal_load_dword v25, v24, %s sc1\ns_waitcnt vmcnt(0)" % DBG)
    A("v_and_b32 v26, 0xff, v25\nv_cmp_ne_u32 vcc, 128, v26\ns_cbranch_vccnz CH_RDY")
    A("v_readfirstlane_b32 s29, v25\ns_lshr_b32 s29, s29, s30\ns_and_b32 s29, s29, 63\ns_cmp_gt_u32 s29, 16\ns_cselect_b32 s29, %s" % ("0, 0x2000" if "pinv" in OPT else "0x2000, 0"))
    A("s_mov_b64 exec, -1")
    A("v_mov_b32 v25, s29")
def early(A):
    A("s_cmp_lg_u32 s34, 7\ns_cbranch_scc1 CH_NOPROBE")
    emit_probe(A, 29)
    A("v_mov_b32 v24, %d\nv_mov_b32 v25, s29\nds_write_b32 v24, v25 offset:4" % VER_LDS)
    A.label("CH_NOPROBE")
def check_role(A, who):
    if who == 4:
        A("s_cmp_lg_u32 s34, 4\ns_cbranch_scc1 VCH__DONE")
        verify(A, [86, 87, 88, 89, 90, 91, 92, 93], "CH_")
    A("s_barrier")
    verdict(A, 4, 5, "CH_%d" % who)
if STAMP: A("s_memrealtime s[56:57]\ns_memtime s[58:59]\ns_waitcnt lgkmcnt(0)")
if "nochain" in OPT: A("s_branch C_FIN")
A("s_bitcmp1_b32 s51, 8\ns_cbranch_scc1 C_SLOW")
emit_chain(A, "C_FIN", intra="", ready_wait=ready, pfx="CF_", gate="nobulk" not in OPT, stamps=(int(os.environ.get("CST", "20")) if "cst" in OPT else 0), abort="C_DONE", kv0=(128 if sched.SMALL0 else 64), check_role=check_role, early=early, claim=claim)
A.label("C_SLOW")
emit_chain(A, "C_FIN", intra="sc1", ready_wait=ready, pfx="CS_", gate=True, abort="C_DONE", kv0=(128 if sched.SMALL0 else 64), check_role=check_role, early=early, claim=claim)
A.label("C_FIN")
if STAMP:
    A("s_memrealtime s[90:91]\ns_lshl_b32 s40, s%d, 5\ns_add_u32 s40, s40, s%d\ns_lshl_b32 s40, s40, 6\ns_add_u32 s40, s40, 0x6100000\ns_waitcnt lgkmcnt(0)\nv_mov_b32 v2, s90\ns_mov_b64 exec, 1" % (S_X, S_C))
    A("buffer_store_dword v2, off, s[8:11], s40")
    A("s_memtime s[92:93]\ns_waitcnt lgkmcnt(0)\ns_sub_u32 s92, s92, s58\ns_sub_u32 s90, s90, s56\nv_mov_b32 v4, s92\nv_mov_b32 v5, s90")
    A("buffer_store_dwordx2 v[4:5], off, s[8:11], s40 offset:8\ns_waitcnt vmcnt(0)\ns_mov_b64 exec, -1")
A("s_setprio 0")
def cst():
    if STAMP:
        A("s_mov_b32 s35, 13"); bstamp()
emit_ctail(A, sched.CT0, "C_DONE", cst)
A("s_branch A3_DONE")

A.label("C_BULK")
if "nobulk" in OPT: A("s_endpgm")
SLOT_, CTYPE, CSIG, PSIG, RET = 35, 36, 37, 38, 39
N_WTGT, N_OUT, N_HEAD, N_QB, XB = 55, 56, 57, 58, 59
N_TYPE, N_ASZ, N_PA, N_PW, N_WSZ, N_AOFF, N_WOFF, N_LDW, N_COFF, N_LR, N_RS, N_CS, N_SIG, N_WAIT = 86, 87, 88, 90, 92, 93, 94, 95, 96, 97, 98, 99, 100, 101
T0, T1, T2, T3 = 40, 41, 42, 43
N_SCL, CSCL, CHEAD, CSEG = 4, 5, 3, 7
CB = S_C
A("v_and_b32 v0, 63, v0")
A("s_sub_u32 s%d, s%d, 4\ns_mov_b32 s%d, -1\ns_mov_b32 s%d, 0\ns_mov_b32 s%d, 0\ns_mov_b32 s%d, 0\ns_mov_b32 s%d, 0" % (XB, S_X, SLOT_, RET, CTYPE, CSIG, PSIG))
A("s_mov_b32 s%d, 2048" % G_LDA)
A("s_getpc_b64 s[0:1]")
A.label("B_PC")
A("s_add_u32 s0, s0, JOBS-B_PC\ns_addc_u32 s1, s1, 0")
A("s_lshl_b32 s40, s%d, 5\ns_add_u32 s40, s40, s%d\ns_lshl_b32 s40, s40, 6\ns_add_u32 s0, s0, s40\ns_addc_u32 s1, s1, 0\ns_load_dword s6, s[0:1], 0" % (XB, CB))
A("s_mov_b32 s%d, 0\ns_mov_b32 s%d, 0\ns_mov_b32 s%d, 0\ns_mov_b32 s%d, 0\ns_mov_b32 s%d, 0\ns_mov_b32 s%d, 0\ns_mov_b32 s%d, 0" % (N_HEAD, N_QB, N_COFF, N_LR, N_RS, N_AOFF, N_WOFF))
mk_srd(A, G_SA, ptr(0), 0x400000); mk_srd(A, G_SW, ptr(3), 0x800000); mk_srd(A, G_SC, ptr(12), WS_BYTES)
def setp(dst, pi): A("s_mov_b64 s[%d:%d], s[%d:%d]" % (dst, dst + 1, ptr(pi), ptr(pi) + 1))
def flag(i): return FLAGS + 128 * i
bstamp()
A("s_mov_b32 s%d, 0" % SLOT_)
assert not sched.SMALL0
if sched.SMALL0:
    A("s_and_b32 s%d, s%d, 1\ns_lshl_b32 s%d, s%d, 4\ns_and_b32 s%d, s%d, 15\ns_add_u32 s%d, s%d, s%d\ns_lshr_b32 s%d, s%d, 4" % (T1, XB, T1, T1, T2, CB, T1, T1, T2, T0, CB))
    A("s_lshl_b32 s%d, s%d, 18\ns_lshl_b32 s%d, s%d, 8\ns_mov_b32 s%d, 8192\ns_mov_b32 s%d, 16" % (G_AOFF, T0, G_WOFF, T1, G_LDW, G_LR))
    A("s_lshl_b32 s%d, s%d, 20\ns_lshl_b32 s%d, s%d, 14\ns_add_u32 s%d, s%d, s%d" % (G_COFF, T1, T2, T0, G_COFF, G_COFF, T2))
    G2.setup_static(); G2.setup_lda(); G2.setup_ldw()
    A("v_mov_b32 v28, -1\nv_mov_b32 v29, -1\nv_mov_b32 v30, -1\nv_mov_b32 v31, -1\nv_lshlrev_b32 v1, 4, v0")
    A("s_lshl_b32 s40, s%d, 5\ns_add_u32 s40, s40, s%d\ns_lshl_b32 s40, s40, 3\ns_add_u32 s40, s40, s%d\ns_lshl_b32 s40, s40, 11\ns_add_u32 s40, s40, %d" % (XB, CB, G_WAVE, PARTB))
    for i in range(2): A("buffer_store_dwordx4 v[28:31], v1, s[8:11], s40 offen offset:%d sc1" % (1024 * i))
    A("s_cmp_ge_u32 s%d, 2\ns_cbranch_scc1 F_V" % XB)
    A("s_mov_b32 s%d, 4096\ns_mov_b32 s%d, 0x40000\ns_add_u32 s%d, s%d, %d" % (G_RS, G_CS, G_COFF, G_COFF, KV))
    G2.simple("FK", "row", 16, "sc1")
    A("s_branch F_DONE")
    A.label("F_V")
    mk_srd(A, G_SW, ptr(4), 0x800000)
    A("s_mov_b32 s%d, 0x40000\ns_mov_b32 s%d, 4096\ns_add_u32 s%d, s%d, %d" % (G_RS, G_CS, G_COFF, G_COFF, KV + 2048))
    G2.simple("FV", "tr", 16, "sc1")
    A.label("F_DONE")
    A("s_waitcnt vmcnt(0)\ns_barrier\ns_cmp_lg_u32 s%d, 0\ns_cbranch_scc1 B_DECODE" % G_WAVE)
    A("s_mov_b32 s40, %d\nv_mov_b32 v1, 1\ns_mov_b64 exec, 1\nbuffer_atomic_add v1, off, s[8:11], s40\ns_mov_b64 exec, -1" % flag(F_KV))
A.label("B_DECODE")
bstamp()
A("s_add_u32 s%d, s%d, 1" % (SLOT_, SLOT_))
A("s_mov_b32 s%d, 0\ns_mov_b32 s%d, 0\ns_mov_b32 s%d, 0\ns_mov_b32 s%d, 0\ns_mov_b32 s%d, 0" % (N_TYPE, N_SIG, N_WAIT, N_OUT, N_WTGT))
setp(N_PA, 0); setp(N_PW, 2)
A("s_mov_b32 s%d, 0" % N_SCL)
A("s_mov_b32 s%d, 0x400000\ns_mov_b32 s%d, 0x800000\ns_mov_b32 s%d, 8192\ns_mov_b32 s%d, 64" % (N_ASZ, N_WSZ, N_LDW, N_CS))
A("s_waitcnt lgkmcnt(0)\ns_lshr_b32 s%d, s6, 8\ns_and_b32 s%d, s6, 0xff" % (T1, T0))
A("s_add_u32 s0, s0, 4\ns_addc_u32 s1, s1, 0\ns_load_dword s6, s[0:1], 0")
for i, nm in enumerate(["KV", "B1", "B2", "Q", "B3", "A3", "A3S"]):
    A("s_cmp_eq_u32 s%d, %d\ns_cbranch_scc1 D_%s" % (T1, i, nm))
A("s_mov_b32 s%d, 3\ns_lshr_b32 s%d, s%d, 5\ns_and_b32 s%d, s%d, 31\ns_branch B_DECODED" % (N_TYPE, N_QB, T0, N_HEAD, T0))
A.label("D_KV")
A("s_and_b32 s%d, s%d, 1\ns_lshl_b32 s%d, s%d, 4\ns_and_b32 s%d, s%d, 15\ns_add_u32 s%d, s%d, s%d" % (T1, XB, T1, T1, T2, T0, T1, T1, T2))
A("s_lshr_b32 s%d, s%d, 4" % (T0, T0))
A("s_lshl_b32 s%d, s%d, 19\ns_lshl_b32 s%d, s%d, 8" % (N_AOFF, T0, N_WOFF, T1))
A("s_lshl_b32 s%d, s%d, 20\ns_lshl_b32 s%d, s%d, 15\ns_add_u32 s%d, s%d, s%d" % (N_COFF, T1, T2, T0, N_COFF, N_COFF, T2))
A("s_lshl_b32 s%d, s%d, 7\ns_add_u32 s%d, s%d, %d\ns_mov_b32 s%d, 16" % (N_SIG, T0, N_SIG, N_SIG, flag(F_KV), N_LR))
A("s_lshl_b32 s%d, s%d, 22\ns_lshr_b32 s%d, s%d, 1\ns_lshl_b32 s%d, s%d, 5\ns_add_u32 s%d, s%d, s%d\ns_lshl_b32 s%d, s%d, 15\ns_add_u32 s%d, s%d, s%d\ns_add_u32 s%d, s%d, %d" % (N_HEAD, T0, T2, XB, T2, T2, T2, T2, T1, T2, T2, N_HEAD, N_HEAD, T2, N_HEAD, N_HEAD, PARTB))
A("s_mov_b32 s%d, 4" % N_SCL)
A("s_cmp_ge_u32 s%d, 2\ns_cbranch_scc1 D_KV_V" % XB)
setp(N_PW, 3)
A("s_mov_b32 s%d, 4096\ns_mov_b32 s%d, 0x40000\ns_add_u32 s%d, s%d, %d\ns_branch B_DECODED" % (N_RS, N_CS, N_COFF, N_COFF, KV))
A.label("D_KV_V")
setp(N_PW, 4)
A("s_mov_b32 s%d, 0x40000\ns_mov_b32 s%d, 4096\ns_add_u32 s%d, s%d, %d\ns_mov_b32 s%d, 1\ns_branch B_DECODED" % (N_RS, N_CS, N_COFF, N_COFF, KV + 2048, N_TYPE))
A.label("D_B1")
setp(N_PA, 7); setp(N_PW, 8)
A("s_mov_b32 s%d, 0x600000\ns_mov_b32 s%d, 6144\ns_mov_b32 s%d, 16\ns_mov_b32 s%d, 2048\ns_mov_b32 s%d, 0x20000" % (N_WSZ, N_LDW, N_LR, N_RS, N_CS))
A("s_and_b32 s%d, s%d, 7\ns_lshl_b32 s%d, s%d, 19" % (T1, T0, N_AOFF, T1))
A("s_bfe_u32 s%d, s%d, 0x10003\ns_lshl_b32 s%d, s%d, 1\ns_add_u32 s%d, s%d, s%d" % (T2, T0, T3, XB, T2, T2, T3))
A("s_lshl_b32 s%d, s%d, 7\ns_add_u32 s%d, s%d, %d" % (N_SIG, T2, N_SIG, N_SIG, flag(F_B1)))
A("s_lshr_b32 s%d, s%d, 4\ns_lshl_b32 s%d, s%d, 3\ns_add_u32 s%d, s%d, s%d\ns_lshl_b32 s%d, s%d, 8" % (T0, T0, T3, T0, T3, T3, T2, N_WOFF, T3))
A("s_lshl_b32 s%d, s%d, 19\ns_lshl_b32 s%d, s%d, 14\ns_add_u32 s%d, s%d, s%d\ns_add_u32 s%d, s%d, %d" % (N_COFF, T3, T1, T1, N_COFF, N_COFF, T1, N_COFF, N_COFF, BQ))
A("s_cmp_eq_u32 s%d, 0\ns_cselect_b32 s%d, 1, 0" % (T0, N_SCL))
A("s_cmp_lg_u32 s%d, 2\ns_cbranch_scc1 B_DECODED" % T0)
A("s_mov_b32 s%d, 0x20000\ns_mov_b32 s%d, 2048\ns_mov_b32 s%d, 1\ns_branch B_DECODED" % (N_RS, N_CS, N_TYPE))
A.label("D_Q")
A("s_lshr_b32 s%d, s%d, 5\ns_and_b32 s%d, s%d, 31" % (N_QB, T0, N_HEAD, T0))
A("s_lshl_b32 s%d, s%d, 19\ns_lshl_b32 s%d, s%d, 8\ns_mov_b32 s%d, 2\ns_branch B_DECODED" % (N_AOFF, N_QB, N_WOFF, N_HEAD, N_SCL))
A.label("D_B3")
setp(N_PA, 12); setp(N_PW, 9)
A("s_mov_b32 s%d, 0x%x\ns_mov_b32 s%d, 0x200000\ns_mov_b32 s%d, 2048\ns_mov_b32 s%d, 4096\ns_mov_b32 s%d, 0x20000\ns_mov_b32 s%d, 1" % (N_ASZ, WS_BYTES, N_WSZ, N_LDW, N_LR, N_RS, N_OUT))
A("s_lshr_b32 s%d, s%d, 3\ns_and_b32 s%d, s%d, 7" % (T1, T0, T2, T0))
A("s_lshl_b32 s%d, s%d, 19\ns_add_u32 s%d, s%d, %d\ns_lshl_b32 s%d, s%d, 8" % (N_AOFF, T1, N_AOFF, N_AOFF, BO, N_WOFF, T2))
A("s_lshl_b32 s%d, s%d, 20\ns_add_u32 s%d, s%d, s%d\ns_add_u32 s%d, s%d, 2048" % (N_COFF, T1, N_COFF, N_COFF, N_WOFF, N_COFF, N_COFF))
A("s_lshl_b32 s%d, s%d, 7\ns_add_u32 s%d, s%d, %d\ns_mov_b32 s%d, 32\ns_branch B_DECODED" % (N_WAIT, T1, N_WAIT, N_WAIT, flag(F_B2), N_WTGT))
A.label("D_A3")
setp(N_PA, 12); setp(N_PW, 5)
A("s_mov_b32 s%d, 0x%x\ns_mov_b32 s%d, 2048\ns_mov_b32 s%d, 4096\ns_mov_b32 s%d, 0x20000\ns_mov_b32 s%d, 1\ns_mov_b32 s%d, 3" % (N_ASZ, WS_BYTES, N_LDW, N_LR, N_RS, N_OUT, N_SCL))
A("s_lshr_b32 s%d, s%d, 3\ns_and_b32 s%d, s%d, 7" % (T1, T0, T2, T0))
A("s_lshl_b32 s%d, s%d, 21\ns_add_u32 s%d, s%d, %d\ns_lshl_b32 s%d, s%d, 8" % (N_AOFF, T1, N_AOFF, N_AOFF, OT - 4096, N_WOFF, T2))
A("s_lshl_b32 s%d, s%d, 20\ns_add_u32 s%d, s%d, s%d" % (N_COFF, T1, N_COFF, N_COFF, N_WOFF))
A("s_lshl_b32 s%d, s%d, 10\ns_add_u32 s%d, s%d, %d\ns_mov_b32 s%d, 32\ns_branch B_DECODED" % (N_WAIT, T1, N_WAIT, N_WAIT, flag(F_CO), N_WTGT))
A.label("D_A3S")
setp(N_PA, 12); setp(N_PW, 5)
A("s_mov_b32 s%d, 0x%x\ns_mov_b32 s%d, 2048\ns_mov_b32 s%d, 4096\ns_mov_b32 s%d, 0x20000\ns_mov_b32 s%d, 1\ns_mov_b32 s%d, 5" % (N_ASZ, WS_BYTES, N_LDW, N_LR, N_RS, N_OUT, N_SCL))
A("s_lshr_b32 s%d, s%d, 3\ns_and_b32 s%d, s%d, 7" % (T1, T0, T2, T0))
A("s_lshl_b32 s%d, s%d, 19\ns_add_u32 s%d, s%d, %d\ns_lshl_b32 s%d, s%d, 8" % (N_AOFF, T1, N_AOFF, N_AOFF, OT - 4096, N_WOFF, T2))
A("s_lshl_b32 s%d, s%d, 18\ns_add_u32 s%d, s%d, s%d" % (N_COFF, T1, N_COFF, N_COFF, N_WOFF))
A("s_lshl_b32 s%d, s%d, 8\ns_add_u32 s%d, s%d, %d\ns_mov_b32 s%d, 32\ns_branch B_DECODED" % (N_WAIT, T1, N_WAIT, N_WAIT, flag(F_CO), N_WTGT))
A.label("D_B2")
A("s_lshl_b32 s%d, s%d, 3\ns_and_b32 s%d, s%d, 7\ns_add_u32 s%d, s%d, s%d" % (N_HEAD, XB, T1, T0, N_HEAD, N_HEAD, T1))
A("s_lshr_b32 s%d, s%d, 3" % (N_QB, T0))
A("s_lshr_b32 s%d, s%d, 2\ns_lshl_b32 s%d, s%d, 7\ns_add_u32 s%d, s%d, %d\ns_mov_b32 s%d, 24" % (N_WAIT, N_HEAD, N_WAIT, N_WAIT, N_WAIT, N_WAIT, flag(F_B1), N_WTGT))
A("s_lshl_b32 s%d, s%d, 7\ns_add_u32 s%d, s%d, %d\ns_mov_b32 s%d, 2" % (N_SIG, N_QB, N_SIG, N_SIG, flag(F_B2), N_TYPE))
A.label("B_DECODED")
if "samew" in OPT: A("s_mov_b32 s%d, 0" % N_WOFF)
if "samea" in OPT: A("s_mov_b32 s%d, 0" % N_AOFF)
A("s_cmp_eq_u32 s%d, 0\ns_cbranch_scc1 B_COLD" % RET)
A("s_cmp_eq_u32 s%d, 1\ns_cbranch_scc1 B_BODY_tr\ns_branch B_BODY_row" % CTYPE)

def signal(sreg, tag):
    A("s_cmp_lg_u32 s%d, 0\ns_cbranch_scc1 SG_%s\ns_cmp_eq_u32 s%d, 0\ns_cbranch_scc1 SG_%s" % (G_WAVE, tag, sreg, tag))
    A("v_mov_b32 v1, 1\ns_mov_b64 exec, 1\nbuffer_atomic_add v1, off, s[8:11], s%d\ns_mov_b64 exec, -1" % sreg)
    A.label("SG_" + tag)
def switch(G=G):
    A("s_mov_b32 s%d, s%d\ns_and_b32 s%d, s%d, 0xffff\ns_mov_b32 s%d, s%d" % (G_SA, N_PA, G_SA + 1, N_PA + 1, G_SA + 2, N_ASZ))
    A("s_mov_b32 s%d, s%d\ns_and_b32 s%d, s%d, 0xffff\ns_mov_b32 s%d, s%d" % (G_SW, N_PW, G_SW + 1, N_PW + 1, G_SW + 2, N_WSZ))
    A("s_mov_b32 s%d, s%d\ns_mov_b32 s%d, s%d\ns_mov_b32 s%d, s%d" % (G_AOFF, N_AOFF, G_WOFF, N_WOFF, G_LDW, N_LDW))
    G.setup_ldw()

def take_out():
    A("s_mov_b32 s%d, s%d\ns_mov_b32 s%d, s%d\ns_mov_b32 s%d, s%d\ns_mov_b32 s%d, s%d\ns_mov_b32 s%d, s%d\ns_mov_b32 s%d, s%d" % (G_COFF, N_COFF, G_LR, N_LR, G_RS, N_RS, G_CS, N_CS, CSIG, N_SIG, CTYPE, N_TYPE))
    A("s_cmp_eq_u32 s%d, 1\ns_cselect_b32 s%d, s%d, s%d\ns_cselect_b32 s%d, s%d, s%d\ns_and_b32 s%d, s%d, 0xffff" % (N_OUT, G_SC, ptr(10), ptr(12), G_SC + 1, ptr(10) + 1, ptr(12) + 1, G_SC + 1, G_SC + 1))
    A("s_cmp_eq_u32 s%d, 1\ns_cselect_b32 s%d, 0x800000, 0x%x" % (N_OUT, G_SC + 2, WS_BYTES) if False else "s_mov_b32 s%d, 0x%x\ns_cmp_eq_u32 s%d, 1\ns_cselect_b32 s%d, 0x800000, s%d" % (G_SC + 2, WS_BYTES, N_OUT, G_SC + 2, G_SC + 2))
A.label("B_COLD")
elog(1)
A("s_cmp_eq_u32 s%d, 3\ns_cbranch_scc1 A3_ENTRY" % N_TYPE)
A("s_cmp_eq_u32 s%d, 0\ns_cbranch_scc1 B_NOWAIT" % N_WAIT)
A("s_cmp_lg_u32 s%d, 0\ns_cbranch_scc1 B_WOK" % G_WAVE)
A("s_mov_b32 s44, 0")
A.label("B_WPOLL")
A("v_and_b32 v2, 7, v0\nv_lshlrev_b32 v2, 7, v2\ns_cmp_eq_u32 s%d, 3\ns_cselect_b32 s40, -1, 0\ns_cmp_eq_u32 s%d, 5\ns_cselect_b32 s40, 0x80, s40\nv_and_b32 v2, s40, v2" % (N_SCL, N_SCL))
A("buffer_load_dword v1, v2, s[8:11], s%d offen sc1" % N_WAIT)
A("s_add_u32 s44, s44, 1\ns_cmp_gt_u32 s44, %d\ns_cbranch_scc1 C_DONE" % TIMEOUT)
A("s_waitcnt vmcnt(0)\nv_cmp_ne_u32 vcc, s%d, v1\ns_cbranch_vccz B_WOK\ns_sleep 8\ns_branch B_WPOLL" % N_WTGT)
A.label("B_WOK")
A("s_barrier")
A.label("B_NOWAIT")
elog(2)
A("s_cmp_lg_u32 s%d, 2\ns_cbranch_scc1 B_CG" % N_TYPE)
emit_b2(A, "", N_HEAD, N_QB, G_WAVE, ldflag="sc1", stflag="sc1")
A("s_waitcnt vmcnt(0)\ns_barrier")
signal(N_SIG, "b2")
A("s_mov_b32 s%d, 0\ns_branch B_DECODE" % RET)
A.label("B_CG")
A("s_cmp_lg_u32 s%d, 5\ns_cbranch_scc1 B_CG4" % N_SCL)
G1.setup_static(); G1.setup_tiled_a(); switch(G1); take_out()
G1.simple("S", "row", 64, "sc1")
A("s_barrier\ns_mov_b32 s%d, 0\ns_branch B_DECODE" % RET)
A.label("B_CG4")
G.setup_static()
A("s_cmp_eq_u32 s%d, 3\ns_cbranch_scc1 B_CT" % N_SCL)
A("s_mov_b32 s%d, 2048" % G_LDA)
G.setup_lda()
A("s_branch B_CS")
A.label("B_CT")
G.setup_tiled_a()
A.label("B_CS")
switch()
G.cold(full_wait=False, before_wait=lambda: claim(A, 18, "B"))
A("s_mov_b32 s%d, 0\ns_mov_b32 s44, 0" % PSIG)
A.label("B_WARM")
elog(3)
A("s_mov_b32 s%d, s%d\ns_mov_b32 s%d, s%d\ns_lshl_b32 s%d, s%d, 3\ns_add_u32 s%d, s%d, s%d" % (CSCL, N_SCL, CHEAD, N_HEAD, CSEG, N_QB, CSEG, CSEG, G_WAVE))
take_out()
A("s_mov_b32 s%d, 1\ns_branch B_DECODE" % RET)
PH = 44
for mode in ("row", "tr"):
    A.label("B_BODY_" + mode)
    def cw(k, mode=mode):
        A("s_cmp_eq_u32 s%d, 1\ns_cbranch_scc1 B_CW%d%s\ns_waitcnt vmcnt(6)" % (PH, k, mode))
        A.label("B_CW%d%s" % (k, mode))
    G.step(mode, True, 14, zero=True, pre_wait=lambda: cw(0))
    G.step(mode, True, 14, pre_wait=lambda: cw(1))
    G.step(mode, True, 6, after_barrier=lambda: signal(PSIG, "p" + mode))
    A("s_cmp_eq_u32 s%d, 3\ns_cselect_b32 s%d, 58, 10\ns_mov_b32 s%d, 0" % (CSCL, G_CNT, PH))
    A.label("B_LOOP_" + mode)
    G.step(mode, True, 6)
    A("s_sub_u32 s%d, s%d, 1\ns_cmp_lg_u32 s%d, 0\ns_cbranch_scc1 B_LOOP_%s" % (G_CNT, G_CNT, G_CNT, mode))
    A("s_cmp_eq_u32 s%d, 1\ns_cbranch_scc1 B_EPW_%s" % (PH, mode))
    if mode == "row": A("s_cmp_eq_u32 s%d, 2\ns_cbranch_scc1 B_QA\ns_cmp_eq_u32 s%d, 3\ns_cbranch_scc1 B_TAIL_row" % (CSCL, CSCL))
    A("s_cmp_ge_u32 s%d, 2\ns_cbranch_scc1 B_TAIL_%s\ns_cmp_lg_u32 s%d, 0\ns_cbranch_scc1 B_TAIL_%s" % (N_TYPE, mode, N_WAIT, mode))
    switch()
    A("s_mov_b32 s%d, 3\ns_mov_b32 s%d, 1\ns_branch B_LOOP_%s" % (G_CNT, PH, mode))
    A.label("B_TAIL_" + mode)
    G.step(mode, False, 6); G.step(mode, False, 0); G.step(mode, False, 0, more=False)
    A.label("B_EPW_" + mode)
    A("s_bitcmp1_b32 s2, 31\ns_cbranch_scc1 VDB%s_OK" % mode)
    A("s_cmp_lg_u32 s34, 4\ns_cbranch_scc1 VB%s_DONE" % mode)
    verify(A, [40, 41, 42, 43, 45, 46, 51, 38], "B" + mode)
    A("s_barrier")
    verdict(A, 42, 43, "B" + mode)
    A("s_cmp_lg_u32 s%d, 4\ns_cbranch_scc1 B_NA%s" % (CSCL, mode))
    A("v_mov_b32 v28, -1\nv_mov_b32 v29, -1\nv_mov_b32 v30, -1\nv_mov_b32 v31, -1\nv_lshlrev_b32 v1, 4, v0")
    A("s_lshl_b32 s40, s%d, 12\ns_add_u32 s40, s40, s%d" % (G_WAVE, CHEAD))
    for i in range(4): A("buffer_store_dwordx4 v[28:31], v1, s[8:11], s40 offen offset:%d sc1" % (1024 * i))
    A.label("B_NA" + mode)
    if mode == "row":
        A("s_cmp_lg_u32 s%d, 1\ns_cbranch_scc1 B_NOSC" % CSCL)
        A("v_mov_b32 v1, 0x%x" % f32bits(B2_QSCALE))
        for i in range(64): A("v_mul_f32 v%d, v%d, v1" % (G.ACC + i, G.ACC + i))
        A.label("B_NOSC")
    G.epilogue(mode, "sc1", flip=(lambda r: A("s_cmp_eq_u32 s%d, 4\ns_cselect_b32 s40, 2, 0\ns_xor_b32 s%d, s%d, s40" % (CSCL, r, r))) if mode == "tr" else None)
    A("s_mov_b32 s%d, s%d" % (PSIG, CSIG))
    A("s_cmp_eq_u32 s%d, %d\ns_cbranch_scc1 B_NOW_%s" % (CSIG, flag(F_KV), mode))
    A("s_cmp_eq_u32 s%d, 1\ns_cbranch_scc1 B_WARM" % PH)
    A.label("B_NOW_" + mode)
    A("s_waitcnt vmcnt(0)\ns_barrier")
    signal(CSIG, "c" + mode)
    A("s_mov_b32 s%d, 0" % PSIG)
    A("s_cmp_eq_u32 s%d, 1\ns_cbranch_scc1 B_WARM" % PH)
    A("s_branch B_COLD")
A.label("B_QA")
A("s_lshr_b32 s40, s%d, 3\ns_lshl_b32 s40, s40, 7\ns_add_u32 s40, s40, %d\ns_mov_b32 s41, 0" % (CSEG, flag(F_KV)))
A.label("B_QA_W")
A("buffer_load_dword v1, off, s[8:11], s40 sc1")
A("s_add_u32 s41, s41, 1\ns_cmp_gt_u32 s41, %d\ns_cbranch_scc1 C_DONE" % TIMEOUT)
A("s_cmp_lt_u32 s%d, 8\ns_cselect_b32 s42, %d, 64" % (CSEG, 128 if sched.SMALL0 else 64))
A("s_waitcnt vmcnt(0)\nv_cmp_eq_u32 vcc, s42, v1\ns_cbranch_vccnz B_QA_G\ns_sleep 8\ns_branch B_QA_W")
A.label("B_QA_G")
a2_kv_loads(A, CSEG, CHEAD)
G.step("row", False, 16); G.step("row", False, 16); G.step("row", False, 0, more=False)
A("s_barrier")
G.epilogue_lds()
elog(4)
A("s_waitcnt lgkmcnt(0)\ns_barrier")
emit_a2(A, "", CSEG, CHEAD, G_WAVE, "C_DONE")
A("s_barrier\ns_branch B_COLD")
A.label("A3_ENTRY")
if STAMP:
    A("s_mov_b32 s%d, 13" % SLOT_); bstamp()
emit_a3w(A, N_QB, N_HEAD, G_WAVE, "A3_DONE", "C_DONE")
A.label("A3_DONE")
if STAMP:
    A("s_mov_b32 s%d, 14" % SLOT_); bstamp()
A.label("C_DONE")
A("s_endpgm")

import sched
A.raw(".p2align 6\n.type JOBS,@object\nJOBS:")
for row in sched.table():
    A.raw(".long " + ", ".join("0x%x" % x for x in row))
A.raw(".size JOBS, %d" % (128 * 64))
A.raw(".type SEGS,@object\nSEGS:")
for row in sched.segs():
    A.raw(".long " + ", ".join("%d" % x for x in row))
A.raw(".size SEGS, %d" % (8 * 128))
A.raw(kernel_desc(KN))
open(sys.argv[1], "w").write(A.text())
```
